```python
import torch

def _softmax(x, axis=-1):
    return torch.softmax(x, dim=axis)
def _gelu(x):
    return torch.nn.functional.gelu(x, approximate="tanh")
def _silu(x):
    return torch.nn.functional.silu(x)
def _sigmoid(x):
    return torch.sigmoid(x)
def _layernorm(x, axis=-1, eps=1e-5):
    m = x.mean(dim=axis, keepdim=True)
    v = x.var(dim=axis, keepdim=True, unbiased=False)
    return (x - m) / torch.sqrt(v + eps)
def _scatter_add(tgt, idx, src, axis=0):
    return tgt.clone().index_add_(axis, idx, src)
def _segment_sum(src, seg, n):
    out = torch.zeros((n,) + src.shape[1:], dtype=src.dtype)
    return out.index_add_(0, seg, src)
def _pad(x, pw):
    flat = tuple(v for pair in reversed(pw) for v in pair)
    return torch.nn.functional.pad(x, flat)

kernel_name = 'gated_mix__ssm_conv_h3__ssm_conv_s4d__prompt'

def setup_inputs():

    _w = (lambda a: (lambda t: t.to(torch.bfloat16) if t.is_floating_point() else t)(torch.as_tensor(a)))
    def _A_setup():
        B, S, D = 1, 2048, 640
        ks = 4
        return {
            "q": _w((lambda *s: torch.randn(*s, dtype=torch.bfloat16) * 0.05)(B, S, D)),
            "k": _w((lambda *s: torch.randn(*s, dtype=torch.bfloat16) * 0.4)(B, S, D)),
            "v": _w((lambda *s: torch.randn(*s, dtype=torch.bfloat16) * 0.2)(B, S, D)),
            "shift_k": _w((lambda *s: torch.randn(*s, dtype=torch.bfloat16) * 0.4)(D, ks) * 0.5),
            "ssm_k": _w((lambda *s: torch.randn(*s, dtype=torch.bfloat16) * 0.4)(D, S) * (1.0 / S ** 0.5)),
            "ssm_D": _w((lambda *s: torch.randn(*s, dtype=torch.bfloat16) * 0.2)(D)),
        }
    _A_in = _A_setup()

    def _B_setup():
        Bsz, L, D, N = 1, 2048, 640, 192
        return {
            "u": _w((lambda *s: torch.randn(*s, dtype=torch.bfloat16) * 0.05)(Bsz, L, D)),
            "log_A_real": _w((lambda *s: torch.randn(*s, dtype=torch.bfloat16) * 3.2)(D, N) * 0.5),
            "A_imag": _w((lambda *s: torch.randn(*s, dtype=torch.bfloat16) * 0.05)(D, N) * 3.14),
            "C_real": _w((lambda *s: torch.randn(*s, dtype=torch.bfloat16) * 0.1)(D, N) / N ** 0.5),
            "C_imag": _w((lambda *s: torch.randn(*s, dtype=torch.bfloat16) * 0.1)(D, N) / N ** 0.5),
            "log_dt": _w((lambda *s: torch.randn(*s, dtype=torch.bfloat16) * 0.05)(D) * 0.5 - 4.0),
            "D_skip": _w((lambda *s: torch.randn(*s, dtype=torch.bfloat16) * 0.05)(D)),
        }
    _B_in = _B_setup()

    return {
        "A_q": _A_in["q"],
        "A_k": _A_in["k"],
        "A_v": _A_in["v"],
        "A_shift_k": _A_in["shift_k"],
        "A_ssm_k": _A_in["ssm_k"],
        "A_ssm_D": _A_in["ssm_D"],
        "B_u": _B_in["u"],
        "B_log_A_real": _B_in["log_A_real"],
        "B_A_imag": _B_in["A_imag"],
        "B_C_real": _B_in["C_real"],
        "B_C_imag": _B_in["C_imag"],
        "B_log_dt": _B_in["log_dt"],
        "B_D_skip": _B_in["D_skip"],
        "gate_w": _w((lambda *s: torch.randn(*s, dtype=torch.bfloat16) * 0.05)(640) * 16.0),
    }

def reference(A_q, A_k, A_v, A_shift_k, A_ssm_k, A_ssm_D, B_u, B_log_A_real, B_A_imag, B_C_real, B_C_imag, B_log_dt, B_D_skip, gate_w):
    def _A_ref(q, k, v, shift_k, ssm_k, ssm_D):
        B, S, D = q.shape
        ks = shift_k.shape[-1]
        k_pad = _pad(k, ((0, 0), (ks - 1, 0), (0, 0)))
        k_shift = torch.zeros_like(k)
        for t in range(ks):
            k_shift = k_shift + k_pad[:, t:t + S, :] * shift_k[:, ks - 1 - t][None, None, :]
        kv = k_shift * v
        L = 2 * S
        kv_pad = _pad(kv, ((0, 0), (0, S), (0, 0)))
        kf_pad = _pad(ssm_k, ((0, 0), (0, S)))
        kv_f = (lambda x, axes=(-2,-1): torch.fft.rfft2(x.float(), dim=axes))(kv_pad[:, None, :, :], axes=(1, 2))
        kf_f = (lambda x, axes=(-2,-1): torch.fft.rfft2(x.float(), dim=axes))(kf_pad[:, None, :], axes=(1, 2))
        kf_f = (lambda x, *d: x.permute(*d))(kf_f, 1, 2, 0)
        y_f = kv_f * kf_f[None, :, :, :]
        y = (lambda x, s, axes=(-2,-1): torch.fft.irfft2(x, s=s, dim=axes).to(torch.bfloat16))(y_f, (1, L), axes=(1, 2))[:, 0, :S, :]
        y = y + kv * ssm_D[None, None, :]
        return q * y

    def _B_ref(u, log_A_real, A_imag, C_real, C_imag, log_dt, D_skip):
        L = u.shape[1]
        dt = torch.exp(log_dt)
        A = -torch.exp(log_A_real) + 1j * A_imag
        C = (C_real + 1j * C_imag) * dt[:, None]
        pos = (lambda x, dt: x.to(dt))(torch.arange(L), log_dt.dtype)
        P = torch.exp((A * dt[:, None])[:, :, None] * pos[None, None, :])
        K = 2.0 * torch.einsum("dn,dnl->dl", C, P).real
        L2 = 2 * L
        u_t = (lambda x, *d: x.permute(*d))(u, 0, 2, 1)
        Kf = (lambda x, *a, **k: torch.fft.rfft(x.float(), *a, **k))(K, L2)
        Uf = (lambda x, *a, **k: torch.fft.rfft(x.float(), *a, **k))(u_t, L2)
        y = (lambda x, *a, **k: torch.fft.irfft(x, *a, **k).to(torch.bfloat16))(Uf * Kf[None, :, :], L2)[:, :, :L]
        y = (lambda x, *d: x.permute(*d))(y, 0, 2, 1)
        return y + u * D_skip[None, None, :]

    x = A_q
    g = _sigmoid((x * gate_w).sum(-1, keepdims=True))
    a = _A_ref(x, A_k, A_v, A_shift_k, A_ssm_k, A_ssm_D)
    b = _B_ref(x, B_log_A_real, B_A_imag, B_C_real, B_C_imag, B_log_dt, B_D_skip)
    return g * a + (1 - g) * b
```

```python
import re

TRANS = ("v_exp_f32", "v_log_f32", "v_rcp_f32", "v_rsq_f32", "v_sqrt_f32", "v_sin_f32", "v_cos_f32", "v_rcp_iflag_f32")

def _regs(tok):
    tok = tok.strip()
    tok = tok.lstrip("-")
    m = re.fullmatch(r"abs\((.*)\)", tok)
    if m: tok = m.group(1)
    tok = tok.strip("|")
    m = re.fullmatch(r"([vas])\[(\d+):(\d+)\]", tok)
    if m:
        return [f"{m.group(1)}{i}" for i in range(int(m.group(2)), int(m.group(3)) + 1)]
    m = re.fullmatch(r"([vas])(\d+)", tok)
    if m:
        return [tok]
    if tok in ("vcc", "vcc_lo", "vcc_hi"):
        return ["vcc"]
    if tok in ("exec", "exec_lo", "exec_hi"):
        return ["exec"]
    if tok == "m0":
        return ["m0"]
    return []

class Ins:
    __slots__ = ("text", "op", "w", "r", "kind", "passes", "srcC", "ab", "lanesel", "dpp", "nstates", "label", "storedata")
    def __init__(self, text):
        self.text = text
        t = text.split(";")[0].strip()
        self.label = t.endswith(":") and " " not in t
        self.w, self.r = [], []
        self.kind = "other"; self.passes = 0; self.srcC = []; self.ab = []; self.lanesel = []; self.dpp = False
        self.nstates = 1; self.storedata = []
        if self.label or not t or t.startswith("."):
            self.op = ""; self.nstates = 0; self.kind = "label" if self.label else "dir"
            return
        parts = t.split(None, 1)
        op = parts[0]; self.op = op
        rest = parts[1] if len(parts) > 1 else ""
        ops = []; depth = 0; cur = ""
        for ch in rest:
            if ch == "[": depth += 1
            if ch == "]": depth -= 1
            if ch == "," and depth == 0:
                ops.append(cur.strip()); cur = ""
            else:
                cur += ch
        if cur.strip(): ops.append(cur.strip())
        mods = ""
        if ops:
            last = ops[-1].split(None, 1)
            ops[-1] = last[0]
            if len(last) > 1: mods = last[1]
        self.dpp = any(k in mods for k in ("row_shr", "row_shl", "row_ror", "quad_perm", "row_bcast", "wave_shr", "wave_shl", "row_mirror", "row_half_mirror", "wave_ror", "wave_rol", "row_newbcast")) or "_dpp" in op
        R = [_regs(o) for o in ops]
        flat = lambda xs: [x for l in xs for x in l]
        if op == "s_nop":
            self.kind = "nop"; self.nstates = int(ops[0], 0) + 1; return
        if op.startswith("v_mfma"):
            self.kind = "mfma"
            self.w = R[0]; self.ab = R[1] + R[2]; self.srcC = R[3]; self.r = self.ab + self.srcC + ["exec"]
            self.passes = 8 if "32x32x16" in op else 4 if "16x16x32" in op else 16
            return
        if op.startswith("v_"):
            self.kind = "trans" if any(op.startswith(x) for x in TRANS) else "valu"
            base = op
            if base.startswith("v_cmpx"):
                self.w = R[0] + ["exec"]; self.r = flat(R[1:])
            elif base.startswith("v_cmp"):
                self.w = R[0]; self.r = flat(R[1:])
            elif base.startswith(("v_readfirstlane", "v_readlane")):
                self.w = R[0]; self.r = R[1]
                if base.startswith("v_readlane"): self.lanesel = R[2]; self.r += R[2]
                self.kind = "readlane"
            elif base.startswith("v_writelane"):
                self.w = R[0]; self.r = flat(R[1:]) + R[0]; self.lanesel = R[2]; self.kind = "writelane"
            elif base.startswith(("v_permlane32_swap", "v_permlane16_swap")):
                self.w = R[0] + R[1]; self.r = R[0] + R[1]; self.kind = "permlane"
            elif base.startswith(("v_add_co", "v_sub_co", "v_addc_co", "v_subb_co", "v_subrev_co", "v_mad_u64_u32", "v_div_scale")):
                self.w = R[0] + R[1]; self.r = flat(R[2:])
            elif base.startswith(("v_fmac", "v_pk_fmac", "v_dot2c", "v_fmaak", "v_fmamk")):
                self.w = R[0]; self.r = flat(R[1:]) + R[0]
            elif base.startswith("v_nop"):
                self.kind = "nop"
            else:
                self.w = R[0]; self.r = flat(R[1:])
                if base.startswith("v_cndmask") and len(ops) == 3: self.r.append("vcc")
                if self.dpp: self.r += R[0]
            if "v_cndmask" in base and len(ops) == 4: pass
            self.r.append("exec")
            return
        if op.startswith("ds_"):
            self.kind = "ds"
            if op.startswith(("ds_read", "ds_bpermute", "ds_permute", "ds_swizzle")):
                self.w = R[0]; self.r = flat(R[1:])
            elif "rtn" in op:
                self.w = R[0]; self.r = flat(R[1:])
            else:
                self.r = flat(R)
            return
        if op.startswith(("buffer_", "global_", "flat_")):
            self.kind = "vmem"
            islds = (" lds" in (" " + mods)) or "_lds_" in op
            if "load" in op and not islds:
                self.w = R[0]; self.r = flat(R[1:])
            elif "atomic" in op and "sc0" in mods:
                self.w = R[0]; self.r = flat(R)
            else:
                self.r = flat(R)
                if "store" in op and ("x4" in op or "x3" in op):
                    self.storedata = R[0] if op.startswith("buffer_") else R[1]
            if islds: self.r.append("m0")
            return
        if op.startswith("s_"):
            self.kind = "salu"
            if op.startswith(("s_waitcnt", "s_barrier", "s_endpgm", "s_branch", "s_cbranch", "s_setprio", "s_sleep")):
                self.kind = "sctl"
                if op.startswith("s_cbranch_vcc"): self.r = ["vcc"]
                if op.startswith("s_cbranch_exec"): self.r = ["exec"]
                return
            if op.startswith(("s_cmp", "s_bitcmp")):
                self.r = flat(R); return
            if op.startswith(("s_load", "s_buffer_load", "s_memtime", "s_memrealtime", "s_getreg")):
                self.kind = "smem"; self.w = R[0]; self.r = flat(R[1:]); return
            if "saveexec" in op:
                self.w = R[0] + ["exec"]; self.r = flat(R[1:]) + ["exec"]; return
            self.w = R[0]; self.r = flat(R[1:])
            return

def is_valu(i): return i.kind in ("valu", "trans", "readlane", "writelane", "permlane")

def required(p, c):
    n = 0
    pw = set(p.w); cr = set(c.r); cw = set(c.w)
    if is_valu(p):
        vw = {x for x in pw if x[0] in "va" and x != "vcc"}
        sw = {x for x in pw if x[0] == "s" or x == "vcc"}
        if c.kind == "mfma" and (vw & cr): n = max(n, 2)
        if c.kind == "mfma" and "exec" in pw: n = max(n, 4)
        if c.kind == "vmem" and (sw & cr): n = max(n, 5)
        if is_valu(c) and (sw & cr): n = max(n, 2)
        if c.kind in ("readlane", "writelane") and (sw & set(c.lanesel)): n = max(n, 4)
        if c.kind == "readlane" and (vw & cr): n = max(n, 1)
        if c.kind == "permlane" and (vw & cr): n = max(n, 2)
        if c.dpp and (vw & cr): n = max(n, 2)
        if c.dpp and "exec" in pw: n = max(n, 5)
        if "exec" in pw and c.kind in ("readlane", "writelane", "permlane"): n = max(n, 4)
        if p.kind == "trans" and is_valu(c) and c.kind != "trans" and (vw & cr): n = max(n, 1)
        if p.kind == "trans" and c.kind == "trans" and (vw & cr): n = max(n, 1)
        if ("vcc" in pw or "exec" in pw) and c.op.startswith(("s_cbranch_vcc", "s_cbranch_exec")): n = max(n, 5)
        if sw & cr and c.kind in ("salu", "sctl", "smem"): n = max(n, 3)
    if p.op.startswith("v_dot"):
        if c.op == p.op:
            if pw & (cr - set(c.r[-2:-1])) and False: pass
        elif pw & (cr | cw): n = max(n, 3)
    if p.kind == "mfma":
        D = pw
        full = {4: 8, 8: 12, 16: 20}[p.passes]
        if c.kind == "mfma":
            if D & set(c.ab): n = max(n, full)
            if D & set(c.srcC):
                if not (set(c.srcC) == D and c.passes == p.passes): n = max(n, {4: 6, 8: 10, 16: 18}[p.passes])
            if (D & cw) and not (D & set(c.srcC)): n = max(n, full)
        elif (is_valu(c) and (D & (cr | cw))) or (c.kind in ("ds", "vmem") and (D & (cr | cw))):
            n = max(n, full)
        if is_valu(c) and (set(p.srcC) & cw): n = max(n, {4: 3, 8: 7, 16: 15}[p.passes])
    if p.kind == "vmem" and p.storedata:
        if set(p.storedata) & cw and c.kind != "vmem": n = max(n, 2)
        if set(p.storedata) & cw: n = max(n, 1)
    if p.kind == "salu" and "m0" in pw and c.kind == "vmem" and "m0" in cr: n = max(n, 1)
    if p.kind == "salu" and "exec" in pw and c.dpp: n = max(n, 0)
    return n

class Asm:
    def __init__(self):
        self.lines = []
    def __call__(self, s):
        for l in s.strip("\n").split("\n"):
            l = l.strip()
            if l: self.lines.append(l)
    def label(self, name): self.lines.append(name + ":")
    def finish(self, window=24):
        ins = [Ins(l) for l in self.lines]
        def pad_needed(prev, c):
            dist = 0; need = 0
            for p in reversed(prev):
                if p.nstates == 0: continue
                rq = required(p, c)
                if rq > dist: need = max(need, rq - dist)
                dist += p.nstates
                if dist >= window: break
            return need
        out = []
        for c in ins:
            if c.nstates and c.kind != "nop":
                need = pad_needed(out[-40:], c)
                while need > 0:
                    k = min(need, 16)
                    out.append(Ins(f"s_nop {k-1}")); need -= k
            out.append(c)
        labels = {i.text[:-1]: n for n, i in enumerate(out) if i.kind == "label"}
        problems = []
        for n, b in enumerate(out):
            if b.op.startswith(("s_branch", "s_cbranch")):
                tgt = b.text.split()[-1]
                if tgt not in labels: continue
                prev = out[max(0, n-40):n+1]
                k = labels[tgt]; seq = list(prev)
                cnt = 0
                for c in out[k:k+30]:
                    if c.nstates == 0: continue
                    if c.kind != "nop":
                        need = pad_needed(seq, c)
                        if need > 0: problems.append((b.text, c.text, need))
                    seq.append(c); cnt += 1
                    if c.op.startswith(("s_branch", "s_endpgm")): break
        if problems:
            raise RuntimeError("hazard across branch: " + repr(problems[:5]))
        txt = []
        for i in out:
            txt.append(i.text if i.kind in ("label", "dir") and not i.text.startswith(".p2align") and i.kind == "label" else "    " + i.text)
        return "\n".join(txt) + "\n"

def vr(a, n=1):
    return f"v{a}" if n == 1 else f"v[{a}:{a+n-1}]"
def ar(a, n=1):
    return f"a{a}" if n == 1 else f"a[{a}:{a+n-1}]"
def sr(a, n=1):
    return f"s{a}" if n == 1 else f"s[{a}:{a+n-1}]"
```

```python
import sys
from asmlib import Asm, vr, ar, sr

S, D = 2048, 640
XROW = 4224
WS_X = 0
WS_KB = 0x530000
WS_G = 0x7B0000
WS_OT = 0x800000
NAME = "gated_mix__ssm_conv_h3__ssm_conv_s4d__prompt"

class Cfg:
    nt_in = "nt"
    st_p1 = ""
    ld_p2 = ""
    st_p2 = ""
    ld_p3 = ""
    st_p3 = ""
    exact_kv = False
    stamps = False

def srd(a, s, base_lo, base_hi, size):
    a(f"s_mov_b32 s{s}, s{base_lo}")
    a(f"s_and_b32 s{s+1}, s{base_hi}, 0xffff")
    a(f"s_mov_b32 s{s+2}, {size}")
    a(f"s_mov_b32 s{s+3}, 0x00020000")

def srd_off(a, s, base_lo, base_hi, off_s, size):
    a(f"s_add_u32 s{s}, s{base_lo}, {off_s}")
    a(f"s_addc_u32 s{s+1}, s{base_hi}, 0")
    a(f"s_and_b32 s{s+1}, s{s+1}, 0xffff")
    a(f"s_mov_b32 s{s+2}, {size}")
    a(f"s_mov_b32 s{s+3}, 0x00020000")

def cmul(a, d, z, w):
    t = 2
    a(f"v_pk_mul_f32 v[{t}:{t+1}], v[{z}:{z+1}], v[{w}:{w+1}] op_sel:[0,0] op_sel_hi:[1,0]")
    a(f"v_pk_fma_f32 v[{d}:{d+1}], v[{z}:{z+1}], v[{w}:{w+1}], v[{t}:{t+1}] op_sel:[1,1,0] op_sel_hi:[0,1,1] neg_lo:[1,0,0]")

def chan_map(a, s_wg, s_c0, s_c2, s_e, s_t):
    a(f"s_and_b32 s{s_t}, s{s_wg}, 7")
    a(f"s_mul_i32 s{s_c2}, s{s_t}, 80")
    a(f"s_lshr_b32 s{s_t}, s{s_wg}, 4")
    a(f"s_mul_i32 s{s_t}, s{s_t}, 5")
    a(f"s_add_u32 s{s_c2}, s{s_c2}, s{s_t}")
    a(f"s_lshr_b32 s{s_e}, s{s_wg}, 3")
    a(f"s_and_b32 s{s_e}, s{s_e}, 1")
    a(f"s_mul_i32 s{s_t}, s{s_e}, 3")
    a(f"s_add_u32 s{s_c0}, s{s_c2}, s{s_t}")
    a(f"s_add_u32 s{s_c2}, s{s_c2}, 2")

def p1_T(a, cfg):
    nt = cfg.nt_in
    a("s_load_dwordx4 s[4:7], s[0:1], 0")
    a("s_load_dwordx4 s[8:11], s[0:1], 16")
    a("s_load_dwordx2 s[12:13], s[0:1], 104")
    a("s_load_dwordx2 s[14:15], s[0:1], 128")
    a("v_and_b32 v1, 63, v0")
    a("s_and_b32 s16, s2, 7")
    a("s_lshr_b32 s17, s2, 3")
    a("s_mul_i32 s18, s16, 160")
    a("s_lshl_b32 s19, s3, 5")
    a("s_add_u32 s18, s18, s19")
    a("s_lshl_b32 s19, s17, 6")
    a("s_mul_i32 s20, s19, 1280")
    a("s_add_u32 s20, s20, s18")
    a("v_lshrrev_b32 v2, 1, v1")
    a("v_and_b32 v3, 1, v1")
    a("v_lshlrev_b32 v3, 4, v3")
    a("v_add_u32 v3, s20, v3")
    a("v_and_b32 v4, 7, v2")
    a("v_lshlrev_b32 v4, 3, v4")
    a("v_lshrrev_b32 v5, 3, v2")
    a("v_add_u32 v4, v4, v5")
    a("v_mul_u32_u24 v4, 1280, v4")
    a("v_add_u32 v4, v4, v3")
    for i in range(3):
        a(f"v_add_u32 v5, {32*i}, v2")
        a("v_mul_u32_u24 v6, 57, v5")
        a("v_lshrrev_b32 v6, 9, v6")
        a("v_mul_u32_u24 v7, 9, v6")
        a("v_sub_u32 v7, v5, v7")
        a("v_lshl_add_u32 v7, v7, 3, v6")
        a("v_mul_u32_u24 v7, 1280, v7")
        a("v_add_u32 v7, v7, v3")
        a(f"v_subrev_u32 v{8+i}, {3*1280}, v7")
    a("s_mul_i32 s21, s3, 7168")
    a("s_waitcnt lgkmcnt(0)")
    srd(a, 24, 4, 5, S*D*2)
    srd(a, 28, 6, 7, S*D*2)
    srd(a, 32, 8, 9, S*D*2)
    srd(a, 36, 10, 11, D*8)
    srd(a, 40, 12, 13, D*2)
    srd_off(a, 44, 14, 15, WS_X, 1280*XROW)
    srd_off(a, 48, 14, 15, WS_G, 16384)
    a("s_movk_i32 s22, 5120")
    for i in range(3):
        a(f"s_add_u32 m0, s21, {4096 + 1024*i}")
        a("s_nop 0")
        a(f"buffer_load_dwordx4 v{8+i}, s[28:31], 0 offen {nt} lds")
    for i in range(2):
        a(f"s_add_u32 m0, s21, {2048 + 1024*i}")
        a("s_nop 0")
        a(f"buffer_load_dwordx4 v4, s[32:35], {'0' if i == 0 else 's22'} offen {nt} lds")
    for i in range(2):
        a(f"s_add_u32 m0, s21, {1024*i}")
        a("s_nop 0")
        a(f"buffer_load_dwordx4 v4, s[24:27], {'0' if i == 0 else 's22'} offen {nt} lds")
    a("v_lshrrev_b32 v11, 3, v1")
    a("s_lshl_b32 s23, s18, 2")
    a("v_lshl_add_u32 v12, v11, 4, s23")
    a("buffer_load_dwordx4 v[16:19], v12, s[36:39], 0 offen")
    a("s_and_b32 s23, s3, 3")
    a("s_lshl_b32 s23, s23, 1")
    a("s_lshl_b32 s52, s2, 3")
    a("s_add_u32 s23, s23, s52")
    a("v_lshrrev_b32 v12, 5, v1")
    a("v_add_u32 v12, s23, v12")
    a("v_and_b32 v13, 31, v1")
    a("v_lshlrev_b32 v13, 4, v13")
    a("v_mul_u32_u24 v14, 1280, v12")
    a("v_add_u32 v14, v14, v13")
    a("v_add_u32 v15, 1024, v14")
    a("v_cmp_gt_u32 vcc, 256, v13")
    a("v_mov_b32 v20, -1")
    a("v_cndmask_b32 v15, v20, v15, vcc")
    a(f"buffer_load_dwordx4 v[24:27], v14, s[24:27], 0 offen")
    a(f"buffer_load_dwordx4 v[28:31], v14, s[24:27], 0 offen offset:512")
    a(f"buffer_load_dwordx4 v[32:35], v15, s[24:27], 0 offen")
    a("buffer_load_dwordx4 v[36:39], v13, s[40:43], 0 offen")
    a("buffer_load_dwordx4 v[40:43], v13, s[40:43], 0 offen offset:512")
    a("buffer_load_dwordx4 v[44:47], v13, s[40:43], 0 offen offset:1024")
    a("v_and_b32 v13, 7, v1")
    a("v_lshlrev_b32 v21, 5, v13")
    a("v_lshl_add_u32 v21, v11, 2, v21")
    a("v_add_u32 v21, s21, v21")
    a("s_lshr_b32 s23, s18, 1")
    a("v_lshl_add_u32 v22, v11, 1, s23")
    a(f"s_movk_i32 s52, {2*XROW}")
    a("v_mul_lo_u32 v22, v22, s52")
    a("s_lshl_b32 s53, s19, 1")
    a("s_sub_u32 s53, 4080, s53")
    a("v_lshlrev_b32 v23, 4, v13")
    a("v_sub_u32 v23, s53, v23")
    a("v_add_u32 v22, v22, v23")
    a("s_waitcnt vmcnt(6)")
    KR, VR, QR = 48, 60, 68
    for r in range(11):
        a(f"ds_read_b32 v{KR+r}, v21 offset:{4096 + ((r & 7)*9 + (r >> 3))*32}")
    for r in range(8):
        a(f"ds_read_b32 v{VR+r}, v21 offset:{2048 + r*256}")
    for r in range(8):
        a(f"ds_read_b32 v{QR+r}, v21 offset:{r*256}")
    W = 80
    a(f"v_lshlrev_b32 v{W+0}, 16, v16");  a(f"v_lshlrev_b32 v{W+1}, 16, v18")
    a(f"v_and_b32 v{W+2}, 0xffff0000, v16"); a(f"v_and_b32 v{W+3}, 0xffff0000, v18")
    a(f"v_lshlrev_b32 v{W+4}, 16, v17");  a(f"v_lshlrev_b32 v{W+5}, 16, v19")
    a(f"v_and_b32 v{W+6}, 0xffff0000, v17"); a(f"v_and_b32 v{W+7}, 0xffff0000, v19")
    K2, V2 = 88, 110
    a("s_waitcnt lgkmcnt(15)")
    a("s_waitcnt lgkmcnt(0)")
    for r in range(11):
        a(f"v_lshlrev_b32 v{K2+2*r}, 16, v{KR+r}")
        a(f"v_and_b32 v{K2+2*r+1}, 0xffff0000, v{KR+r}")
    for r in range(8):
        a(f"v_lshlrev_b32 v{V2+2*r}, 16, v{VR+r}")
        a(f"v_and_b32 v{V2+2*r+1}, 0xffff0000, v{VR+r}")
    KV = 128
    def pk(op, d, *srcs): a(f"{op} v[{d}:{d+1}], " + ", ".join(f"v[{s}:{s+1}]" for s in srcs))
    def rnd(d):
        a(f"v_cvt_pk_bf16_f32 v2, v{d}, v{d+1}")
        a(f"v_lshlrev_b32 v{d}, 16, v2")
        a(f"v_and_b32 v{d+1}, 0xffff0000, v2")
    for r in range(8):
        d = KV + 2*r
        if not cfg.exact_kv:
            pk("v_pk_mul_f32", d, K2+2*(r+0), W+6)
            pk("v_pk_fma_f32", d, K2+2*(r+1), W+4, d)
            pk("v_pk_fma_f32", d, K2+2*(r+2), W+2, d)
            pk("v_pk_fma_f32", d, K2+2*(r+3), W+0, d)
            pk("v_pk_mul_f32", d, d, V2+2*r)
        else:
            T = 4
            pk("v_pk_mul_f32", d, K2+2*(r+0), W+6); rnd(d)
            for tap, kk in ((W+4, r+1), (W+2, r+2), (W+0, r+3)):
                pk("v_pk_mul_f32", T, K2+2*kk, tap); rnd(T)
                pk("v_pk_add_f32", d, d, T); rnd(d)
            pk("v_pk_mul_f32", d, d, V2+2*r)
    OUT = 144
    a("s_mov_b32 s54, 0x05040100")
    a("s_mov_b32 s55, 0x07060302")
    for e in range(2):
        for i in range(4):
            a(f"v_cvt_pk_bf16_f32 v{OUT+8*e+i}, v{KV+2*(7-2*i)+e}, v{KV+2*(6-2*i)+e}")
        for i in range(4):
            a(f"v_perm_b32 v{OUT+8*e+4+i}, v{QR+6-2*i}, v{QR+7-2*i}, s{54+e}")
    st = cfg.st_p1
    a(f"buffer_store_dwordx4 v[{OUT}:{OUT+3}], v22, s[44:47], 0 offen {st}")
    a(f"s_movk_i32 s52, {XROW}")
    a(f"buffer_store_dwordx4 v[{OUT+4}:{OUT+7}], v22, s[44:47], s52 offen {st}")
    a(f"s_movk_i32 s53, {2*XROW}")
    a(f"buffer_store_dwordx4 v[{OUT+8}:{OUT+11}], v22, s[44:47], s53 offen {st}")
    a(f"s_movk_i32 s56, {3*XROW}")
    a(f"buffer_store_dwordx4 v[{OUT+12}:{OUT+15}], v22, s[44:47], s56 offen {st}")
    a("s_cmp_ge_u32 s3, 4")
    a("s_cbranch_scc1 P1_END")
    a("s_waitcnt vmcnt(4)")
    a("v_mov_b32 v4, 0")
    a("s_mov_b32 s52, 0x3f803f80")
    for c in range(3):
        for i in range(4):
            xq = 24 + 4*c + i; wq = 36 + 4*c + i
            a(f"v_lshlrev_b32 v6, 16, v{xq}"); a(f"v_and_b32 v7, 0xffff0000, v{xq}")
            a(f"v_lshlrev_b32 v8, 16, v{wq}"); a(f"v_and_b32 v9, 0xffff0000, v{wq}")
            a("v_pk_mul_f32 v[6:7], v[6:7], v[8:9]")
            a("v_cvt_pk_bf16_f32 v6, v6, v7")
            a("v_dot2_f32_bf16 v4, v6, s52, v4")
    for sh in (1, 2, 4, 8):
        a(f"v_add_f32_dpp v4, v4, v4 row_shr:{sh} row_mask:0xf bank_mask:0xf bound_ctrl:0")
    a("v_add_f32_dpp v4, v4, v4 row_bcast:15 row_mask:0xa bank_mask:0xf")
    a("v_cvt_pk_bf16_f32 v4, v4, v4")
    a("v_lshlrev_b32 v4, 16, v4")
    a("v_mul_f32 v5, 0xbfb8aa3b, v4")
    a("v_exp_f32 v5, v5")
    a("v_add_f32 v5, 1.0, v5")
    a("v_rcp_f32 v5, v5")
    a("v_cvt_pk_bf16_f32 v5, v5, v5")
    a("v_lshlrev_b32 v5, 16, v5")
    a("v_sub_f32 v6, 1.0, v5")
    a("v_cvt_pk_bf16_f32 v6, v6, v6")
    a("v_lshlrev_b32 v6, 16, v6")
    a("v_lshlrev_b32 v7, 2, v12")
    a("v_and_b32 v8, 31, v1")
    a("v_cmp_eq_u32 vcc, 31, v8")
    a("s_and_saveexec_b64 s[52:53], vcc")
    a(f"buffer_store_dword v5, v7, s[48:51], 0 offen {st}")
    a(f"s_movk_i32 s54, 8192")
    a(f"buffer_store_dword v6, v7, s[48:51], s54 offen {st}")
    a("s_branch P1_END")

H_ROWS = list(range(8)) + [256*i for i in range(1, 9)] + [258, 260, 262, 516, 772]

def p1_K(a, cfg, lds_base):
    a("P1_K:")
    a("s_load_dwordx4 s[4:7], s[0:1], 56")
    a("s_load_dwordx4 s[8:11], s[0:1], 72")
    a("s_load_dwordx2 s[12:13], s[0:1], 88")
    a("s_load_dwordx2 s[14:15], s[0:1], 128")
    chan_map(a, 2, 16, 17, 18, 19)
    a("s_sub_u32 s19, s3, 5")
    a("s_add_u32 s20, s16, s19")
    a("s_cmp_eq_u32 s19, 2")
    a("s_cselect_b32 s20, s17, s20")
    a("s_cselect_b32 s21, s18, 0")
    a("s_cmp_lg_u32 s21, 0")
    a("s_cbranch_scc1 P1_END")
    a("v_and_b32 v1, 63, v0")
    a(f"s_mul_i32 s21, s19, {53*256}")
    a(f"s_add_u32 s21, s21, {lds_base}")
    a("s_mul_i32 s22, s20, 384")
    a("v_lshl_add_u32 v4, v1, 1, s22")
    a("s_waitcnt lgkmcnt(0)")
    for i, (lo, hi) in enumerate(((4, 5), (6, 7), (8, 9), (10, 11))):
        srd(a, 24 + 4*i, lo, hi, D*192*2)
    srd(a, 40, 12, 13, D*2)
    srd_off(a, 44, 14, 15, WS_KB, D*4096)
    P = 152
    nt = cfg.nt_in
    a("s_lshl_b32 s23, s20, 1")
    a("v_mov_b32 v5, s23")
    a(f"buffer_load_ushort v6, v5, s[40:43], 0 offen")
    for st in range(3):
        for i in range(4):
            a(f"buffer_load_ushort v{P+4*st+i}, v4, s[{24+4*i}:{27+4*i}], 0 offen offset:{128*st}")
    AV = 16
    a("v_lshlrev_b32 v7, 2, v1")
    for c in range(16):
        a(f"v_xor_b32 v{AV+c}, {c << 4}, v7")
        a(f"v_add_u32 v{AV+c}, s21, v{AV+c}")
    RA, RB = 32, 40
    a("v_and_b32 v8, 31, v1")
    a("v_lshrrev_b32 v9, 5, v1")
    a("v_min_u32 v10, 20, v8")
    for (R, rowreg, rowoff) in ((RA, 10, 32), (RB, 8, 0)):
        a(f"v_and_b32 v11, 15, v{rowreg}")
        if rowoff:
            pass
        a("v_xor_b32 v11, v11, v9")
        a("v_lshlrev_b32 v11, 4, v11")
        a(f"v_lshl_add_u32 v11, v{rowreg}, 8, v11")
        a(f"v_add_u32 v11, {rowoff*256}, v11")
        a("v_add_u32 v11, s21, v11")
        for i in range(8):
            a(f"v_xor_b32 v{R+i}, {32*i}, v11")
    ACC = 48
    for i in range(16):
        a(f"v_mov_b32 v{ACC+i}, 0")
    a("s_waitcnt vmcnt(12)")
    a("v_lshlrev_b32 v6, 16, v6")
    a("v_mul_f32 v6, 0x3fb8aa3b, v6")
    a("v_exp_f32 v6, v6")
    a("v_cvt_pk_bf16_f32 v6, v6, v6")
    a("v_lshlrev_b32 v6, 16, v6")
    a("v_add_f32 v7, v6, v6")
    E1, E2, E4, E8, E256, E128, Z, Z2, C = 64, 66, 68, 70, 72, 74, 76, 78, 80
    Q1, Q2, Q3 = 82, 84, 86
    def store_pair(rowA, za, rowB, zb, negA, negB):
        assert rowB is None or (rowA & 15) == (rowB & 15)
        a(f"v_cvt_pk_bf16_f32 v12, v{za}, {'-' if negA else ''}v{za+1}")
        if rowB is None:
            a(f"ds_write_b32 v{AV + (rowA & 15)}, v12 offset:{rowA*256}")
        else:
            a(f"v_cvt_pk_bf16_f32 v13, v{zb}, {'-' if negB else ''}v{zb+1}")
            a(f"ds_write2st64_b32 v{AV + (rowA & 15)}, v12, v13 offset0:{rowA} offset1:{rowB}")
    def cexp(dst, h):
        a(f"v_mul_f32 v8, {float(h)!r}, v14" if h in (1, 2, 4) else f"v_mul_f32 v8, {hexf(h)}, v14")
        a(f"v_mul_f32 v9, {float(h)!r}, v15" if h in (1, 2, 4) else f"v_mul_f32 v9, {hexf(h)}, v15")
        a("v_exp_f32 v8, v8")
        a("v_fract_f32 v9, v9")
        a(f"v_cos_f32 v{dst}, v9")
        a(f"v_sin_f32 v{dst+1}, v9")
        a(f"v_mul_f32 v{dst}, v8, v{dst}")
        a(f"v_mul_f32 v{dst+1}, v8, v{dst+1}")
    a("s_mov_b32 s23, 3")
    a("s_waitcnt vmcnt(0)")
    a("P1_K_STEP:")
    a(f"v_lshlrev_b32 v8, 16, v{P}")
    a("v_mul_f32 v8, 0x3fb8aa3b, v8")
    a("v_exp_f32 v8, v8")
    a("v_cvt_pk_bf16_f32 v8, v8, v8")
    a("v_lshlrev_b32 v8, 16, v8")
    a("v_mul_f32 v14, v8, v6")
    a("v_mul_f32 v14, 0xbfb8aa3b, v14")
    a(f"v_lshlrev_b32 v15, 16, v{P+1}")
    a("v_mul_f32 v15, v15, v6")
    a("v_mul_f32 v15, 0.15915494, v15")
    a(f"v_lshlrev_b32 v{C}, 16, v{P+2}")
    a(f"v_lshlrev_b32 v{C+1}, 16, v{P+3}")
    a(f"v_mul_f32 v{C}, v{C}, v7")
    a(f"v_mul_f32 v{C+1}, v{C+1}, v7")
    cexp(E1, 1); cexp(E8, 8); cexp(E256, 256)
    cmul(a, E2, E1, E1); cmul(a, E4, E2, E2)
    cmul(a, E128, E8, E8); cmul(a, E128, E128, E128); cmul(a, E128, E128, E128); cmul(a, E128, E128, E128)
    a(f"v_mov_b32 v{Z}, 1.0"); a(f"v_mov_b32 v{Z+1}, 0")
    store_pair(0, Z, 16, E128, False, False)
    cmul(a, Z2, E128, E8)
    store_pair(1, E8, 17, Z2, False, False)
    cmul(a, Z, E8, E8); cmul(a, Z2, Z2, E8)
    store_pair(2, Z, 18, Z2, False, False)
    for lam in range(3, 16):
        cmul(a, Z, Z, E8); cmul(a, Z2, Z2, E8)
        store_pair(lam, Z, lam + 16, Z2, False, False)
    cmul(a, Q1, C, E256); cmul(a, Q2, Q1, E256); cmul(a, Q3, Q2, E256)
    cmul(a, Z, Q1, E2)
    store_pair(32+0, C, 32+16, Z, True, True)
    cmul(a, Z2, C, E1); cmul(a, Z, Z, E2)
    store_pair(32+1, Z2, 32+17, Z, True, True)
    cmul(a, Z2, Z2, E1); cmul(a, Z, Z, E2)
    store_pair(32+2, Z2, 32+18, Z, True, True)
    cmul(a, Z2, Z2, E1); cmul(a, Z, Q2, E4)
    store_pair(32+3, Z2, 32+19, Z, True, True)
    cmul(a, Z2, Z2, E1); cmul(a, Z, Q3, E4)
    store_pair(32+4, Z2, 32+20, Z, True, True)
    for k in (5, 6, 7):
        cmul(a, Z2, Z2, E1)
        store_pair(32+k, Z2, None, None, True, False)
    store_pair(32+8, Q1, None, None, True, False)
    store_pair(32+9, Q2, None, None, True, False)
    store_pair(32+10, Q3, None, None, True, False)
    cmul(a, Z, Q3, E256)
    store_pair(32+11, Z, None, None, True, False)
    for k in (12, 13, 14, 15):
        cmul(a, Z, Z, E256)
        store_pair(32+k, Z, None, None, True, False)
    OA, OB = 88, 120
    a("s_waitcnt lgkmcnt(0)")
    for i in range(8):
        a(f"ds_read_b128 v[{OA+4*i}:{OA+4*i+3}], v{RA+i}")
        a(f"ds_read_b128 v[{OB+4*i}:{OB+4*i+3}], v{RB+i}")
    for i in range(8):
        a(f"s_waitcnt lgkmcnt({14-2*i})")
        a(f"v_mfma_f32_32x32x16_bf16 v[{ACC}:{ACC+15}], v[{OA+4*i}:{OA+4*i+3}], v[{OB+4*i}:{OB+4*i+3}], v[{ACC}:{ACC+15}]")
    for i in range(8):
        a(f"v_mov_b32 v{P+i}, v{P+4+i}")
    a("s_sub_u32 s23, s23, 1")
    a("s_cmp_lg_u32 s23, 0")
    a("s_cbranch_scc1 P1_K_STEP")
    a("v_and_b32 v8, 31, v1")
    a("v_lshrrev_b32 v9, 5, v1")
    a("v_lshlrev_b32 v10, 2, v8")
    a("v_lshl_add_u32 v10, v9, 9, v10")
    a("v_add_u32 v10, s21, v10")
    a("s_nop 7")
    for r in range(12):
        row = 8*(r >> 2) + (r & 3)
        a(f"v_cvt_pk_bf16_f32 v12, v{ACC+r}, v{ACC+r}")
        a(f"ds_write_b32 v10, v12 offset:{row*128}")
    a("s_waitcnt lgkmcnt(0)")
    a("s_lshl_b32 s22, s20, 12")
    a("v_lshlrev_b32 v11, 4, v1")
    a("v_add_u32 v11, s22, v11")
    mlo, mhi = "s52", "s53"
    a("s_mov_b32 s52, 0x0000ffff")
    st = cfg.st_p1
    a("v_lshlrev_b32 v13, 2, v8")
    a("v_add_u32 v13, s21, v13")
    T = 64
    for r in range(8):
        a(f"ds_read_b32 v{T+r}, v13 offset:{r*128}")
    a(f"ds_read_b32 v{T+8}, v13 offset:{8*128}")
    a(f"ds_read_b32 v{T+9}, v13 offset:{16*128}")
    a(f"ds_read_b32 v{T+10}, v13 offset:{17*128}")
    a(f"ds_read_b32 v{T+11}, v13 offset:{18*128}")
    a(f"ds_read_b32 v{T+12}, v13 offset:{8*128+4}")
    a("v_lshlrev_b32 v14, 2, v1")
    a("v_add_u32 v14, s21, v14")
    a(f"ds_read_b32 v{T+13}, v14 offset:{9*128}")
    a(f"ds_read_b32 v{T+14}, v14 offset:{19*128}")
    a(f"ds_read_b32 v{T+15}, v14 offset:{9*128+4}")
    a("s_waitcnt lgkmcnt(0)")
    a(f"ds_read_b32 v{T+16}, v14 offset:{11*128}")
    a(f"ds_read_b32 v{T+17}, v14 offset:{11*128+4}")
    a(f"ds_read_b32 v{T+18}, v14 offset:{13*128}")
    a(f"ds_read_b32 v{T+19}, v14 offset:{13*128+4}")
    def mix(d, lo, hi):
        a(f"v_bfi_b32 v{d}, s52, v{lo}, v{hi}")
    O = 88
    for i in range(4): mix(O+i, T+2*i, T+2*i+1)
    a(f"v_mov_b32 v{O+4}, v{T+8}")
    mix(O+5, T+9, T+10)
    a(f"v_mov_b32 v{O+6}, v{T+10}")
    mix(O+7, T+11, T+12)
    a("v_cmp_gt_u32 vcc, 32, v1")
    for i in range(4):
        a(f"v_cndmask_b32 v{O+i}, v{O+4+i}, v{O+i}, vcc")
    a(f"buffer_store_dwordx4 v[{O}:{O+3}], v11, s[44:47], 0 offen {st}")
    a(f"v_mov_b32 v{O+8}, v{T+13}")
    mix(O+9, T+13, T+14)
    a(f"v_mov_b32 v{O+10}, v{T+14}")
    a(f"v_mov_b32 v{O+11}, v{T+15}")
    a(f"buffer_store_dwordx4 v[{O+8}:{O+11}], v11, s[44:47], 0 offen offset:1024 {st}")
    a("s_waitcnt lgkmcnt(0)")
    a("v_and_b32 v15, 1, v1")
    a("v_cmp_eq_u32 vcc, 1, v15")
    for k in range(2):
        s0, s1 = T+16+2*k, T+17+2*k
        d = O + 12 + 4*k
        a(f"v_mov_b32 v{d}, v{s0}")
        a(f"v_mov_b32 v{d+1}, v{s0}")
        mix(d+2, s0, s1)
        a(f"v_cndmask_b32 v{d+2}, v{d+2}, v{s1}, vcc")
        a(f"v_mov_b32 v{d+3}, v{s1}")
        a(f"buffer_store_dwordx4 v[{d}:{d+3}], v11, s[44:47], 0 offen offset:{2048+1024*k} {st}")

import struct
def hexf(x):
    return "0x%08x" % struct.unpack("<I", struct.pack("<f", float(x)))[0]

def kernel_open(a, name):
    a.lines.append(".text")
    a.lines.append(f".globl {name}")
    a.lines.append(".p2align 8")
    a.lines.append(f".type {name},@function")
    a.lines.append(f"{name}:")

def kd(name, vgpr, sgpr, accum):
    return f""".section .rodata,"a"
.p2align 6
.amdhsa_kernel {name}
  .amdhsa_next_free_vgpr {vgpr}
  .amdhsa_next_free_sgpr {sgpr}
  .amdhsa_accum_offset {accum}
  .amdhsa_group_segment_fixed_size 0
  .amdhsa_kernarg_size 136
  .amdhsa_user_sgpr_count 2
  .amdhsa_user_sgpr_kernarg_segment_ptr 1
  .amdhsa_system_sgpr_workgroup_id_x 1
  .amdhsa_float_denorm_mode_32 3
.end_amdhsa_kernel
"""

P1_LDS_K = 35840
P1_LDS = P1_LDS_K + 3*53*256

def gen_p1(cfg):
    a = Asm()
    kernel_open(a, "p1_kernel")
    a("s_cmp_ge_u32 s2, 256")
    a("s_cbranch_scc1 P1_END")
    a("v_lshrrev_b32 v1, 6, v0")
    a("s_nop 0")
    a("v_readfirstlane_b32 s3, v1")
    a("s_nop 3")
    a("s_cmp_ge_u32 s3, 5")
    a("s_cbranch_scc1 P1_K")
    p1_T(a, cfg)
    p1_K(a, cfg, P1_LDS_K)
    a("P1_END:")
    a("s_endpgm")
    return a.finish() + kd("p1_kernel", 168, 64, 168)

XCP = 4160
XARR = 4*XCP
L_K = 6*XARR
KARR = 4608
L_G = L_K + 6*KARR
P2_LDS = L_G + 16384
PSET = ([0, 3, 4, 7], [1, 2, 5, 6])

def conv_block(a, pairs, acc_of, nb, VA, VB, offA, offB, setregs):
    As = sorted({p[0] for p in pairs}); Cs = sorted({p[1] for p in pairs})
    def loads(b, st):
        A0, B0 = setregs[st]
        L = []
        seen = []
        for (aa, cc) in pairs:
            if ("A", aa) not in seen: seen.append(("A", aa))
            if ("B", cc) not in seen: seen.append(("B", cc))
        for kind, i in seen:
            if kind == "A":
                L.append(f"ds_read_b64 v[{A0+4*i}:{A0+4*i+1}], v{VA} offset:{offA(i, b, 0)}")
                L.append(f"ds_read_b64 v[{A0+4*i+2}:{A0+4*i+3}], v{VA} offset:{offA(i, b, 1)}")
            else:
                L.append(f"ds_read_b128 v[{B0+4*i}:{B0+4*i+3}], v{VB} offset:{offB(i, b)}")
        return L
    for l in loads(0, 0): a(l)
    for b in range(nb):
        st = b & 1
        A0, B0 = setregs[st]
        nxt = loads(b + 1, st ^ 1) if b + 1 < nb else []
        a("s_waitcnt lgkmcnt(0)")
        k = 0
        for idx, (aa, cc) in enumerate(pairs):
            d = acc_of(aa, cc)
            a(f"v_mfma_f32_16x16x32_bf16 a[{d}:{d+3}], v[{A0+4*aa}:{A0+4*aa+3}], v[{B0+4*cc}:{B0+4*cc+3}], a[{d}:{d+3}]")
            want = -(-len(nxt) * (idx + 1) // max(1, int(len(pairs) * 0.8)))
            while k < min(len(nxt), want):
                a(nxt[k]); k += 1
        while k < len(nxt):
            a(nxt[k]); k += 1

def gen_p2(cfg, fused=False):
    a = Asm()
    kernel_open(a, "p2_kernel")
    a("s_cmp_ge_u32 s2, 256")
    a("s_cbranch_scc1 P2_END")
    a("s_load_dwordx4 s[4:7], s[0:1], 32")
    a("s_load_dwordx2 s[8:9], s[0:1], 96")
    a("s_load_dwordx2 s[10:11], s[0:1], 128")
    a("v_lshrrev_b32 v1, 6, v0")
    a("v_and_b32 v2, 63, v0")
    a("v_readfirstlane_b32 s3, v1")
    chan_map(a, 2, 16, 17, 18, 19)
    a("s_lshr_b32 s19, s3, 1")
    a("s_add_u32 s20, s16, s19")
    a("s_cmp_ge_u32 s3, 4")
    a("s_cselect_b32 s20, s17, s20")
    a("s_and_b32 s21, s3, 1")
    a("s_waitcnt lgkmcnt(0)")
    a("s_cmp_ge_u32 s3, 6")
    a("s_cbranch_scc1 P2_GLOAD")
    a("s_lshl_b32 s22, s20, 1")
    a("s_add_u32 s22, s22, s21")
    a(f"s_mul_i32 s22, s22, {XROW}")
    srd_off(a, 24, 10, 11, "s22", 4096)
    a("s_lshl_b32 s22, s20, 12")
    a(f"s_add_u32 s23, s22, {WS_KB}")
    a("s_cmp_eq_u32 s21, 0")
    a("s_cselect_b32 s32, s4, s10")
    a("s_cselect_b32 s33, s5, s11")
    a("s_cselect_b32 s22, s22, s23")
    srd_off(a, 28, 32, 33, "s22", 4096)
    a(f"s_mul_i32 s34, s3, {XARR}")
    a(f"s_mul_i32 s35, s3, {KARR}")
    a(f"s_add_u32 s35, s35, {L_K}")
    a("v_lshlrev_b32 v3, 4, v2")
    a("v_add_u32 v4, 4, v3")
    ld = cfg.ld_p2
    W = 64
    for q in range(4):
        a(f"buffer_load_dwordx4 v[{W+8*q}:{W+8*q+3}], v3, s[24:27], 0 offen offset:{1024*q} {ld}")
        a(f"buffer_load_dwordx2 v[{W+8*q+4}:{W+8*q+5}], v3, s[24:27], 0 offen offset:{1024*q+16} {ld}")
    for q in range(4):
        a(f"s_add_u32 m0, s35, {480 + 1024*q}")
        a(f"s_movk_i32 s36, {1024*q}")
        a(f"buffer_load_dwordx4 v3, s[28:31], s36 offen {cfg.nt_in} lds")
    for cp, vreg in ((0, 3), (2, 4)):
        for q in range(4):
            a(f"s_add_u32 m0, s34, {cp*XCP + 1024*q}")
            a(f"s_movk_i32 s36, {1024*q}")
            a(f"buffer_load_dwordx4 v{vreg}, s[24:27], s36 offen {ld} lds")
    for i in range(4): a(f"v_mov_b32 v{8+i}, 0")
    a("v_lshrrev_b32 v5, 1, v2")
    a(f"v_mul_u32_u24 v5, {XCP}, v5")
    a("v_and_b32 v6, 1, v2")
    a("v_lshl_add_u32 v5, v6, 4, v5")
    a("v_add_u32 v5, s34, v5")
    a("v_add_u32 v6, s35, v3")
    a("s_mov_b64 exec, 0xff")
    a("ds_write_b128 v5, v[8:11] offset:4096")
    a("s_mov_b64 exec, 0x3fffffff")
    a("ds_write_b128 v6, v[8:11]")
    a("s_mov_b64 exec, -1")
    a("v_add_u32 v5, s34, v3")
    a("s_waitcnt vmcnt(12)")
    for q in range(4):
        w = W + 8*q
        for j in range(4):
            a(f"v_alignbit_b32 v{96+j}, v{w+j+1}, v{w+j}, 16")
        a(f"ds_write_b128 v5, v[96:99] offset:{1*XCP + 1024*q}")
        for j in range(4):
            a(f"v_alignbit_b32 v{100+j}, v{w+j+2}, v{w+j+1}, 16")
        a(f"ds_write_b128 v5, v[100:103] offset:{3*XCP + 1024*q}")
    a("v_and_b32 v8, 15, v2")
    a("v_lshrrev_b32 v9, 4, v2")
    a("v_sub_u32 v10, 3, v8")
    a("v_and_b32 v10, 3, v10")
    a("v_lshlrev_b32 v11, 3, v9")
    a("v_sub_u32 v11, v11, v8")
    a("v_add_u32 v11, 2031, v11")
    a("v_sub_u32 v11, v11, v10")
    a("v_lshlrev_b32 v11, 1, v11")
    a(f"v_mul_u32_u24 v12, {XCP}, v10")
    a("v_add_u32 v11, v11, v12")
    a("v_subrev_u32 v11, 4032, v11")
    a("v_lshlrev_b32 v12, 5, v8")
    a("v_lshl_add_u32 v12, v9, 4, v12")
    VA, VB, VA2, VB2 = 13, 14, 15, 16
    a(f"v_add_u32 v{VA}, s34, v11")
    a(f"v_add_u32 v{VB}, s35, v12")
    a("s_add_u32 s36, s21, 4")
    a(f"s_mul_i32 s37, s36, {XARR}")
    a(f"s_mul_i32 s38, s36, {KARR}")
    a(f"s_add_u32 s38, s38, {L_K}")
    a("s_lshr_b32 s39, s3, 1")
    a("s_sub_u32 s39, 1, s39")
    a("s_lshl_b32 s39, s39, 8")
    a("s_add_u32 s40, s37, s39")
    a("s_add_u32 s41, s38, s39")
    a(f"v_add_u32 v{VA2}, s40, v11")
    a(f"v_add_u32 v{VB2}, s41, v12")
    a("v_lshlrev_b32 v17, 5, v8")
    a("v_lshl_add_u32 v17, v9, 3, v17")
    a("s_waitcnt vmcnt(0) lgkmcnt(0)")
    a("s_cmp_ge_u32 s3, 4")
    a("s_cbranch_scc1 P2_HELP")
    for i in range(48):
        a(f"v_accvgpr_write_b32 a{i}, 0")
    sets = [(20, 52), (84, 116)]
    pairs = [(aa, cc) for aa in range(8) for cc in range(8 - aa)]
    conv_block(a, pairs, lambda aa, cc: 4*(aa+cc), 8, VA, VB,
               lambda i, b, h: 512*(7-i) + 64*(7-b) + 8*h, lambda c, b: 512*c + 64*(7-b), sets)
    a(f"v_add_u32 v18, s35, v17")
    for p in range(8):
        for r in range(4):
            a(f"v_accvgpr_read_b32 v{20+r}, a{4*p+r}")
        a("v_cvt_pk_bf16_f32 v24, v20, v21")
        a("v_cvt_pk_bf16_f32 v25, v22, v23")
        a(f"ds_write_b64 v18, v[24:25] offset:{512*p}")
    a("s_barrier")
    a("s_cmp_eq_u32 s18, 0")
    a("s_cbranch_scc0 P2_C2_E1")
    for e in range(2):
        if e == 1: a("P2_C2_E1:")
        ps = PSET[e]
        prs = [(aa, cc) for aa in range(8) for cc in range(8 - aa) if aa + cc in ps]
        conv_block(a, prs, lambda aa, cc: 32 + 4*ps.index(aa+cc), 4, VA2, VB2,
                   lambda i, b, h: 512*(7-i) + 64*(3-b) + 8*h, lambda c, b: 512*c + 64*(3-b), sets)
        if e == 0: a("s_branch P2_C2_DONE")
    a("P2_C2_DONE:")
    for i in range(16):
        a(f"v_accvgpr_read_b32 v{20+i}, a{32+i}")
    a("s_and_b32 s36, s3, 1")
    a("s_add_u32 s36, s36, 2")
    a(f"s_mul_i32 s36, s36, {XARR}")
    a(f"s_add_u32 s36, s36, {XCP}")
    a("v_add_u32 v19, s36, v3")
    a("s_cmp_lt_u32 s3, 2")
    a("s_cbranch_scc1 P2_RED_WAIT")
    for i in range(4):
        a(f"ds_write_b128 v19, v[{20+4*i}:{23+4*i}] offset:{1024*i}")
    a("s_waitcnt lgkmcnt(0)")
    a("s_barrier")
    a("s_branch P2_EPI_B3")
    a("P2_RED_WAIT:")
    a("s_barrier")
    for i in range(4):
        a(f"ds_read_b128 v[{36+4*i}:{39+4*i}], v19 offset:{1024*i}")
    a("v_add_u32 v18, s38, v17")
    a("s_lshl_b32 s36, s18, 9")
    a("s_waitcnt lgkmcnt(0)")
    for ti in range(4):
        for r in range(4):
            a(f"v_add_f32 v{20+4*ti+r}, v{20+4*ti+r}, v{36+4*ti+r}")
        a(f"v_cvt_pk_bf16_f32 v52, v{20+4*ti}, v{21+4*ti}")
        a(f"v_cvt_pk_bf16_f32 v53, v{22+4*ti}, v{23+4*ti}")
        if ti & 1:
            a("v_subrev_u32 v54, s36, v18")
            a(f"ds_write_b64 v54, v[52:53] offset:{1024*ti + 512}")
        else:
            a("v_add_u32 v54, s36, v18")
            a(f"ds_write_b64 v54, v[52:53] offset:{1024*ti}")
    a("s_branch P2_EPI_B3")
    a("P2_GLOAD:")
    srd_off(a, 24, 10, 11, WS_G, 16384)
    a("v_lshlrev_b32 v3, 4, v2")
    a("s_sub_u32 s36, s3, 6")
    a("s_lshl_b32 s36, s36, 13")
    for q in range(8):
        a(f"s_add_u32 s37, s36, {1024*q}")
        a(f"s_add_u32 m0, s37, {L_G}")
        a("s_nop 0")
        a(f"buffer_load_dwordx4 v3, s[24:27], s37 offen {cfg.ld_p2} lds")
    a("s_waitcnt vmcnt(0)")
    a("P2_HELP:")
    a("s_barrier")
    a("s_barrier")
    a("P2_EPI_B3:")
    a("s_waitcnt lgkmcnt(0)")
    a("s_barrier")
    srd_off(a, 24, 10, 11, WS_OT, D*XROW)
    a("s_load_dwordx4 s[4:7], s[0:1], 32")
    a("s_load_dwordx2 s[8:9], s[0:1], 96")
    a("s_waitcnt lgkmcnt(0)")
    srd(a, 28, 6, 7, D*2)
    srd(a, 32, 8, 9, D*2)
    def epi(tag, s_ch, s_arr, v_t0):
        a(f"s_lshl_b32 s44, s{s_ch}, 1")
        a("v_mov_b32 v4, s44")
        a("buffer_load_ushort v5, v4, s[28:31], 0 offen")
        a("buffer_load_ushort v6, v4, s[32:35], 0 offen")
        a(f"s_mul_i32 s45, s{s_arr}, {XARR}")
        a(f"s_mul_i32 s46, s{s_arr}, {KARR}")
        a(f"s_add_u32 s46, s46, {L_K}")
        a(f"v_lshlrev_b32 v7, 1, v{v_t0}")
        a("v_add_u32 v8, s46, v7")
        a("v_sub_u32 v9, 4080, v7")
        a("v_add_u32 v9, s45, v9")
        a(f"v_lshlrev_b32 v10, 2, v{v_t0}")
        a(f"v_add_u32 v10, {L_G}, v10")
        a("ds_read_b128 v[20:23], v8")
        a(f"ds_read_b128 v[24:27], v8 offset:{KARR}")
        a("ds_read_b128 v[28:31], v9")
        a(f"ds_read_b128 v[32:35], v9 offset:{XARR}")
        a("ds_read_b128 v[36:39], v10")
        a("ds_read_b128 v[40:43], v10 offset:16")
        a("ds_read_b128 v[44:47], v10 offset:8192")
        a("ds_read_b128 v[48:51], v10 offset:8208")
        a(f"s_mul_i32 s47, s{s_ch}, {XROW}")
        a("v_add_u32 v7, s47, v7")
        a("s_waitcnt vmcnt(0)")
        a("v_lshlrev_b32 v12, 16, v5"); a("v_mov_b32 v13, v12")
        a("v_lshlrev_b32 v14, 16, v6"); a("v_mov_b32 v15, v14")
        a("s_waitcnt lgkmcnt(0)")
        for i in range(4):
            a(f"v_lshlrev_b32 v52, 16, v{20+i}"); a(f"v_and_b32 v53, 0xffff0000, v{20+i}")
            a(f"v_lshlrev_b32 v54, 16, v{24+i}"); a(f"v_and_b32 v55, 0xffff0000, v{24+i}")
            a(f"v_and_b32 v56, 0xffff0000, v{28+3-i}"); a(f"v_lshlrev_b32 v57, 16, v{28+3-i}")
            a(f"v_and_b32 v58, 0xffff0000, v{32+3-i}"); a(f"v_lshlrev_b32 v59, 16, v{32+3-i}")
            a("v_pk_fma_f32 v[52:53], v[56:57], v[12:13], v[52:53]")
            a("v_pk_fma_f32 v[54:55], v[58:59], v[14:15], v[54:55]")
            a("v_pk_mul_f32 v[52:53], v[52:53], v[58:59]")
            a(f"v_pk_mul_f32 v[52:53], v[52:53], v[{36+2*i}:{37+2*i}]")
            a(f"v_pk_fma_f32 v[52:53], v[54:55], v[{44+2*i}:{45+2*i}], v[52:53]")
            a(f"v_cvt_pk_bf16_f32 v{60+i}, v52, v53")
        a(f"buffer_store_dwordx4 v[60:63], v7, s[24:27], 0 offen {cfg.st_p2}")
    a("s_lshr_b32 s42, s3, 2")
    a("s_add_u32 s43, s16, s42")
    a("s_lshl_b32 s42, s42, 1")
    a("v_and_b32 v1, 255, v0")
    a("v_lshlrev_b32 v1, 3, v1")
    epi("r0", 43, 42, 1)
    a("s_cmp_ge_u32 s3, 2")
    a("s_cbranch_scc1 P2_END")
    a("v_lshrrev_b32 v1, 5, v0")
    a("v_and_b32 v2, 1, v1")
    a("v_xor_b32 v2, s18, v2")
    a("v_lshl_add_u32 v1, v1, 1, v2")
    a("v_lshlrev_b32 v1, 8, v1")
    a("v_and_b32 v2, 31, v0")
    a("v_lshl_add_u32 v1, v2, 3, v1")
    a("s_mov_b32 s42, 4")
    epi("r1", 17, 42, 1)
    a("P2_END:")
    a("s_endpgm")
    return a.finish() + kd("p2_kernel", 256, 64, 160).replace("next_free_vgpr 256", "next_free_vgpr 208")

P3_LDS = 10*1056
def gen_p3(cfg):
    a = Asm()
    kernel_open(a, "p3_kernel")
    a("s_cmp_ge_u32 s2, 256")
    a("s_cbranch_scc1 P3_END")
    a("s_load_dwordx2 s[4:5], s[0:1], 112")
    a("s_load_dwordx2 s[6:7], s[0:1], 128")
    a("v_lshrrev_b32 v1, 6, v0")
    a("v_and_b32 v2, 63, v0")
    a("v_readfirstlane_b32 s3, v1")
    a("s_and_b32 s16, s2, 7")
    a("s_lshr_b32 s17, s2, 3")
    a("v_lshrrev_b32 v3, 3, v2")
    a(f"v_mul_u32_u24 v3, {XROW}, v3")
    a("v_and_b32 v4, 7, v2")
    a("v_lshl_add_u32 v3, v4, 4, v3")
    a(f"s_mul_i32 s18, s16, {80*XROW}")
    a("s_lshl_b32 s19, s17, 7")
    a("s_add_u32 s18, s18, s19")
    a("v_add_u32 v3, s18, v3")
    a("s_waitcnt lgkmcnt(0)")
    srd_off(a, 8, 6, 7, WS_OT, D*XROW)
    srd(a, 12, 4, 5, S*D*2)
    for r in range(3):
        if r == 2:
            a("s_cmp_ge_u32 s3, 2")
            a("s_cbranch_scc1 P3_LD_DONE")
        a(f"s_add_u32 s20, s3, {4*r}")
        a(f"s_mul_i32 s21, s20, {8*XROW}")
        a("s_mul_i32 s20, s20, 1056")
        a("s_mov_b32 m0, s20")
        a("s_nop 0")
        a(f"buffer_load_dwordx4 v3, s[8:11], s21 offen {cfg.ld_p3} lds")
    a("P3_LD_DONE:")
    a("v_mul_u32_u24 v5, 205, v0")
    a("v_lshrrev_b32 v5, 11, v5")
    a("v_mul_u32_u24 v6, 10, v5")
    a("v_sub_u32 v6, v0, v6")
    a("v_mul_u32_u24 v7, 1056, v6")
    a("v_lshl_add_u32 v7, v5, 3, v7")
    a("s_lshl_b32 s18, s17, 6")
    a("v_lshl_add_u32 v8, v5, 2, s18")
    a("v_mul_u32_u24 v8, 1280, v8")
    a("s_mul_i32 s19, s16, 160")
    a("v_lshl_add_u32 v9, v6, 4, s19")
    a("v_add_u32 v8, v8, v9")
    a("s_waitcnt vmcnt(0)")
    a("s_barrier")
    a("v_cmp_gt_u32 vcc, 160, v0")
    a("s_and_saveexec_b64 s[22:23], vcc")
    a("s_cbranch_execz P3_END")
    for i in range(8):
        a(f"ds_read_b64 v[{16+2*i}:{17+2*i}], v7 offset:{128*i}")
    a("s_mov_b32 s24, 0x05040100")
    a("s_mov_b32 s25, 0x07060302")
    a("s_waitcnt lgkmcnt(0)")
    for r in range(4):
        for c in range(4):
            a(f"v_perm_b32 v{32+4*r+c}, v{16+2*(2*c+1)+(r>>1)}, v{16+2*(2*c)+(r>>1)}, s{24+(r&1)}")
    for r in range(4):
        a(f"buffer_store_dwordx4 v[{32+4*r}:{35+4*r}], v8, s[12:15], 0 offen offset:{1280*r} {cfg.st_p3}")
    a("P3_END:")
    a("s_endpgm")
    return a.finish() + kd("p3_kernel", 64, 40, 64)

HEADER = open(__file__.replace("gen.py", "header.txt")).read() if __import__("os").path.exists(__file__.replace("gen.py", "header.txt")) else ""

def gen_all(cfg, which=("p1", "p2", "p3")):
    launch = []
    if "p1" in which: launch.append(f"; @launch kernel=p1_kernel grid=(256,1,1) block=(512,1,1) lds={P1_LDS}")
    if "p2" in which: launch.append(f"; @launch kernel=p2_kernel grid=(256,1,1) block=(512,1,1) lds={P2_LDS}")
    if "p3" in which: launch.append(f"; @launch kernel=p3_kernel grid=(256,1,1) block=(256,1,1) lds={P3_LDS}")
    txt = HEADER + "\n".join(launch) + '\n.amdgcn_target "amdgcn-amd-amdhsa--gfx950"\n'
    if "p1" in which: txt += gen_p1(cfg)
    if "p2" in which: txt += gen_p2(cfg)
    if "p3" in which: txt += gen_p3(cfg)
    return txt

if __name__ == "__main__":
    cfg = Cfg()
    for kv in sys.argv[2:]:
        k, v = kv.split("=", 1)
        setattr(cfg, k, v if not v in ("True", "False") else v == "True")
    open(sys.argv[1], "w").write(gen_all(cfg))
```

```python
import sys, struct
from asmlib import Asm

S, D = 2048, 640
XROW = 4224
WS_X = 0
WS_G = 0x7B0000
WS_OT = 0x800000
WS_TS = 0xC00000
NAME = "gated_mix__ssm_conv_h3__ssm_conv_s4d__prompt"
KNAME = NAME + "_kernel"

XCP = 4160; XARR = 4*XCP; L_K = 6*XARR; KARR = 4608; L_G = L_K + 6*KARR
LDS_TOTAL = 163840
L_ST = L_G
ST_Q, ST_V, ST_K = 0, 10368, 20736
SLOT = 53*256
def slot_addr(u): return u*SLOT if u < 7 else L_ST + (u-7)*SLOT
PSET = ([0, 3, 4, 7], [1, 2, 5, 6])

class Cfg:
    nt_in = "nt"
    st_x = "sc1"; ld_x = "sc1"; st_ot = "sc1"; ld_ot = "sc1"; st_out = ""; st_flag = "sc1"; ld_flag = "sc1"
    stamps = False; clk = "s_memrealtime"
    spin_max = 100000

def hexf(x): return "0x%08x" % struct.unpack("<I", struct.pack("<f", float(x)))[0]

def stamp(a, cfg, i):
    if cfg.stamps: a(f"{cfg.clk} s[{70+2*i}:{71+2*i}]")
def stamp_flush(a, cfg, n):
    if not cfg.stamps: return
    a("s_load_dwordx2 s[4:5], s[0:1], 128")
    a("s_waitcnt lgkmcnt(0)")
    a(f"s_add_u32 s4, s4, {WS_TS}")
    a("s_addc_u32 s5, s5, 0")
    a("s_lshl_b32 s6, s2, 3")
    a("s_add_u32 s6, s6, s3")
    a("s_lshl_b32 s6, s6, 7")
    a("s_mov_b64 exec, 1")
    a("v_mov_b32 v4, s6")
    for i in range(n):
        a(f"v_mov_b32 v6, s{70+2*i}")
        a(f"v_mov_b32 v7, s{71+2*i}")
        a(f"global_store_dwordx2 v4, v[6:7], s[4:5] offset:{8*i}")
        a("s_nop 1")

def srd(a, s, lo, hi, size):
    a(f"s_mov_b32 s{s}, s{lo}"); a(f"s_and_b32 s{s+1}, s{hi}, 0xffff")
    a(f"s_mov_b32 s{s+2}, {size}"); a(f"s_mov_b32 s{s+3}, 0x00020000")
def srd_off(a, s, lo, hi, off, size):
    a(f"s_add_u32 s{s}, s{lo}, {off}"); a(f"s_addc_u32 s{s+1}, s{hi}, 0"); a(f"s_and_b32 s{s+1}, s{s+1}, 0xffff")
    a(f"s_mov_b32 s{s+2}, {size}"); a(f"s_mov_b32 s{s+3}, 0x00020000")

def cmul(a, d, z, w, t=2):
    a(f"v_pk_mul_f32 v[{t}:{t+1}], v[{z}:{z+1}], v[{w}:{w+1}] op_sel:[0,0] op_sel_hi:[1,0]")
    a(f"v_pk_fma_f32 v[{d}:{d+1}], v[{z}:{z+1}], v[{w}:{w+1}], v[{t}:{t+1}] op_sel:[1,1,0] op_sel_hi:[0,1,1] neg_lo:[1,0,0]")

def poll(a, cfg, tag, nlanes, base_s, val2):
    a("v_and_b32 v4, 63, v0")
    a(f"v_lshl_add_u32 v4, v4, 2, {base_s}")
    a(f"s_mov_b64 exec, {hex((1 << nlanes) - 1) if nlanes < 64 else -1}")
    a(f"s_mov_b32 s21, {cfg.spin_max}")
    a(f"POLL_{tag}:")
    a(f"buffer_load_dword v5, v4, s[60:63], 0 offen {cfg.ld_flag}")
    a("s_waitcnt vmcnt(0)")
    if val2:
        a("v_cmp_ne_u32 vcc, 0x02020202, v5")
    else:
        a("v_lshrrev_b32 v6, 1, v5")
        a("v_or_b32 v5, v5, v6")
        a("v_and_b32 v5, 0x01010101, v5")
        a("v_cmp_ne_u32 vcc, 0x01010101, v5")
    a(f"s_cbranch_vccz POLL_{tag}_OK")
    a("s_sub_u32 s21, s21, 1")
    a("s_cmp_eq_u32 s21, 0")
    a(f"s_cbranch_scc1 POLL_{tag}_OK")
    a("s_sleep 1")
    a(f"s_branch POLL_{tag}")
    a(f"POLL_{tag}_OK:")
    a("s_mov_b64 exec, -1")

def set_flag(a, cfg, val):
    a("s_lshl_b32 s21, s19, 5")
    a("s_add_u32 s21, s21, s20")
    a("v_mov_b32 v4, s21")
    a(f"v_mov_b32 v5, {val}")
    a("s_mov_b64 exec, 1")
    a(f"buffer_store_byte v5, v4, s[60:63], 0 offen {cfg.st_flag}")
    a("s_mov_b64 exec, -1")

def conv_block(a, pairs, acc_of, nb, VA, VB, offA, offB, setregs, frac=0.75):
    def loads(b, st):
        A0, B0 = setregs[st]
        L = []; seen = []
        for (aa, cc) in pairs:
            if ("A", aa) not in seen: seen.append(("A", aa))
            if ("B", cc) not in seen: seen.append(("B", cc))
        for kind, i in seen:
            if kind == "A":
                L.append(f"ds_read_b64 v[{A0+4*i}:{A0+4*i+1}], v{VA} offset:{offA(i, b, 0)}")
                L.append(f"ds_read_b64 v[{A0+4*i+2}:{A0+4*i+3}], v{VA} offset:{offA(i, b, 1)}")
            else:
                L.append(f"ds_read_b128 v[{B0+4*i}:{B0+4*i+3}], v{VB} offset:{offB(i, b)}")
        return L
    for l in loads(0, 0): a(l)
    for b in range(nb):
        st = b & 1
        A0, B0 = setregs[st]
        nxt = loads(b + 1, st ^ 1) if b + 1 < nb else []
        a("s_waitcnt lgkmcnt(0)")
        k = 0
        for idx, (aa, cc) in enumerate(pairs):
            d = acc_of(aa, cc)
            a(f"v_mfma_f32_16x16x32_bf16 a[{d}:{d+3}], v[{A0+4*aa}:{A0+4*aa+3}], v[{B0+4*cc}:{B0+4*cc+3}], a[{d}:{d+3}]")
            want = -(-len(nxt) * (idx + 1) // max(1, int(len(pairs) * frac)))
            while k < min(len(nxt), want):
                a(nxt[k]); k += 1
        while k < len(nxt):
            a(nxt[k]); k += 1

def gen(cfg):
    a = Asm()
    a.lines += [".text", f".globl {KNAME}", ".p2align 8", f".type {KNAME},@function", f"{KNAME}:"]
    nt = cfg.nt_in
    a("s_cmp_ge_u32 s2, 256")
    a("s_cbranch_scc1 L_END")
    a("s_load_dwordx4 s[4:7], s[0:1], 0")
    a("s_load_dwordx4 s[8:11], s[0:1], 16")
    a("s_load_dwordx4 s[12:15], s[0:1], 120")
    a("s_load_dwordx8 s[36:43], s[0:1], 56")
    a("s_load_dwordx2 s[44:45], s[0:1], 88")
    a("s_load_dwordx2 s[46:47], s[0:1], 104")
    a("s_load_dwordx2 s[48:49], s[0:1], 32")
    a("v_lshrrev_b32 v1, 6, v0")
    a("v_and_b32 v2, 63, v0")
    a("v_readfirstlane_b32 s3, v1")
    for i in range(14): stamp(a, cfg, i)
    a("s_and_b32 s19, s2, 7")
    a("s_lshr_b32 s20, s2, 3")
    a("s_mul_i32 s17, s19, 80")
    a("s_lshr_b32 s21, s20, 1")
    a("s_mul_i32 s21, s21, 5")
    a("s_add_u32 s17, s17, s21")
    a("s_and_b32 s18, s20, 1")
    a("s_mul_i32 s21, s18, 3")
    a("s_add_u32 s16, s17, s21")
    a("s_add_u32 s17, s17, 2")
    a("v_mul_u32_u24 v3, 205, v2")
    a("v_lshrrev_b32 v3, 11, v3")
    a("v_mul_u32_u24 v4, 10, v3")
    a("v_sub_u32 v4, v2, v4")
    a("v_mul_u32_u24 v3, 1280, v3")
    a("v_lshl_add_u32 v3, v4, 4, v3")
    a("s_mul_i32 s21, s20, 81920")
    a("s_mul_i32 s22, s19, 160")
    a("s_add_u32 s21, s21, s22")
    a("v_add_u32 v3, s21, v3")
    a("v_subrev_u32 v4, 3840, v3")
    a("v_add_u32 v5, 1280, v3")
    a("s_add_u32 s22, s3, 3")
    a("s_sub_u32 s23, s3, 5")
    a("s_cmp_lt_u32 s3, 5")
    a("s_cselect_b32 s69, s22, s23")
    a("s_waitcnt lgkmcnt(0)")
    srd(a, 24, 4, 5, S*D*2)
    srd(a, 28, 6, 7, S*D*2)
    srd(a, 32, 8, 9, S*D*2)
    srd(a, 60, 12, 13, 256)
    a("s_mov_b32 s64, s14"); a("s_mov_b32 s65, s15")
    a("s_mov_b32 exec_hi, 0xff")
    def m0_for(ireg, base):
        a(f"s_mul_i32 s22, {ireg}, 640")
        a(f"s_lshr_b32 s23, {ireg}, 1")
        a("s_lshl_b32 s23, s23, 4")
        a("s_add_u32 s22, s22, s23")
        a(f"s_add_u32 m0, s22, {base}")
    a("s_add_u32 s51, s3, 8")
    m0_for("s3", L_ST + ST_K)
    a("s_sub_u32 s52, s3, 1"); a("s_mul_i32 s52, s52, 5120")
    a("s_cmp_eq_u32 s3, 0")
    a("s_cbranch_scc0 L_K0B")
    a(f"buffer_load_dwordx4 v4, s[28:31], 0 offen {nt} lds")
    a(f"s_add_u32 m0, {L_ST + ST_K + 16*640 + 8*16}, 0")
    a(f"s_mov_b32 s52, {15*5120}")
    a(f"buffer_load_dwordx4 v5, s[28:31], s52 offen {nt} lds")
    a("s_branch L_K0C")
    a("L_K0B:")
    a(f"buffer_load_dwordx4 v5, s[28:31], s52 offen {nt} lds")
    a("L_K0C:")
    m0_for("s51", L_ST + ST_K)
    a("s_sub_u32 s52, s51, 1"); a("s_mul_i32 s52, s52, 5120")
    a(f"buffer_load_dwordx4 v5, s[28:31], s52 offen {nt} lds")
    for (base, sr_) in ((ST_V, 32), (ST_Q, 24)):
        for ireg in ("s3", "s51"):
            m0_for(ireg, L_ST + base)
            a(f"s_mul_i32 s52, {ireg}, 5120")
            a(f"buffer_load_dwordx4 v3, s[{sr_}:{sr_+3}], s52 offen {nt} lds")
    a("s_mov_b64 exec, -1")
    PRM, PRM2 = 152, 156
    def unit_params(ureg, dst):
        a(f"s_mul_i32 s22, {ureg}, 171"); a("s_lshr_b32 s22, s22, 9")
        a("s_mul_i32 s23, s22, 3"); a(f"s_sub_u32 s23, {ureg}, s23")
        a("s_add_u32 s53, s16, s22"); a("s_cmp_eq_u32 s22, 2"); a("s_cselect_b32 s53, s17, s53")
        a("s_mul_i32 s22, s53, 384"); a("s_lshl_b32 s23, s23, 7"); a("s_add_u32 s22, s22, s23")
        a("v_lshl_add_u32 v6, v2, 1, s22")
        for i in range(4):
            srd(a, 56, 36 + 2*i, 37 + 2*i, D*192*2)
            a(f"buffer_load_ushort v{dst+i}, v6, s[56:59], 0 offen")
        a("s_lshl_b32 s22, s53, 1"); a("v_mov_b32 v6, s22")
        srd(a, 56, 44, 45, D*2)
        a(f"buffer_load_ushort v{dst+8}, v6, s[56:59], 0 offen")
    unit_params("s69", PRM)
    a("s_cmp_ge_u32 s3, 5")
    a("s_cbranch_scc1 L_KW_INIT")
    srd(a, 36, 10, 11, D*8)
    srd(a, 40, 46, 47, D*2)
    srd_off(a, 44, 64, 65, WS_X, 1280*XROW)
    srd_off(a, 48, 64, 65, WS_G, 16384)
    a("v_lshrrev_b32 v11, 3, v0")
    a("v_and_b32 v13, 7, v0")
    a("s_mul_i32 s23, s19, 640")
    a("v_lshl_add_u32 v12, v11, 4, s23")
    a("buffer_load_dwordx4 v[16:19], v12, s[36:39], 0 offen")
    a("s_and_b32 s23, s3, 3"); a("s_lshl_b32 s23, s23, 1"); a("s_lshl_b32 s52, s2, 3"); a("s_add_u32 s23, s23, s52")
    a("v_lshrrev_b32 v12, 5, v2")
    a("v_add_u32 v12, s23, v12")
    a("v_and_b32 v14, 31, v2")
    a("v_lshlrev_b32 v14, 4, v14")
    a("v_mul_u32_u24 v15, 1280, v12")
    a("v_add_u32 v15, v15, v14")
    a("v_add_u32 v20, 1024, v15")
    a("v_cmp_gt_u32 vcc, 256, v14")
    a("v_mov_b32 v21, -1")
    a("v_cndmask_b32 v20, v21, v20, vcc")
    a("buffer_load_dwordx4 v[24:27], v15, s[24:27], 0 offen")
    a("buffer_load_dwordx4 v[28:31], v15, s[24:27], 0 offen offset:512")
    a("buffer_load_dwordx4 v[32:35], v20, s[24:27], 0 offen")
    a("buffer_load_dwordx4 v[36:39], v14, s[40:43], 0 offen")
    a("buffer_load_dwordx4 v[40:43], v14, s[40:43], 0 offen offset:512")
    a("buffer_load_dwordx4 v[44:47], v14, s[40:43], 0 offen offset:1024")
    a("v_mul_u32_u24 v21, 1296, v13")
    a("v_lshl_add_u32 v21, v11, 2, v21")
    a(f"v_add_u32 v21, {L_ST}, v21")
    a("s_mul_i32 s23, s19, 80")
    a("v_lshl_add_u32 v22, v11, 1, s23")
    a(f"s_movk_i32 s52, {2*XROW}")
    a("v_mul_lo_u32 v22, v22, s52")
    a("s_lshl_b32 s53, s20, 7")
    a("s_sub_u32 s53, 4080, s53")
    a("v_lshlrev_b32 v23, 4, v13")
    a("v_sub_u32 v23, s53, v23")
    a("v_add_u32 v22, v22, v23")
    stamp(a, cfg, 1)
    a("s_waitcnt vmcnt(12)")
    a("s_barrier")
    stamp(a, cfg, 2)
    KR, VR, QR = 48, 60, 68
    for r in range(11):
        a(f"ds_read_b32 v{KR+r}, v21 offset:{ST_K + r*160 + (r >> 3)*16}")
    for r in range(8):
        a(f"ds_read_b32 v{VR+r}, v21 offset:{ST_V + r*160}")
    for r in range(8):
        a(f"ds_read_b32 v{QR+r}, v21 offset:{ST_Q + r*160}")
    a("s_waitcnt vmcnt(6) lgkmcnt(0)")
    a("s_barrier")
    W = 80
    a(f"v_lshlrev_b32 v{W+0}, 16, v16");  a(f"v_lshlrev_b32 v{W+1}, 16, v18")
    a(f"v_and_b32 v{W+2}, 0xffff0000, v16"); a(f"v_and_b32 v{W+3}, 0xffff0000, v18")
    a(f"v_lshlrev_b32 v{W+4}, 16, v17");  a(f"v_lshlrev_b32 v{W+5}, 16, v19")
    a(f"v_and_b32 v{W+6}, 0xffff0000, v17"); a(f"v_and_b32 v{W+7}, 0xffff0000, v19")
    K2, V2, KV, OUT = 88, 110, 128, 144
    for r in range(11):
        a(f"v_lshlrev_b32 v{K2+2*r}, 16, v{KR+r}"); a(f"v_and_b32 v{K2+2*r+1}, 0xffff0000, v{KR+r}")
    for r in range(8):
        a(f"v_lshlrev_b32 v{V2+2*r}, 16, v{VR+r}"); a(f"v_and_b32 v{V2+2*r+1}, 0xffff0000, v{VR+r}")
    def pk(op, d, *srcs): a(f"{op} v[{d}:{d+1}], " + ", ".join(f"v[{s}:{s+1}]" for s in srcs))
    for r in range(8):
        d = KV + 2*r
        pk("v_pk_mul_f32", d, K2+2*(r+0), W+6)
        pk("v_pk_fma_f32", d, K2+2*(r+1), W+4, d)
        pk("v_pk_fma_f32", d, K2+2*(r+2), W+2, d)
        pk("v_pk_fma_f32", d, K2+2*(r+3), W+0, d)
        pk("v_pk_mul_f32", d, d, V2+2*r)
    a("s_mov_b32 s54, 0x05040100"); a("s_mov_b32 s55, 0x07060302")
    O2 = 88
    for e in range(2):
        for i in range(4):
            a(f"v_cvt_pk_bf16_f32 v{O2+8*e+i}, v{KV+2*(7-2*i)+e}, v{KV+2*(6-2*i)+e}")
        for i in range(4):
            a(f"v_perm_b32 v{O2+8*e+4+i}, v{QR+6-2*i}, v{QR+7-2*i}, s{54+e}")
    st = cfg.st_x
    a(f"buffer_store_dwordx4 v[{O2}:{O2+3}], v22, s[44:47], 0 offen {st}")
    a(f"s_movk_i32 s52, {XROW}")
    a(f"buffer_store_dwordx4 v[{O2+4}:{O2+7}], v22, s[44:47], s52 offen {st}")
    a(f"s_movk_i32 s53, {2*XROW}")
    a(f"buffer_store_dwordx4 v[{O2+8}:{O2+11}], v22, s[44:47], s53 offen {st}")
    a(f"s_movk_i32 s56, {3*XROW}")
    a(f"buffer_store_dwordx4 v[{O2+12}:{O2+15}], v22, s[44:47], s56 offen {st}")
    stamp(a, cfg, 3)
    a("s_waitcnt vmcnt(4)")
    a("s_cmp_ge_u32 s3, 4")
    a("s_cbranch_scc1 L_GEN_PRE")
    a("v_mov_b32 v4, 0")
    a("s_mov_b32 s52, 0x3f803f80")
    for c in range(3):
        for i in range(4):
            xq = 24 + 4*c + i; wq = 36 + 4*c + i
            a(f"v_lshlrev_b32 v6, 16, v{xq}"); a(f"v_and_b32 v7, 0xffff0000, v{xq}")
            a(f"v_lshlrev_b32 v8, 16, v{wq}"); a(f"v_and_b32 v9, 0xffff0000, v{wq}")
            a("v_pk_mul_f32 v[6:7], v[6:7], v[8:9]")
            a("v_cvt_pk_bf16_f32 v6, v6, v7")
            a("v_dot2_f32_bf16 v4, v6, s52, v4")
    for sh in (1, 2, 4, 8):
        a(f"v_add_f32_dpp v4, v4, v4 row_shr:{sh} row_mask:0xf bank_mask:0xf bound_ctrl:0")
    a("v_add_f32_dpp v4, v4, v4 row_bcast:15 row_mask:0xa bank_mask:0xf")
    a("v_cvt_pk_bf16_f32 v4, v4, v4"); a("v_lshlrev_b32 v4, 16, v4")
    a("v_mul_f32 v5, 0xbfb8aa3b, v4"); a("v_exp_f32 v5, v5"); a("v_add_f32 v5, 1.0, v5"); a("v_rcp_f32 v5, v5")
    a("v_cvt_pk_bf16_f32 v5, v5, v5"); a("v_lshlrev_b32 v5, 16, v5")
    a("v_sub_f32 v6, 1.0, v5"); a("v_cvt_pk_bf16_f32 v6, v6, v6"); a("v_lshlrev_b32 v6, 16, v6")
    a("v_lshlrev_b32 v7, 2, v12")
    a("v_and_b32 v8, 31, v2")
    a("v_cmp_eq_u32 vcc, 31, v8")
    a("s_and_saveexec_b64 s[52:53], vcc")
    a(f"buffer_store_dword v5, v7, s[48:51], 0 offen {st}")
    a("s_movk_i32 s54, 8192")
    a(f"buffer_store_dword v6, v7, s[48:51], s54 offen {st}")
    a("s_mov_b64 exec, -1")
    a("s_branch L_GEN_PRE")
    a("L_KW_INIT:")
    a("s_cmp_eq_u32 s3, 5")
    a("s_cbranch_scc0 L_KW_NO2")
    a("s_mov_b32 s51, 8")
    unit_params("s51", PRM2)
    a("L_KW_NO2:")
    a("s_sub_u32 s22, s3, 5")
    a("s_add_u32 s53, s16, s22"); a("s_cmp_eq_u32 s22, 2"); a("s_cselect_b32 s53, s17, s53")
    a("s_lshl_b32 s23, s53, 12")
    srd_off(a, 56, 48, 49, "s23", 4096)
    a(f"s_mul_i32 s22, s22, {2*KARR}")
    a(f"s_add_u32 s22, s22, {L_K}")
    a("v_lshlrev_b32 v3, 4, v2")
    for q in range(4):
        a(f"s_add_u32 m0, s22, {480 + 1024*q}")
        a(f"s_movk_i32 s23, {1024*q}")
        a(f"buffer_load_dwordx4 v3, s[56:59], s23 offen {nt} lds")
    for i in range(4): a(f"v_mov_b32 v{8+i}, 0")
    a("v_add_u32 v6, s22, v3")
    a("s_mov_b64 exec, 0x3fffffff")
    a("ds_write_b128 v6, v[8:11]")
    a(f"ds_write_b128 v6, v[8:11] offset:{KARR}")
    a("s_mov_b64 exec, -1")
    stamp(a, cfg, 1)
    a("s_cmp_eq_u32 s3, 5")
    a("s_cbranch_scc0 L_KW_W9")
    a("s_waitcnt vmcnt(14)")
    a("s_branch L_KW_W")
    a("L_KW_W9:")
    a("s_waitcnt vmcnt(9)")
    a("L_KW_W:")
    a("s_barrier")
    stamp(a, cfg, 2)
    a("s_barrier")
    a("L_GEN_PRE:")
    a("v_and_b32 v1, 63, v0")
    a("L_GEN:")
    a(f"s_mul_i32 s21, s69, {SLOT}")
    a(f"s_add_u32 s22, s21, {L_ST - 7*SLOT}")
    a("s_cmp_ge_u32 s69, 7")
    a("s_cselect_b32 s21, s22, s21")
    AV = 16
    a("v_lshlrev_b32 v7, 2, v1")
    for c in range(16):
        a(f"v_xor_b32 v{AV+c}, {c << 4}, v7")
        a(f"v_add_u32 v{AV+c}, s21, v{AV+c}")
    a("s_cmp_lt_u32 s3, 5")
    a("s_cbranch_scc1 L_GEN_T")
    a("s_waitcnt vmcnt(4)")
    a("L_GEN_T:")
    stamp(a, cfg, 4)
    P = PRM
    a(f"v_lshlrev_b32 v6, 16, v{P+8}"); a("v_mul_f32 v6, 0x3fb8aa3b, v6"); a("v_exp_f32 v6, v6")
    a("v_cvt_pk_bf16_f32 v6, v6, v6"); a("v_lshlrev_b32 v6, 16, v6")
    a("v_add_f32 v7, v6, v6")
    E1, E2, E4, E8, E256, E128, Z, Z2, C = 64, 66, 68, 70, 72, 74, 76, 78, 80
    Q1, Q2, Q3 = 82, 84, 86
    def store_pair(rowA, za, rowB, zb, neg):
        n = "-" if neg else ""
        a(f"v_cvt_pk_bf16_f32 v12, v{za}, {n}v{za+1}")
        if rowB is None:
            a(f"ds_write_b32 v{AV + (rowA & 15)}, v12 offset:{rowA*256}")
        else:
            assert (rowA & 15) == (rowB & 15)
            a(f"v_cvt_pk_bf16_f32 v13, v{zb}, {n}v{zb+1}")
            a(f"ds_write2st64_b32 v{AV + (rowA & 15)}, v12, v13 offset0:{rowA} offset1:{rowB}")
    def cexp(dst, h):
        if h == 1:
            a("v_exp_f32 v8, v14"); a("v_fract_f32 v9, v15")
        else:
            a(f"v_mul_f32 v8, {hexf(h)}, v14"); a(f"v_mul_f32 v9, {hexf(h)}, v15")
            a("v_exp_f32 v8, v8"); a("v_fract_f32 v9, v9")
        a(f"v_cos_f32 v{dst}, v9"); a(f"v_sin_f32 v{dst+1}, v9")
        a(f"v_mul_f32 v{dst}, v8, v{dst}"); a(f"v_mul_f32 v{dst+1}, v8, v{dst+1}")
    a(f"v_lshlrev_b32 v8, 16, v{P}"); a("v_mul_f32 v8, 0x3fb8aa3b, v8"); a("v_exp_f32 v8, v8")
    a("v_cvt_pk_bf16_f32 v8, v8, v8"); a("v_lshlrev_b32 v8, 16, v8")
    a("v_mul_f32 v14, v8, v6"); a("v_mul_f32 v14, 0xbfb8aa3b, v14")
    a(f"v_lshlrev_b32 v15, 16, v{P+1}"); a("v_mul_f32 v15, v15, v6"); a("v_mul_f32 v15, 0.15915494, v15")
    a(f"v_lshlrev_b32 v{C}, 16, v{P+2}"); a(f"v_lshlrev_b32 v{C+1}, 16, v{P+3}")
    a(f"v_mul_f32 v{C}, v{C}, v7"); a(f"v_mul_f32 v{C+1}, v{C+1}, v7")
    cexp(E1, 1); cexp(E8, 8); cexp(E256, 256); cexp(E128, 128)
    cmul(a, E2, E1, E1); cmul(a, E4, E2, E2)
    a(f"v_mov_b32 v{Z}, 1.0"); a(f"v_mov_b32 v{Z+1}, 0")
    store_pair(0, Z, 16, E128, False)
    cmul(a, Z2, E128, E8)
    store_pair(1, E8, 17, Z2, False)
    cmul(a, Z, E8, E8); cmul(a, Z2, Z2, E8, 4)
    store_pair(2, Z, 18, Z2, False)
    for lam in range(3, 16):
        cmul(a, Z, Z, E8); cmul(a, Z2, Z2, E8, 4)
        store_pair(lam, Z, lam + 16, Z2, False)
    cmul(a, Q1, C, E256); cmul(a, Q2, Q1, E256); cmul(a, Q3, Q2, E256)
    cmul(a, Z, Q1, E2)
    store_pair(32+0, C, 32+16, Z, True)
    cmul(a, Z2, C, E1); cmul(a, Z, Z, E2, 4)
    store_pair(32+1, Z2, 32+17, Z, True)
    cmul(a, Z2, Z2, E1); cmul(a, Z, Z, E2, 4)
    store_pair(32+2, Z2, 32+18, Z, True)
    cmul(a, Z2, Z2, E1); cmul(a, Z, Q2, E4, 4)
    store_pair(32+3, Z2, 32+19, Z, True)
    cmul(a, Z2, Z2, E1); cmul(a, Z, Q3, E4, 4)
    store_pair(32+4, Z2, 32+20, Z, True)
    cmul(a, Z, Q3, E256, 4)
    for k in (5, 6, 7):
        cmul(a, Z2, Z2, E1)
        store_pair(32+k, Z2, None, None, True)
    store_pair(32+8, Q1, None, None, True)
    store_pair(32+9, Q2, None, None, True)
    store_pair(32+10, Q3, None, None, True)
    store_pair(32+11, Z, None, None, True)
    for k in (12, 13, 14, 15):
        cmul(a, Z, Z, E256)
        store_pair(32+k, Z, None, None, True)
    a("s_cmp_eq_u32 s3, 5")
    a("s_cbranch_scc0 L_GEN_DONE")
    a("s_cmp_eq_u32 s69, 8")
    a("s_cbranch_scc1 L_GEN_DONE")
    a("s_mov_b32 s69, 8")
    for i in range(4): a(f"v_mov_b32 v{PRM+i}, v{PRM2+i}")
    a(f"v_mov_b32 v{PRM+8}, v{PRM2+8}")
    a("s_branch L_GEN")
    a("L_GEN_DONE:")
    stamp(a, cfg, 5)
    a("s_waitcnt vmcnt(0) lgkmcnt(0)")
    a("s_barrier")
    stamp(a, cfg, 6)
    a("s_cmp_eq_u32 s3, 7")
    a("s_cbranch_scc0 L_NOT7")
    set_flag(a, cfg, 1)
    a("s_lshl_b32 s22, s19, 5")
    poll(a, cfg, "A", 8, "s22", False)
    a("s_branch L_B3")
    a("L_NOT7:")
    a("s_cmp_ge_u32 s3, 3")
    a("s_cbranch_scc1 L_B3")
    a(f"s_mul_i32 s21, s3, {3*SLOT}")
    RA = 32
    a("v_and_b32 v8, 31, v1"); a("v_lshrrev_b32 v9, 5, v1"); a("v_min_u32 v10, 20, v8")
    RX, RY = 32, 40
    for (R, rowreg, rowoff) in ((RX, 10, 32), (RY, 8, 0)):
        a(f"v_and_b32 v11, 15, v{rowreg}"); a("v_xor_b32 v11, v11, v9"); a("v_lshlrev_b32 v11, 4, v11")
        a(f"v_lshl_add_u32 v11, v{rowreg}, 8, v11")
        if rowoff: a(f"v_add_u32 v11, {rowoff*256}, v11")
        for i in range(8):
            a(f"v_xor_b32 v{R+i}, {32*i}, v11")
    ACC = 48
    for i in range(16): a(f"v_mov_b32 v{ACC+i}, 0")
    OA, OB = 88, 120
    a("s_mov_b32 s22, 0")
    a("L_FIN_LOOP:")
    a("s_mul_i32 s23, s3, 3"); a("s_add_u32 s23, s23, s22")
    a(f"s_mul_i32 s52, s23, {SLOT}")
    a(f"s_add_u32 s53, s52, {L_ST - 7*SLOT}")
    a("s_cmp_ge_u32 s23, 7")
    a("s_cselect_b32 s52, s53, s52")
    for i in range(8):
        a(f"v_add_u32 v4, s52, v{RX+i}"); a(f"v_add_u32 v5, s52, v{RY+i}")
        a(f"ds_read_b128 v[{OA+4*i}:{OA+4*i+3}], v4")
        a(f"ds_read_b128 v[{OB+4*i}:{OB+4*i+3}], v5")
    for i in range(8):
        a(f"s_waitcnt lgkmcnt({14-2*i})")
        a(f"v_mfma_f32_32x32x16_bf16 v[{ACC}:{ACC+15}], v[{OA+4*i}:{OA+4*i+3}], v[{OB+4*i}:{OB+4*i+3}], v[{ACC}:{ACC+15}]")
    a("s_add_u32 s22, s22, 1"); a("s_cmp_lt_u32 s22, 3")
    a("s_cbranch_scc1 L_FIN_LOOP")
    a("v_lshlrev_b32 v10, 2, v8"); a("v_lshl_add_u32 v10, v9, 9, v10"); a("v_add_u32 v10, s21, v10")
    a("s_nop 4")
    for r in range(12):
        row = 8*(r >> 2) + (r & 3)
        a(f"v_cvt_pk_bf16_f32 v12, v{ACC+r}, v{ACC+r}")
        a(f"ds_write_b32 v10, v12 offset:{row*128}")
    a(f"s_mul_i32 s22, s3, {2*KARR}"); a(f"s_add_u32 s22, s22, {L_K + KARR + 480}")
    a("v_lshlrev_b32 v11, 4, v1"); a("v_add_u32 v11, s22, v11")
    a("s_mov_b32 s52, 0x0000ffff")
    a("v_lshlrev_b32 v13, 2, v8"); a("v_add_u32 v13, s21, v13")
    a("v_lshlrev_b32 v14, 2, v1"); a("v_add_u32 v14, s21, v14")
    a("s_waitcnt lgkmcnt(0)")
    T = 64
    for r in range(8): a(f"ds_read_b32 v{T+r}, v13 offset:{r*128}")
    a(f"ds_read_b32 v{T+8}, v13 offset:{8*128}")
    a(f"ds_read_b32 v{T+9}, v13 offset:{16*128}")
    a(f"ds_read_b32 v{T+10}, v13 offset:{17*128}")
    a(f"ds_read_b32 v{T+11}, v13 offset:{18*128}")
    a(f"ds_read_b32 v{T+12}, v13 offset:{8*128+4}")
    a(f"ds_read_b32 v{T+13}, v14 offset:{9*128}")
    a(f"ds_read_b32 v{T+14}, v14 offset:{19*128}")
    a("s_waitcnt lgkmcnt(4)")
    a(f"ds_read_b32 v{T+15}, v14 offset:{9*128+4}")
    a(f"ds_read_b32 v{T+16}, v14 offset:{11*128}")
    a(f"ds_read_b32 v{T+17}, v14 offset:{11*128+4}")
    a(f"ds_read_b32 v{T+18}, v14 offset:{13*128}")
    a(f"ds_read_b32 v{T+19}, v14 offset:{13*128+4}")
    def mix(d, lo, hi): a(f"v_bfi_b32 v{d}, s52, v{lo}, v{hi}")
    O = 88
    a("s_waitcnt lgkmcnt(0)")
    for i in range(4): mix(O+i, T+2*i, T+2*i+1)
    a(f"v_mov_b32 v{O+4}, v{T+8}"); mix(O+5, T+9, T+10); a(f"v_mov_b32 v{O+6}, v{T+10}"); mix(O+7, T+11, T+12)
    a("v_cmp_gt_u32 vcc, 32, v1")
    for i in range(4): a(f"v_cndmask_b32 v{O+i}, v{O+4+i}, v{O+i}, vcc")
    a(f"ds_write_b128 v11, v[{O}:{O+3}]")
    a(f"v_mov_b32 v{O+8}, v{T+13}"); mix(O+9, T+13, T+14); a(f"v_mov_b32 v{O+10}, v{T+14}"); a(f"v_mov_b32 v{O+11}, v{T+15}")
    a(f"ds_write_b128 v11, v[{O+8}:{O+11}] offset:1024")
    a("v_and_b32 v15, 1, v1"); a("v_cmp_eq_u32 vcc, 1, v15")
    for k in range(2):
        s0, s1 = T+16+2*k, T+17+2*k
        d = O + 12 + 4*k
        a(f"v_mov_b32 v{d}, v{s0}"); a(f"v_mov_b32 v{d+1}, v{s0}"); mix(d+2, s0, s1)
        a(f"v_cndmask_b32 v{d+2}, v{d+2}, v{s1}, vcc"); a(f"v_mov_b32 v{d+3}, v{s1}")
        a(f"ds_write_b128 v11, v[{d}:{d+3}] offset:{2048+1024*k}")
    a("s_waitcnt lgkmcnt(0)")
    a("L_B3:")
    stamp(a, cfg, 7)
    a("s_barrier")
    stamp(a, cfg, 8)
    a("v_and_b32 v2, 63, v0")
    a("s_cmp_ge_u32 s3, 6")
    a("s_cbranch_scc1 L_GLOAD")
    a("s_lshr_b32 s21, s3, 1"); a("s_add_u32 s22, s16, s21"); a("s_cmp_ge_u32 s3, 4"); a("s_cselect_b32 s22, s17, s22")
    a("s_and_b32 s23, s3, 1")
    a("s_lshl_b32 s52, s22, 1"); a("s_add_u32 s52, s52, s23"); a(f"s_mul_i32 s52, s52, {XROW}")
    srd_off(a, 24, 64, 65, "s52", 4096)
    a(f"s_mul_i32 s34, s3, {XARR}")
    a(f"s_mul_i32 s35, s3, {KARR}"); a(f"s_add_u32 s35, s35, {L_K}")
    a("v_lshlrev_b32 v3, 4, v2"); a("v_add_u32 v4, 4, v3")
    ld = cfg.ld_x
    W = 64
    for q in range(4):
        a(f"buffer_load_dwordx4 v[{W+8*q}:{W+8*q+3}], v3, s[24:27], 0 offen offset:{1024*q} {ld}")
        a(f"buffer_load_dwordx4 v[{W+8*q+4}:{W+8*q+7}], v3, s[24:27], 0 offen offset:{1024*q+16} {ld}")
    for cp, vreg in ((0, 3), (2, 4)):
        for q in range(4):
            a(f"s_add_u32 m0, s34, {cp*XCP + 1024*q}")
            a(f"s_movk_i32 s36, {1024*q}")
            a(f"buffer_load_dwordx4 v{vreg}, s[24:27], s36 offen {ld} lds")
    for i in range(4): a(f"v_mov_b32 v{8+i}, 0")
    a("v_lshrrev_b32 v5, 1, v2"); a(f"v_mul_u32_u24 v5, {XCP}, v5"); a("v_and_b32 v6, 1, v2")
    a("v_lshl_add_u32 v5, v6, 4, v5"); a("v_add_u32 v5, s34, v5")
    a("s_mov_b64 exec, 0xff")
    a("ds_write_b128 v5, v[8:11] offset:4096")
    a("s_mov_b64 exec, -1")
    a("v_and_b32 v8, 15, v2"); a("v_lshrrev_b32 v9, 4, v2")
    a("v_sub_u32 v10, 3, v8"); a("v_and_b32 v10, 3, v10")
    a("v_lshlrev_b32 v11, 3, v9"); a("v_sub_u32 v11, v11, v8"); a("v_add_u32 v11, 2031, v11"); a("v_sub_u32 v11, v11, v10")
    a("v_lshlrev_b32 v11, 1, v11"); a(f"v_mul_u32_u24 v12, {XCP}, v10"); a("v_add_u32 v11, v11, v12")
    a("v_subrev_u32 v11, 4032, v11")
    a("v_lshlrev_b32 v12, 5, v8"); a("v_lshl_add_u32 v12, v9, 4, v12")
    VA, VB, VA2, VB2 = 13, 14, 15, 16
    a(f"v_add_u32 v{VA}, s34, v11"); a(f"v_add_u32 v{VB}, s35, v12")
    a("s_add_u32 s36, s23, 4"); a(f"s_mul_i32 s37, s36, {XARR}"); a(f"s_mul_i32 s38, s36, {KARR}"); a(f"s_add_u32 s38, s38, {L_K}")
    a("s_lshr_b32 s39, s3, 1"); a("s_sub_u32 s39, 1, s39"); a("s_lshl_b32 s39, s39, 8")
    a("s_add_u32 s40, s37, s39"); a("s_add_u32 s41, s38, s39")
    a(f"v_add_u32 v{VA2}, s40, v11"); a(f"v_add_u32 v{VB2}, s41, v12")
    a("v_lshlrev_b32 v17, 5, v8"); a("v_lshl_add_u32 v17, v9, 3, v17")
    for i in range(48): a(f"v_accvgpr_write_b32 a{i}, 0")
    a("v_add_u32 v5, s34, v3")
    a("s_waitcnt vmcnt(8)")
    stamp(a, cfg, 9)
    for q in range(4):
        w = W + 8*q
        for j in range(4): a(f"v_alignbit_b32 v{96+j}, v{w+j+1}, v{w+j}, 16")
        a(f"ds_write_b128 v5, v[96:99] offset:{1*XCP + 1024*q}")
        for j in range(4): a(f"v_alignbit_b32 v{100+j}, v{w+j+2}, v{w+j+1}, 16")
        a(f"ds_write_b128 v5, v[100:103] offset:{3*XCP + 1024*q}")
    a("s_waitcnt vmcnt(0) lgkmcnt(0)")
    stamp(a, cfg, 10)
    a("s_cmp_ge_u32 s3, 4")
    a("s_cbranch_scc1 L_HELP")
    sets = [(20, 52), (84, 116)]
    pairs = [(aa, cc) for aa in range(8) for cc in range(8 - aa)]
    conv_block(a, pairs, lambda aa, cc: 4*(aa+cc), 8, VA, VB,
               lambda i, b, h: 512*(7-i) + 64*(7-b) + 8*h, lambda c, b: 512*c + 64*(7-b), sets)
    stamp(a, cfg, 11)
    a("v_add_u32 v18, s35, v17")
    for p in range(8):
        for r in range(4): a(f"v_accvgpr_read_b32 v{20+r}, a{4*p+r}")
        a("v_cvt_pk_bf16_f32 v24, v20, v21"); a("v_cvt_pk_bf16_f32 v25, v22, v23")
        a(f"ds_write_b64 v18, v[24:25] offset:{512*p}")
    a("s_barrier")
    a("s_cmp_eq_u32 s18, 0")
    a("s_cbranch_scc0 L_C2_E1")
    for e in range(2):
        if e == 1: a("L_C2_E1:")
        ps = PSET[e]
        prs = [(aa, cc) for aa in range(8) for cc in range(8 - aa) if aa + cc in ps]
        conv_block(a, prs, lambda aa, cc: 32 + 4*ps.index(aa+cc), 4, VA2, VB2,
                   lambda i, b, h: 512*(7-i) + 64*(3-b) + 8*h, lambda c, b: 512*c + 64*(3-b), sets)
        if e == 0: a("s_branch L_C2_DONE")
    a("L_C2_DONE:")
    for i in range(16): a(f"v_accvgpr_read_b32 v{20+i}, a{32+i}")
    a("s_and_b32 s36, s3, 1"); a("s_add_u32 s36, s36, 2"); a(f"s_mul_i32 s36, s36, {XARR}"); a(f"s_add_u32 s36, s36, {XCP}")
    a("v_add_u32 v19, s36, v3")
    a("s_cmp_lt_u32 s3, 2")
    a("s_cbranch_scc1 L_RED_WAIT")
    for i in range(4): a(f"ds_write_b128 v19, v[{20+4*i}:{23+4*i}] offset:{1024*i}")
    a("s_waitcnt lgkmcnt(0)")
    a("s_barrier")
    a("s_branch L_C3")
    a("L_RED_WAIT:")
    a("s_barrier")
    for i in range(4): a(f"ds_read_b128 v[{36+4*i}:{39+4*i}], v19 offset:{1024*i}")
    a("v_add_u32 v18, s38, v17")
    a("s_lshl_b32 s36, s18, 9")
    a("s_waitcnt lgkmcnt(0)")
    for ti in range(4):
        for r in range(4): a(f"v_add_f32 v{20+4*ti+r}, v{20+4*ti+r}, v{36+4*ti+r}")
        a(f"v_cvt_pk_bf16_f32 v52, v{20+4*ti}, v{21+4*ti}"); a(f"v_cvt_pk_bf16_f32 v53, v{22+4*ti}, v{23+4*ti}")
        if ti & 1:
            a("v_subrev_u32 v54, s36, v18"); a(f"ds_write_b64 v54, v[52:53] offset:{1024*ti + 512}")
        else:
            a("v_add_u32 v54, s36, v18"); a(f"ds_write_b64 v54, v[52:53] offset:{1024*ti}")
    a("s_branch L_C3")
    a("L_GLOAD:")
    a("s_mov_b32 s22, 0")
    poll(a, cfg, "G", 64, "s22", False)
    srd_off(a, 24, 64, 65, WS_G, 16384)
    a("v_lshlrev_b32 v3, 4, v2")
    a("s_sub_u32 s36, s3, 6"); a("s_lshl_b32 s36, s36, 13")
    for q in range(8):
        a(f"s_add_u32 s37, s36, {1024*q}"); a(f"s_add_u32 m0, s37, {L_G}"); a("s_nop 0")
        a(f"buffer_load_dwordx4 v3, s[24:27], s37 offen {cfg.ld_x} lds")
    a("s_waitcnt vmcnt(0)")
    a("L_HELP:")
    a("s_barrier")
    a("s_barrier")
    a("L_C3:")
    a("s_waitcnt lgkmcnt(0)")
    a("s_barrier")
    stamp(a, cfg, 12)
    srd_off(a, 24, 64, 65, WS_OT, D*XROW)
    a("s_load_dwordx2 s[6:7], s[0:1], 40")
    a("s_load_dwordx2 s[8:9], s[0:1], 96")
    a("s_load_dwordx2 s[10:11], s[0:1], 112")
    a("s_waitcnt lgkmcnt(0)")
    srd(a, 28, 6, 7, D*2); srd(a, 32, 8, 9, D*2)
    def epi(s_ch, s_arr, v_t0):
        a(f"s_lshl_b32 s44, s{s_ch}, 1"); a("v_mov_b32 v4, s44")
        a("buffer_load_ushort v5, v4, s[28:31], 0 offen"); a("buffer_load_ushort v6, v4, s[32:35], 0 offen")
        a(f"s_mul_i32 s45, s{s_arr}, {XARR}"); a(f"s_mul_i32 s46, s{s_arr}, {KARR}"); a(f"s_add_u32 s46, s46, {L_K}")
        a(f"v_lshlrev_b32 v7, 1, v{v_t0}"); a("v_add_u32 v8, s46, v7")
        a("v_sub_u32 v9, 4080, v7"); a("v_add_u32 v9, s45, v9")
        a(f"v_lshlrev_b32 v10, 2, v{v_t0}"); a(f"v_add_u32 v10, {L_G}, v10")
        a("ds_read_b128 v[20:23], v8"); a(f"ds_read_b128 v[24:27], v8 offset:{KARR}")
        a("ds_read_b128 v[28:31], v9"); a(f"ds_read_b128 v[32:35], v9 offset:{XARR}")
        a("ds_read_b128 v[36:39], v10"); a("ds_read_b128 v[40:43], v10 offset:16")
        a("ds_read_b128 v[44:47], v10 offset:8192"); a("ds_read_b128 v[48:51], v10 offset:8208")
        a(f"s_mul_i32 s47, s{s_ch}, {XROW}"); a("v_add_u32 v7, s47, v7")
        a("s_waitcnt vmcnt(0)")
        a("v_lshlrev_b32 v12, 16, v5"); a("v_mov_b32 v13, v12"); a("v_lshlrev_b32 v14, 16, v6"); a("v_mov_b32 v15, v14")
        a("s_waitcnt lgkmcnt(0)")
        for i in range(4):
            a(f"v_lshlrev_b32 v52, 16, v{20+i}"); a(f"v_and_b32 v53, 0xffff0000, v{20+i}")
            a(f"v_lshlrev_b32 v54, 16, v{24+i}"); a(f"v_and_b32 v55, 0xffff0000, v{24+i}")
            a(f"v_and_b32 v56, 0xffff0000, v{28+3-i}"); a(f"v_lshlrev_b32 v57, 16, v{28+3-i}")
            a(f"v_and_b32 v58, 0xffff0000, v{32+3-i}"); a(f"v_lshlrev_b32 v59, 16, v{32+3-i}")
            a("v_pk_fma_f32 v[52:53], v[56:57], v[12:13], v[52:53]")
            a("v_pk_fma_f32 v[54:55], v[58:59], v[14:15], v[54:55]")
            a("v_pk_mul_f32 v[52:53], v[52:53], v[58:59]")
            a(f"v_pk_mul_f32 v[52:53], v[52:53], v[{36+2*i}:{37+2*i}]")
            a(f"v_pk_fma_f32 v[52:53], v[54:55], v[{44+2*i}:{45+2*i}], v[52:53]")
            a(f"v_cvt_pk_bf16_f32 v{60+i}, v52, v53")
        a(f"buffer_store_dwordx4 v[60:63], v7, s[24:27], 0 offen {cfg.st_ot}")
    a("s_lshr_b32 s42, s3, 2"); a("s_add_u32 s43, s16, s42"); a("s_lshl_b32 s42, s42, 1")
    a("v_and_b32 v1, 255, v0"); a("v_lshlrev_b32 v1, 3, v1")
    epi(43, 42, 1)
    a("s_cmp_ge_u32 s3, 2")
    a("s_cbranch_scc1 L_EPI_DONE")
    a("v_lshrrev_b32 v1, 5, v0"); a("v_and_b32 v2, 1, v1"); a("v_xor_b32 v2, s18, v2")
    a("v_lshl_add_u32 v1, v1, 1, v2"); a("v_lshlrev_b32 v1, 8, v1"); a("v_and_b32 v2, 31, v0"); a("v_lshl_add_u32 v1, v2, 3, v1")
    a("s_mov_b32 s42, 4")
    epi(17, 42, 1)
    a("L_EPI_DONE:")
    stamp(a, cfg, 13)
    a("s_waitcnt vmcnt(0)")
    a("s_barrier")
    a("s_cmp_eq_u32 s3, 7")
    a("s_cbranch_scc0 L_D2")
    set_flag(a, cfg, 2)
    a("s_lshl_b32 s22, s19, 5")
    poll(a, cfg, "B", 8, "s22", True)
    a("L_D2:")
    a("s_barrier")
    if cfg.stamps: a(f"{cfg.clk} s[66:67]")
    a("v_and_b32 v2, 63, v0")
    a("v_lshrrev_b32 v3, 3, v2"); a(f"v_mul_u32_u24 v3, {XROW}, v3"); a("v_and_b32 v4, 7, v2"); a("v_lshl_add_u32 v3, v4, 4, v3")
    a(f"s_mul_i32 s22, s19, {80*XROW}"); a("s_lshl_b32 s23, s20, 7"); a("s_add_u32 s22, s22, s23"); a("v_add_u32 v3, s22, v3")
    srd(a, 12, 10, 11, S*D*2)
    for r in range(2):
        if r == 1:
            a("s_cmp_ge_u32 s3, 2"); a("s_cbranch_scc1 L_P3_LD")
        a(f"s_add_u32 s22, s3, {8*r}"); a(f"s_mul_i32 s23, s22, {8*XROW}"); a("s_mul_i32 s22, s22, 1056"); a("s_mov_b32 m0, s22"); a("s_nop 0")
        a(f"buffer_load_dwordx4 v3, s[24:27], s23 offen {cfg.ld_ot} lds")
    a("L_P3_LD:")
    a("v_mul_u32_u24 v5, 205, v0"); a("v_lshrrev_b32 v5, 11, v5"); a("v_mul_u32_u24 v6, 10, v5"); a("v_sub_u32 v6, v0, v6")
    a("v_mul_u32_u24 v7, 1056, v6"); a("v_lshl_add_u32 v7, v5, 3, v7")
    a("s_lshl_b32 s22, s20, 6"); a("v_lshl_add_u32 v8, v5, 2, s22"); a("v_mul_u32_u24 v8, 1280, v8")
    a("s_mul_i32 s23, s19, 160"); a("v_lshl_add_u32 v9, v6, 4, s23"); a("v_add_u32 v8, v8, v9")
    a("s_waitcnt vmcnt(0)")
    a("s_barrier")
    a("v_cmp_gt_u32 vcc, 160, v0")
    a("s_and_saveexec_b64 s[22:23], vcc")
    a("s_cbranch_execz L_FINISH")
    for i in range(8): a(f"ds_read_b64 v[{16+2*i}:{17+2*i}], v7 offset:{128*i}")
    a("s_mov_b32 s24, 0x05040100"); a("s_mov_b32 s25, 0x07060302")
    a("s_waitcnt lgkmcnt(0)")
    for r in range(4):
        for c in range(4):
            a(f"v_perm_b32 v{32+4*r+c}, v{16+2*(2*c+1)+(r>>1)}, v{16+2*(2*c)+(r>>1)}, s{24+(r&1)}")
    for r in range(4):
        a(f"buffer_store_dwordx4 v[{32+4*r}:{35+4*r}], v8, s[12:15], 0 offen offset:{1280*r} {cfg.st_out}")
    a("L_FINISH:")
    if cfg.stamps:
        a("s_mov_b32 s98, s66"); a("s_mov_b32 s99, s67")
        a(f"{cfg.clk} s[100:101]")
        stamp_flush(a, cfg, 16)
    a("L_END:")
    a("s_endpgm")
    body = a.finish()
    kd = f""".section .rodata,"a"
.p2align 6
.amdhsa_kernel {KNAME}
  .amdhsa_next_free_vgpr 216
  .amdhsa_next_free_sgpr 102
  .amdhsa_accum_offset 168
  .amdhsa_group_segment_fixed_size 0
  .amdhsa_kernarg_size 136
  .amdhsa_user_sgpr_count 2
  .amdhsa_user_sgpr_kernarg_segment_ptr 1
  .amdhsa_system_sgpr_workgroup_id_x 1
  .amdhsa_float_denorm_mode_32 3
.end_amdhsa_kernel
"""
    header = open(__file__.replace("gen2.py", "header.txt")).read()
    return header + f"; @launch grid=(256,1,1) block=(512,1,1) lds={LDS_TOTAL}\n" + '.amdgcn_target "amdgcn-amd-amdhsa--gfx950"\n' + body + kd

if __name__ == "__main__":
    cfg = Cfg()
    for kv in sys.argv[2:]:
        k, v = kv.split("=", 1)
        setattr(cfg, k, (v == "True") if v in ("True", "False") else (int(v) if v.lstrip("-").isdigit() else v))
    open(sys.argv[1], "w").write(gen(cfg))
```

```python
import sys, struct
from asmlib import Asm

S, D = 2048, 640
XROW = 4224
WS_X = 0
WS_G = 0x7B0000
WS_OT = 0x800000
WS_TS = 0xC00000
WS_MB1 = 0xD00000
WS_MBG = 0xD10000
WS_MB2 = 0xD20000
NAME = "gated_mix__ssm_conv_h3__ssm_conv_s4d__prompt"
KNAME = NAME + "_kernel"

XCP = 4160; XARR = 4*XCP; L_K = 6*XARR; KARR = 4608; L_G = L_K + 6*KARR
LDS_TOTAL = 163840
L_ST = L_G
ST_Q, ST_V, ST_K = 0, 10368, 20736
SLOT = 53*256
L_CNT = LDS_TOTAL - 16
PSET = ([0, 3, 4, 7], [1, 2, 5, 6])

class Cfg:
    nt_in = "nt"
    st_x = "sc1"; ld_x = "sc1"; st_ot = "sc1"; ld_ot = "sc1"; st_out = ""; st_flag = "sc1"; ld_flag = "sc1"
    stamps = False; clk = "s_memrealtime"
    spin_max = 100000
    early = False
    sleep = 1
    gate_late = True
    defer = True

def hexf(x): return "0x%08x" % struct.unpack("<I", struct.pack("<f", float(x)))[0]

def stamp(a, cfg, i):
    if cfg.stamps: a(f"{cfg.clk} s[{70+2*i}:{71+2*i}]")
def stamp_flush(a, cfg, n):
    if not cfg.stamps: return
    a("s_load_dwordx2 s[4:5], s[0:1], 128")
    a("s_waitcnt lgkmcnt(0)")
    a(f"s_add_u32 s4, s4, {WS_TS}")
    a("s_addc_u32 s5, s5, 0")
    a("s_lshl_b32 s6, s2, 3")
    a("s_add_u32 s6, s6, s3")
    a("s_lshl_b32 s6, s6, 7")
    a("s_mov_b64 exec, 1")
    a("v_mov_b32 v4, s6")
    for i in range(n):
        a(f"v_mov_b32 v6, s{70+2*i}")
        a(f"v_mov_b32 v7, s{71+2*i}")
        a(f"global_store_dwordx2 v4, v[6:7], s[4:5] offset:{8*i}")
        a("s_nop 1")

def srd(a, s, lo, hi, size):
    a(f"s_mov_b32 s{s}, s{lo}"); a(f"s_and_b32 s{s+1}, s{hi}, 0xffff")
    a(f"s_mov_b32 s{s+2}, {size}"); a(f"s_mov_b32 s{s+3}, 0x00020000")
def srd_off(a, s, lo, hi, off, size):
    a(f"s_add_u32 s{s}, s{lo}, {off}"); a(f"s_addc_u32 s{s+1}, s{hi}, 0"); a(f"s_and_b32 s{s+1}, s{s+1}, 0xffff")
    a(f"s_mov_b32 s{s+2}, {size}"); a(f"s_mov_b32 s{s+3}, 0x00020000")

def cmul(a, d, z, w, t=2):
    a(f"v_pk_mul_f32 v[{t}:{t+1}], v[{z}:{z+1}], v[{w}:{w+1}] op_sel:[0,0] op_sel_hi:[1,0]")
    a(f"v_pk_fma_f32 v[{d}:{d+1}], v[{z}:{z+1}], v[{w}:{w+1}], v[{t}:{t+1}] op_sel:[1,1,0] op_sel_hi:[0,1,1] neg_lo:[1,0,0]")

def mb_send(a, cfg, region, nlanes, mode):
    a("v_and_b32 v4, 63, v0")
    if mode == "grp":
        a("v_lshl_add_u32 v4, v4, 3, s19")
        a("v_lshlrev_b32 v4, 8, v4")
        a("s_lshl_b32 s21, s20, 3")
    else:
        a("s_lshl_b32 s21, s20, 3")
        a("v_add_u32 v4, s21, v4")
        a("v_lshlrev_b32 v4, 7, v4")
        a("s_lshl_b32 s21, s19, 3")
    a(f"s_add_u32 s21, s21, {region}")
    a("v_add_u32 v4, s21, v4")
    a("v_mov_b32 v6, s66"); a("v_mov_b32 v7, s67")
    a(f"s_mov_b64 exec, {hex((1 << nlanes) - 1)}")
    a(f"buffer_store_dwordx2 v[6:7], v4, s[60:63], 0 offen {cfg.st_flag}")
    a("s_mov_b64 exec, -1")

def mb_poll(a, cfg, tag, region, nlanes, shift):
    a("v_and_b32 v4, 63, v0")
    a("v_lshlrev_b32 v4, 3, v4")
    a(f"s_lshl_b32 s21, s2, {shift}")
    a(f"s_add_u32 s21, s21, {region}")
    a("v_add_u32 v4, s21, v4")
    a(f"s_mov_b64 exec, {hex((1 << nlanes) - 1)}")
    a(f"s_mov_b32 s21, {cfg.spin_max}")
    a(f"POLL_{tag}:")
    a(f"buffer_load_dwordx2 v[6:7], v4, s[60:63], 0 offen {cfg.ld_flag}")
    a("s_waitcnt vmcnt(0)")
    a("v_cmp_ne_u32 vcc, s66, v6")
    a("v_cmp_ne_u32 s[22:23], s67, v7")
    a("s_or_b64 vcc, vcc, s[22:23]")
    a(f"s_cbranch_vccz POLL_{tag}_OK")
    a("s_sub_u32 s21, s21, 1")
    a("s_cmp_eq_u32 s21, 0")
    a(f"s_cbranch_scc1 POLL_{tag}_OK")
    if cfg.sleep: a(f"s_sleep {cfg.sleep}")
    a(f"s_branch POLL_{tag}")
    a(f"POLL_{tag}_OK:")
    a("s_mov_b64 exec, -1")

def conv_block(a, pairs, acc_of, nb, VA, VB, offA, offB, setregs, frac=0.75):
    def loads(b, st):
        A0, B0 = setregs[st]
        L = []; seen = []
        for (aa, cc) in pairs:
            if ("A", aa) not in seen: seen.append(("A", aa))
            if ("B", cc) not in seen: seen.append(("B", cc))
        for kind, i in seen:
            if kind == "A":
                L.append(f"ds_read_b64 v[{A0+4*i}:{A0+4*i+1}], v{VA} offset:{offA(i, b, 0)}")
                L.append(f"ds_read_b64 v[{A0+4*i+2}:{A0+4*i+3}], v{VA} offset:{offA(i, b, 1)}")
            else:
                L.append(f"ds_read_b128 v[{B0+4*i}:{B0+4*i+3}], v{VB} offset:{offB(i, b)}")
        return L
    for l in loads(0, 0): a(l)
    for b in range(nb):
        st = b & 1
        A0, B0 = setregs[st]
        nxt = loads(b + 1, st ^ 1) if b + 1 < nb else []
        a("s_waitcnt lgkmcnt(0)")
        k = 0
        for idx, (aa, cc) in enumerate(pairs):
            d = acc_of(aa, cc)
            a(f"v_mfma_f32_16x16x32_bf16 a[{d}:{d+3}], v[{A0+4*aa}:{A0+4*aa+3}], v[{B0+4*cc}:{B0+4*cc+3}], a[{d}:{d+3}]")
            want = -(-len(nxt) * (idx + 1) // max(1, int(len(pairs) * frac)))
            while k < min(len(nxt), want):
                a(nxt[k]); k += 1
        while k < len(nxt):
            a(nxt[k]); k += 1

def gen(cfg):
    a = Asm()
    a.lines += [".text", f".globl {KNAME}", ".p2align 8", f".type {KNAME},@function", f"{KNAME}:"]
    nt = cfg.nt_in
    a("s_cmp_ge_u32 s2, 256")
    a("s_cbranch_scc1 L_END")
    a("s_load_dwordx4 s[4:7], s[0:1], 0")
    a("s_load_dwordx4 s[8:11], s[0:1], 16")
    a("s_load_dwordx4 s[12:15], s[0:1], 120")
    a("s_load_dwordx8 s[36:43], s[0:1], 56")
    a("s_load_dwordx2 s[44:45], s[0:1], 88")
    a("s_load_dwordx2 s[46:47], s[0:1], 104")
    a("s_load_dwordx2 s[48:49], s[0:1], 32")
    a("v_lshrrev_b32 v1, 6, v0")
    a("v_and_b32 v2, 63, v0")
    a("v_readfirstlane_b32 s3, v1")
    a("v_mov_b32 v3, 0")
    a(f"v_mov_b32 v4, {L_CNT}")
    a("ds_write_b32 v4, v3")
    for i in range(14): stamp(a, cfg, i)
    a("s_and_b32 s19, s2, 7")
    a("s_lshr_b32 s20, s2, 3")
    a("s_mul_i32 s17, s19, 80")
    a("s_lshr_b32 s21, s20, 1")
    a("s_mul_i32 s21, s21, 5")
    a("s_add_u32 s17, s17, s21")
    a("s_and_b32 s18, s20, 1")
    a("s_mul_i32 s21, s18, 3")
    a("s_add_u32 s16, s17, s21")
    a("s_add_u32 s17, s17, 2")
    a("s_waitcnt lgkmcnt(0)")
    if cfg.early: stamp(a, cfg, 9)
    a("s_mov_b32 s64, s14"); a("s_mov_b32 s65, s15")
    srd(a, 60, 14, 15, 0x1000000)
    a("s_cmp_ge_u32 s3, 5")
    a("s_cbranch_scc1 L_KW")
    srd(a, 24, 4, 5, S*D*2)
    srd(a, 28, 6, 7, S*D*2)
    srd(a, 32, 8, 9, S*D*2)
    a("v_mul_u32_u24 v3, 205, v2"); a("v_lshrrev_b32 v3, 11, v3")
    a("v_mul_u32_u24 v4, 10, v3"); a("v_sub_u32 v4, v2, v4")
    a("v_mul_u32_u24 v3, 1280, v3"); a("v_lshl_add_u32 v3, v4, 4, v3")
    a("s_mul_i32 s21, s20, 81920"); a("s_mul_i32 s22, s19, 160"); a("s_add_u32 s21, s21, s22")
    a("v_add_u32 v3, s21, v3")
    a("v_subrev_u32 v4, 3840, v3")
    a("v_add_u32 v5, 1280, v3")
    a("s_barrier")
    a("s_mov_b32 exec_hi, 0xff")
    def dma(tensor_srd, base, vreg, ireg, soff):
        a(f"s_mul_i32 s22, {ireg}, 640"); a(f"s_lshr_b32 s23, {ireg}, 1"); a("s_lshl_b32 s23, s23, 4")
        a("s_add_u32 s22, s22, s23"); a(f"s_add_u32 m0, s22, {L_ST + base}")
        a(f"buffer_load_dwordx4 v{vreg}, s[{tensor_srd}:{tensor_srd+3}], {soff} offen {nt} lds")
    a("s_cmp_eq_u32 s3, 0")
    a("s_cbranch_scc0 L_K0B")
    a(f"s_mov_b32 m0, {L_ST + ST_K}")
    a("s_nop 0")
    a(f"buffer_load_dwordx4 v4, s[28:31], 0 offen {nt} lds")
    a("s_branch L_K0C")
    a("L_K0B:")
    a("s_sub_u32 s52, s3, 1"); a("s_mul_i32 s52, s52, 5120")
    dma(28, ST_K, 5, "s3", "s52")
    a("L_K0C:")
    for m in (1, 2):
        a(f"s_add_u32 s51, s3, {5*m}"); a("s_sub_u32 s52, s51, 1"); a("s_mul_i32 s52, s52, 5120")
        dma(28, ST_K, 5, "s51", "s52")
    for (base, sr_) in ((ST_V, 32), (ST_Q, 24)):
        for m in range(3):
            a(f"s_add_u32 s51, s3, {5*m}"); a("s_mul_i32 s52, s51, 5120")
            dma(sr_, base, 3, "s51", "s52")
    a("s_cmp_ge_u32 s3, 2")
    a("s_cbranch_scc1 L_DMA_DONE")
    a("s_add_u32 s51, s3, 15"); a("s_sub_u32 s52, s51, 1"); a("s_mul_i32 s52, s52, 5120")
    dma(28, ST_K, 5, "s51", "s52")
    a("s_cmp_ge_u32 s3, 1")
    a("s_cbranch_scc1 L_DMA_DONE")
    a("s_mov_b32 s51, 15"); a(f"s_mov_b32 s52, {15*5120}")
    dma(32, ST_V, 3, "s51", "s52")
    dma(24, ST_Q, 3, "s51", "s52")
    a("L_DMA_DONE:")
    a("s_mov_b64 exec, -1")
    if cfg.early: stamp(a, cfg, 10)
    srd(a, 36, 10, 11, D*8)
    srd(a, 40, 46, 47, D*2)
    srd_off(a, 44, 64, 65, WS_X, 1280*XROW)
    srd_off(a, 48, 64, 65, WS_G, 16384)
    a("v_lshrrev_b32 v11, 3, v0")
    a("v_and_b32 v13, 7, v0")
    a("s_mul_i32 s23, s19, 640")
    a("v_lshl_add_u32 v12, v11, 4, s23")
    a("buffer_load_dwordx4 v[16:19], v12, s[36:39], 0 offen")
    a("s_and_b32 s23, s3, 3"); a("s_lshl_b32 s23, s23, 1"); a("s_lshl_b32 s52, s2, 3"); a("s_add_u32 s23, s23, s52")
    a("v_lshrrev_b32 v12, 5, v2"); a("v_add_u32 v12, s23, v12")
    a("v_and_b32 v14, 31, v2"); a("v_lshlrev_b32 v14, 4, v14")
    a("v_mul_u32_u24 v15, 1280, v12"); a("v_add_u32 v15, v15, v14")
    a("v_add_u32 v20, 1024, v15")
    a("v_cmp_gt_u32 vcc, 256, v14")
    a("v_mov_b32 v21, -1")
    a("v_cndmask_b32 v20, v21, v20, vcc")
    gate_loads = [
        "buffer_load_dwordx4 v[24:27], v15, s[24:27], 0 offen",
        "buffer_load_dwordx4 v[28:31], v15, s[24:27], 0 offen offset:512",
        "buffer_load_dwordx4 v[32:35], v20, s[24:27], 0 offen",
        "buffer_load_dwordx4 v[36:39], v14, s[40:43], 0 offen",
        "buffer_load_dwordx4 v[40:43], v14, s[40:43], 0 offen offset:512",
        "buffer_load_dwordx4 v[44:47], v14, s[40:43], 0 offen offset:1024"]
    if not cfg.gate_late:
        for l in gate_loads: a(l)
    a("v_mul_u32_u24 v21, 1296, v13"); a("v_lshl_add_u32 v21, v11, 2, v21"); a(f"v_add_u32 v21, {L_ST}, v21")
    a("s_mul_i32 s23, s19, 80"); a("v_lshl_add_u32 v22, v11, 1, s23")
    a(f"s_movk_i32 s52, {2*XROW}"); a("v_mul_lo_u32 v22, v22, s52")
    a("s_lshl_b32 s53, s20, 7"); a("s_sub_u32 s53, 4080, s53")
    a("v_lshlrev_b32 v23, 4, v13"); a("v_sub_u32 v23, s53, v23"); a("v_add_u32 v22, v22, v23")
    stamp(a, cfg, 1)
    a(f"s_waitcnt vmcnt({1 if cfg.gate_late else 7})")
    if cfg.gate_late:
        for l in gate_loads: a(l)
    a(f"v_mov_b32 v4, {L_CNT}"); a("v_mov_b32 v5, 1")
    a("s_mov_b64 exec, 1")
    a("ds_add_u32 v4, v5")
    a("L_TSYNC:")
    a("ds_read_b32 v5, v4")
    a("s_waitcnt lgkmcnt(0)")
    a("v_cmp_gt_u32 vcc, 5, v5")
    a("s_cbranch_vccnz L_TSYNC")
    a("s_mov_b64 exec, -1")
    stamp(a, cfg, 2)
    KR, VR, QR = 48, 60, 68
    for r in range(11): a(f"ds_read_b32 v{KR+r}, v21 offset:{ST_K + r*160 + (r >> 3)*16}")
    for r in range(8): a(f"ds_read_b32 v{VR+r}, v21 offset:{ST_V + r*160}")
    for r in range(8): a(f"ds_read_b32 v{QR+r}, v21 offset:{ST_Q + r*160}")
    a("s_waitcnt vmcnt(6)")
    W = 80
    a(f"v_lshlrev_b32 v{W+0}, 16, v16");  a(f"v_lshlrev_b32 v{W+1}, 16, v18")
    a(f"v_and_b32 v{W+2}, 0xffff0000, v16"); a(f"v_and_b32 v{W+3}, 0xffff0000, v18")
    a(f"v_lshlrev_b32 v{W+4}, 16, v17");  a(f"v_lshlrev_b32 v{W+5}, 16, v19")
    a(f"v_and_b32 v{W+6}, 0xffff0000, v17"); a(f"v_and_b32 v{W+7}, 0xffff0000, v19")
    K2, V2, KV = 88, 110, 128
    a("s_waitcnt lgkmcnt(0)")
    for r in range(11):
        a(f"v_lshlrev_b32 v{K2+2*r}, 16, v{KR+r}"); a(f"v_and_b32 v{K2+2*r+1}, 0xffff0000, v{KR+r}")
    for r in range(8):
        a(f"v_lshlrev_b32 v{V2+2*r}, 16, v{VR+r}"); a(f"v_and_b32 v{V2+2*r+1}, 0xffff0000, v{VR+r}")
    def pk(op, d, *srcs): a(f"{op} v[{d}:{d+1}], " + ", ".join(f"v[{s_}:{s_+1}]" for s_ in srcs))
    for r in range(8):
        d = KV + 2*r
        pk("v_pk_mul_f32", d, K2+2*(r+0), W+6)
        pk("v_pk_fma_f32", d, K2+2*(r+1), W+4, d)
        pk("v_pk_fma_f32", d, K2+2*(r+2), W+2, d)
        pk("v_pk_fma_f32", d, K2+2*(r+3), W+0, d)
        pk("v_pk_mul_f32", d, d, V2+2*r)
    a("s_mov_b32 s54, 0x05040100"); a("s_mov_b32 s55, 0x07060302")
    O2 = 88
    for e in range(2):
        for i in range(4): a(f"v_cvt_pk_bf16_f32 v{O2+8*e+i}, v{KV+2*(7-2*i)+e}, v{KV+2*(6-2*i)+e}")
        for i in range(4): a(f"v_perm_b32 v{O2+8*e+4+i}, v{QR+6-2*i}, v{QR+7-2*i}, s{54+e}")
    st = cfg.st_x
    a(f"buffer_store_dwordx4 v[{O2}:{O2+3}], v22, s[44:47], 0 offen {st}")
    a(f"s_movk_i32 s52, {XROW}")
    a(f"buffer_store_dwordx4 v[{O2+4}:{O2+7}], v22, s[44:47], s52 offen {st}")
    a(f"s_movk_i32 s53, {2*XROW}")
    a(f"buffer_store_dwordx4 v[{O2+8}:{O2+11}], v22, s[44:47], s53 offen {st}")
    a(f"s_movk_i32 s56, {3*XROW}")
    a(f"buffer_store_dwordx4 v[{O2+12}:{O2+15}], v22, s[44:47], s56 offen {st}")
    stamp(a, cfg, 3)
    a("s_cmp_ge_u32 s3, 4")
    a("s_cbranch_scc1 L_PRE_B2")
    a("s_waitcnt vmcnt(4)")
    a("v_mov_b32 v4, 0")
    a("s_mov_b32 s52, 0x3f803f80")
    for c in range(3):
        for i in range(4):
            xq = 24 + 4*c + i; wq = 36 + 4*c + i
            a(f"v_lshlrev_b32 v6, 16, v{xq}"); a(f"v_and_b32 v7, 0xffff0000, v{xq}")
            a(f"v_lshlrev_b32 v8, 16, v{wq}"); a(f"v_and_b32 v9, 0xffff0000, v{wq}")
            a("v_pk_mul_f32 v[6:7], v[6:7], v[8:9]")
            a("v_cvt_pk_bf16_f32 v6, v6, v7")
            a("v_dot2_f32_bf16 v4, v6, s52, v4")
    for sh in (1, 2, 4, 8):
        a(f"v_add_f32_dpp v4, v4, v4 row_shr:{sh} row_mask:0xf bank_mask:0xf bound_ctrl:0")
    a("v_add_f32_dpp v4, v4, v4 row_bcast:15 row_mask:0xa bank_mask:0xf")
    a("v_cvt_pk_bf16_f32 v4, v4, v4"); a("v_lshlrev_b32 v4, 16, v4")
    a("v_mul_f32 v5, 0xbfb8aa3b, v4"); a("v_exp_f32 v5, v5"); a("v_add_f32 v5, 1.0, v5"); a("v_rcp_f32 v5, v5")
    a("v_cvt_pk_bf16_f32 v5, v5, v5"); a("v_lshlrev_b32 v5, 16, v5")
    a("v_sub_f32 v6, 1.0, v5"); a("v_cvt_pk_bf16_f32 v6, v6, v6"); a("v_lshlrev_b32 v6, 16, v6")
    a("v_lshlrev_b32 v7, 2, v12"); a("v_and_b32 v8, 31, v2"); a("v_cmp_eq_u32 vcc, 31, v8")
    a("s_and_saveexec_b64 s[52:53], vcc")
    a(f"buffer_store_dword v5, v7, s[48:51], 0 offen {st}")
    a("s_movk_i32 s54, 8192")
    a(f"buffer_store_dword v6, v7, s[48:51], s54 offen {st}")
    a("s_mov_b64 exec, -1")
    stamp(a, cfg, 4)
    a("s_branch L_PRE_B2")
    a("L_KW:")
    a("s_sub_u32 s22, s3, 5")
    a("s_add_u32 s53, s16, s22"); a("s_cmp_eq_u32 s22, 2"); a("s_cselect_b32 s53, s17, s53")
    P = 152
    a("s_mul_i32 s23, s53, 384"); a("v_lshl_add_u32 v6, v2, 1, s23")
    a("s_lshl_b32 s23, s53, 1"); a("v_mov_b32 v7, s23")
    srd(a, 56, 44, 45, D*2)
    a(f"buffer_load_ushort v{P+12}, v7, s[56:59], 0 offen")
    for i in range(4):
        srd(a, 24 + 4*i, 36 + 2*i, 37 + 2*i, D*192*2)
    for st_ in range(3):
        for i in range(4):
            a(f"buffer_load_ushort v{P+4*st_+i}, v6, s[{24+4*i}:{27+4*i}], 0 offen offset:{128*st_}")
    a("s_barrier")
    srd(a, 40, 12, 13, 256)
    a("s_cmp_eq_u32 s3, 7"); a("s_cbranch_scc0 L_NONCE_DONE")
    a("s_cmp_eq_u32 s2, 0"); a("s_cbranch_scc0 L_NONCE_DONE")
    a("s_memrealtime s[22:23]")
    a("s_waitcnt lgkmcnt(0)")
    a("s_or_b32 s22, s22, 1"); a("s_or_b32 s23, s23, 0x80000000")
    a("v_mov_b32 v8, s22"); a("v_mov_b32 v9, s23"); a("v_mov_b32 v10, 0")
    a("s_mov_b64 exec, 1")
    a(f"buffer_store_dwordx2 v[8:9], v10, s[40:43], 0 offen {cfg.st_flag}")
    a("s_mov_b64 exec, -1")
    a("L_NONCE_DONE:")
    a("s_sub_u32 s22, s3, 5")
    a("s_lshl_b32 s23, s53, 12")
    srd_off(a, 56, 48, 49, "s23", 4096)
    a(f"s_mul_i32 s52, s22, {2*KARR}"); a(f"s_add_u32 s52, s52, {L_K}")
    a("v_lshlrev_b32 v3, 4, v2")
    a(f"s_mul_i32 s21, s22, {SLOT}")
    if cfg.early: stamp(a, cfg, 10)
    AV = 16
    a("v_lshlrev_b32 v7, 2, v2"); a("v_add_u32 v7, s21, v7")
    for c in range(16): a(f"v_xor_b32 v{AV+c}, {c << 4}, v7")
    RX, RY = 32, 40
    a("v_and_b32 v8, 31, v2"); a("v_lshrrev_b32 v9, 5, v2"); a("v_min_u32 v10, 20, v8")
    for (R, rowreg, rowoff) in ((RX, 10, 32), (RY, 8, 0)):
        a(f"v_and_b32 v11, 15, v{rowreg}"); a("v_xor_b32 v11, v11, v9"); a("v_lshlrev_b32 v11, 4, v11")
        a(f"v_lshl_add_u32 v11, v{rowreg}, 8, v11")
        if rowoff: a(f"v_add_u32 v11, {rowoff*256}, v11")
        a("v_add_u32 v11, s21, v11")
        for i in range(8): a(f"v_xor_b32 v{R+i}, {32*i}, v11")
    ACC = 48
    for i in range(16): a(f"v_mov_b32 v{ACC+i}, 0")
    for i in range(4): a(f"v_mov_b32 v{8+i}, 0")
    a("v_add_u32 v6, s52, v3")
    a("s_mov_b64 exec, 0x3fffffff")
    a("ds_write_b128 v6, v[8:11]")
    a(f"ds_write_b128 v6, v[8:11] offset:{KARR}")
    a("s_mov_b64 exec, -1")
    stamp(a, cfg, 1)
    a("s_waitcnt vmcnt(0)")
    stamp(a, cfg, 2)
    for q in range(4):
        a(f"s_add_u32 m0, s52, {480 + 1024*q}"); a(f"s_movk_i32 s23, {1024*q}")
        a(f"buffer_load_dwordx4 v3, s[56:59], s23 offen {nt} lds")
    a(f"v_lshlrev_b32 v6, 16, v{P+12}"); a("v_mul_f32 v6, 0x3fb8aa3b, v6"); a("v_exp_f32 v6, v6")
    a("v_cvt_pk_bf16_f32 v6, v6, v6"); a("v_lshlrev_b32 v6, 16, v6")
    a("v_add_f32 v7, v6, v6")
    E1, E2, E4, E8, E256, E128, Z, Z2, C = 64, 66, 68, 70, 72, 74, 76, 78, 80
    Q1, Q2, Q3 = 82, 84, 86
    pend = []; rot = [0]
    def flush(keep=0):
        while len(pend) > keep: a(pend.pop(0))
    def store_pair(rowA, za, rowB, zb, neg):
        n = "-" if neg else ""
        t = (8, 10, 12)[rot[0] % 3]; rot[0] += 1
        a(f"v_cvt_pk_bf16_f32 v{t}, v{za}, {n}v{za+1}")
        if rowB is None:
            w = f"ds_write_b32 v{AV + (rowA & 15)}, v{t} offset:{rowA*256}"
        else:
            assert (rowA & 15) == (rowB & 15)
            a(f"v_cvt_pk_bf16_f32 v{t+1}, v{zb}, {n}v{zb+1}")
            w = f"ds_write2st64_b32 v{AV + (rowA & 15)}, v{t}, v{t+1} offset0:{rowA} offset1:{rowB}"
        flush(1 if cfg.defer else 0)
        pend.append(w)
        if not cfg.defer: flush()
    def cexp(dst, h):
        if h == 1:
            a("v_exp_f32 v8, v14"); a("v_fract_f32 v9, v15")
        else:
            a(f"v_mul_f32 v8, {hexf(h)}, v14"); a(f"v_mul_f32 v9, {hexf(h)}, v15")
            a("v_exp_f32 v8, v8"); a("v_fract_f32 v9, v9")
        a(f"v_cos_f32 v{dst}, v9"); a(f"v_sin_f32 v{dst+1}, v9")
        a(f"v_mul_f32 v{dst}, v8, v{dst}"); a(f"v_mul_f32 v{dst+1}, v8, v{dst+1}")
    OA, OB = 88, 120
    def setup():
        L = Asm()
        nonlocal a
        keep = a; a = L
        a(f"v_lshlrev_b32 v8, 16, v{P}"); a("v_mul_f32 v8, 0x3fb8aa3b, v8"); a("v_exp_f32 v8, v8")
        a(f"v_lshlrev_b32 v15, 16, v{P+1}"); a("v_mul_f32 v15, v15, v6"); a("v_mul_f32 v15, 0.15915494, v15")
        a("v_cvt_pk_bf16_f32 v8, v8, v8"); a("v_lshlrev_b32 v8, 16, v8")
        a("v_mul_f32 v14, v8, v6"); a("v_mul_f32 v14, 0xbfb8aa3b, v14")
        a(f"v_lshlrev_b32 v{C}, 16, v{P+2}"); a(f"v_lshlrev_b32 v{C+1}, 16, v{P+3}")
        a(f"v_mul_f32 v{C}, v{C}, v7"); a(f"v_mul_f32 v{C+1}, v{C+1}, v7")
        cexp(E1, 1); cexp(E8, 8); cexp(E256, 256); cexp(E128, 128)
        cmul(a, E2, E1, E1); cmul(a, E4, E2, E2)
        cmul(a, Q1, C, E256); cmul(a, Q2, Q1, E256); cmul(a, Q3, Q2, E256)
        for i in range(8): a(f"v_mov_b32 v{P+i}, v{P+4+i}")
        a = keep
        return L.lines
    def chains():
        a(f"v_mov_b32 v{Z}, 1.0"); a(f"v_mov_b32 v{Z+1}, 0")
        store_pair(0, Z, 16, E128, False)
        cmul(a, Z2, E128, E8)
        store_pair(1, E8, 17, Z2, False)
        cmul(a, Z, E8, E8); cmul(a, Z2, Z2, E8, 4)
        store_pair(2, Z, 18, Z2, False)
        for lam in range(3, 16):
            cmul(a, Z, Z, E8); cmul(a, Z2, Z2, E8, 4)
            store_pair(lam, Z, lam + 16, Z2, False)
        cmul(a, Z, Q1, E2)
        store_pair(32+0, C, 32+16, Z, True)
        cmul(a, Z2, C, E1); cmul(a, Z, Z, E2, 4)
        store_pair(32+1, Z2, 32+17, Z, True)
        cmul(a, Z2, Z2, E1); cmul(a, Z, Z, E2, 4)
        store_pair(32+2, Z2, 32+18, Z, True)
        cmul(a, Z2, Z2, E1); cmul(a, Z, Q2, E4, 4)
        store_pair(32+3, Z2, 32+19, Z, True)
        cmul(a, Z2, Z2, E1); cmul(a, Z, Q3, E4, 4)
        store_pair(32+4, Z2, 32+20, Z, True)
        cmul(a, Z, Q3, E256, 4)
        store_pair(32+8, Q1, None, None, True)
        cmul(a, Z2, Z2, E1); store_pair(32+5, Z2, None, None, True)
        store_pair(32+11, Z, None, None, True)
        cmul(a, Z2, Z2, E1); cmul(a, Z, Z, E256, 4); store_pair(32+6, Z2, None, None, True)
        store_pair(32+12, Z, None, None, True)
        cmul(a, Z2, Z2, E1); cmul(a, Z, Z, E256, 4); store_pair(32+7, Z2, None, None, True)
        store_pair(32+13, Z, None, None, True)
        cmul(a, Z, Z, E256, 4); store_pair(32+9, Q2, None, None, True)
        store_pair(32+14, Z, None, None, True)
        cmul(a, Z, Z, E256, 4); store_pair(32+10, Q3, None, None, True)
        store_pair(32+15, Z, None, None, True)
        flush()
    a("v_mov_b32 v166, 0")
    for l in setup(): a(l)
    a("s_mov_b32 s23, 3")
    a("L_GEN:")
    a(f"buffer_load_dwordx2 v[164:165], v166, s[40:43], 0 offen {cfg.ld_flag}")
    chains()
    a("s_waitcnt lgkmcnt(0)")
    for i in range(8):
        a(f"ds_read_b128 v[{OA+4*i}:{OA+4*i+3}], v{RX+i}")
        a(f"ds_read_b128 v[{OB+4*i}:{OB+4*i+3}], v{RY+i}")
    su = setup(); per = -(-len(su) // 8); k = 0
    for i in range(8):
        for l in su[k:k+per]: a(l)
        k += per
        a(f"s_waitcnt lgkmcnt({14-2*i})")
        a(f"v_mfma_f32_32x32x16_bf16 v[{ACC}:{ACC+15}], v[{OA+4*i}:{OA+4*i+3}], v[{OB+4*i}:{OB+4*i+3}], v[{ACC}:{ACC+15}]")
    a("s_sub_u32 s23, s23, 1"); a("s_cmp_lg_u32 s23, 0")
    a("s_cbranch_scc1 L_GEN")
    stamp(a, cfg, 4)
    a("v_and_b32 v2, 63, v0")
    a("v_and_b32 v8, 31, v2"); a("v_lshrrev_b32 v9, 5, v2")
    a("v_lshlrev_b32 v10, 2, v8"); a("v_lshl_add_u32 v10, v9, 9, v10"); a("v_add_u32 v10, s21, v10")
    a(f"s_add_u32 s22, s52, {KARR + 480}")
    a("v_lshlrev_b32 v11, 4, v2"); a("v_add_u32 v11, s22, v11")
    a("s_mov_b32 s53, 0x0000ffff")
    a("v_lshlrev_b32 v13, 2, v8"); a("v_add_u32 v13, s21, v13")
    a("v_lshlrev_b32 v14, 2, v2"); a("v_add_u32 v14, s21, v14")
    for r in range(12):
        row = 8*(r >> 2) + (r & 3)
        a(f"v_cvt_pk_bf16_f32 v12, v{ACC+r}, v{ACC+r}")
        a(f"ds_write_b32 v10, v12 offset:{row*128}")
    a("s_waitcnt lgkmcnt(0)")
    T = 64
    for r in range(8): a(f"ds_read_b32 v{T+r}, v13 offset:{r*128}")
    a(f"ds_read_b32 v{T+8}, v13 offset:{8*128}"); a(f"ds_read_b32 v{T+9}, v13 offset:{16*128}")
    a(f"ds_read_b32 v{T+10}, v13 offset:{17*128}"); a(f"ds_read_b32 v{T+11}, v13 offset:{18*128}")
    a(f"ds_read_b32 v{T+12}, v13 offset:{8*128+4}"); a(f"ds_read_b32 v{T+13}, v14 offset:{9*128}")
    a(f"ds_read_b32 v{T+14}, v14 offset:{19*128}")
    a("s_waitcnt lgkmcnt(4)")
    a(f"ds_read_b32 v{T+15}, v14 offset:{9*128+4}"); a(f"ds_read_b32 v{T+16}, v14 offset:{11*128}")
    a(f"ds_read_b32 v{T+17}, v14 offset:{11*128+4}"); a(f"ds_read_b32 v{T+18}, v14 offset:{13*128}")
    a(f"ds_read_b32 v{T+19}, v14 offset:{13*128+4}")
    def mix(d, lo, hi): a(f"v_bfi_b32 v{d}, s53, v{lo}, v{hi}")
    O = 88
    a("s_waitcnt lgkmcnt(0)")
    for i in range(4): mix(O+i, T+2*i, T+2*i+1)
    a(f"v_mov_b32 v{O+4}, v{T+8}"); mix(O+5, T+9, T+10); a(f"v_mov_b32 v{O+6}, v{T+10}"); mix(O+7, T+11, T+12)
    a("v_cmp_gt_u32 vcc, 32, v2")
    for i in range(4): a(f"v_cndmask_b32 v{O+i}, v{O+4+i}, v{O+i}, vcc")
    a(f"ds_write_b128 v11, v[{O}:{O+3}]")
    a(f"v_mov_b32 v{O+8}, v{T+13}"); mix(O+9, T+13, T+14); a(f"v_mov_b32 v{O+10}, v{T+14}"); a(f"v_mov_b32 v{O+11}, v{T+15}")
    a(f"ds_write_b128 v11, v[{O+8}:{O+11}] offset:1024")
    a("v_and_b32 v15, 1, v2"); a("v_cmp_eq_u32 vcc, 1, v15")
    for k in range(2):
        s0, s1 = T+16+2*k, T+17+2*k
        d = O + 12 + 4*k
        a(f"v_mov_b32 v{d}, v{s0}"); a(f"v_mov_b32 v{d+1}, v{s0}"); mix(d+2, s0, s1)
        a(f"v_cndmask_b32 v{d+2}, v{d+2}, v{s1}, vcc"); a(f"v_mov_b32 v{d+3}, v{s1}")
        a(f"ds_write_b128 v11, v[{d}:{d+3}] offset:{2048+1024*k}")
    a("s_cmp_eq_u32 s3, 7"); a("s_cbranch_scc0 L_PRE_B2")
    a(f"s_mov_b32 s21, {cfg.spin_max}")
    a("L_NONCE_CHK:")
    a("s_waitcnt vmcnt(0)")
    a("v_readfirstlane_b32 s66, v164"); a("v_readfirstlane_b32 s67, v165")
    a("s_cmp_eq_u32 s66, 0"); a("s_cselect_b32 s22, 0, s67"); a("s_cmp_lg_u32 s22, 0")
    a("s_cbranch_scc1 L_PRE_B2")
    a("s_sub_u32 s21, s21, 1"); a("s_cmp_eq_u32 s21, 0"); a("s_cbranch_scc1 L_PRE_B2")
    a(f"buffer_load_dwordx2 v[164:165], v166, s[40:43], 0 offen {cfg.ld_flag}")
    a("s_branch L_NONCE_CHK")
    a("L_PRE_B2:")
    stamp(a, cfg, 5)
    a("s_waitcnt vmcnt(0) lgkmcnt(0)")
    a("s_barrier")
    stamp(a, cfg, 6)
    a("s_cmp_eq_u32 s3, 7")
    a("s_cbranch_scc0 L_B3")
    mb_send(a, cfg, WS_MB1, 32, "grp")
    mb_poll(a, cfg, "A", WS_MB1, 32, 8)
    mb_send(a, cfg, WS_MBG, 8, "all")
    a("L_B3:")
    stamp(a, cfg, 7)
    a("s_barrier")
    stamp(a, cfg, 8)
    a("v_and_b32 v2, 63, v0")
    a("s_cmp_ge_u32 s3, 6")
    a("s_cbranch_scc1 L_GLOAD")
    a("s_lshr_b32 s21, s3, 1"); a("s_add_u32 s22, s16, s21"); a("s_cmp_ge_u32 s3, 4"); a("s_cselect_b32 s22, s17, s22")
    a("s_and_b32 s23, s3, 1")
    a("s_lshl_b32 s52, s22, 1"); a("s_add_u32 s52, s52, s23"); a(f"s_mul_i32 s52, s52, {XROW}")
    srd_off(a, 24, 64, 65, "s52", 4096)
    a(f"s_mul_i32 s34, s3, {XARR}")
    a(f"s_mul_i32 s35, s3, {KARR}"); a(f"s_add_u32 s35, s35, {L_K}")
    a("v_lshlrev_b32 v3, 4, v2"); a("v_add_u32 v4, 4, v3")
    ld = cfg.ld_x
    W = 64
    for q in range(4):
        a(f"buffer_load_dwordx4 v[{W+8*q}:{W+8*q+3}], v3, s[24:27], 0 offen offset:{1024*q} {ld}")
        a(f"buffer_load_dwordx4 v[{W+8*q+4}:{W+8*q+7}], v3, s[24:27], 0 offen offset:{1024*q+16} {ld}")
    for cp, vreg in ((0, 3), (2, 4)):
        for q in range(4):
            a(f"s_add_u32 m0, s34, {cp*XCP + 1024*q}")
            a(f"s_movk_i32 s36, {1024*q}")
            a(f"buffer_load_dwordx4 v{vreg}, s[24:27], s36 offen {ld} lds")
    for i in range(4): a(f"v_mov_b32 v{8+i}, 0")
    a("v_lshrrev_b32 v5, 1, v2"); a(f"v_mul_u32_u24 v5, {XCP}, v5"); a("v_and_b32 v6, 1, v2")
    a("v_lshl_add_u32 v5, v6, 4, v5"); a("v_add_u32 v5, s34, v5")
    a("s_mov_b64 exec, 0xff")
    a("ds_write_b128 v5, v[8:11] offset:4096")
    a("s_mov_b64 exec, -1")
    a("v_and_b32 v8, 15, v2"); a("v_lshrrev_b32 v9, 4, v2")
    a("v_sub_u32 v10, 3, v8"); a("v_and_b32 v10, 3, v10")
    a("v_lshlrev_b32 v11, 3, v9"); a("v_sub_u32 v11, v11, v8"); a("v_add_u32 v11, 2031, v11"); a("v_sub_u32 v11, v11, v10")
    a("v_lshlrev_b32 v11, 1, v11"); a(f"v_mul_u32_u24 v12, {XCP}, v10"); a("v_add_u32 v11, v11, v12")
    a("v_subrev_u32 v11, 4032, v11")
    a("v_lshlrev_b32 v12, 5, v8"); a("v_lshl_add_u32 v12, v9, 4, v12")
    VA, VB, VA2, VB2 = 13, 14, 15, 16
    a(f"v_add_u32 v{VA}, s34, v11"); a(f"v_add_u32 v{VB}, s35, v12")
    a("s_add_u32 s36, s23, 4"); a(f"s_mul_i32 s37, s36, {XARR}"); a(f"s_mul_i32 s38, s36, {KARR}"); a(f"s_add_u32 s38, s38, {L_K}")
    a("s_lshr_b32 s39, s3, 1"); a("s_sub_u32 s39, 1, s39"); a("s_lshl_b32 s39, s39, 8")
    a("s_add_u32 s40, s37, s39"); a("s_add_u32 s41, s38, s39")
    a(f"v_add_u32 v{VA2}, s40, v11"); a(f"v_add_u32 v{VB2}, s41, v12")
    a("v_lshlrev_b32 v17, 5, v8"); a("v_lshl_add_u32 v17, v9, 3, v17")
    for i in range(48): a(f"v_accvgpr_write_b32 a{i}, 0")
    a("v_add_u32 v5, s34, v3")
    a("s_waitcnt vmcnt(8)")
    if not cfg.early: stamp(a, cfg, 9)
    for q in range(4):
        w = W + 8*q
        for j in range(4): a(f"v_alignbit_b32 v{96+j}, v{w+j+1}, v{w+j}, 16")
        a(f"ds_write_b128 v5, v[96:99] offset:{1*XCP + 1024*q}")
        for j in range(4): a(f"v_alignbit_b32 v{100+j}, v{w+j+2}, v{w+j+1}, 16")
        a(f"ds_write_b128 v5, v[100:103] offset:{3*XCP + 1024*q}")
    a("s_waitcnt vmcnt(0) lgkmcnt(0)")
    if not cfg.early: stamp(a, cfg, 10)
    a("s_cmp_ge_u32 s3, 4")
    a("s_cbranch_scc1 L_HELP")
    sets = [(20, 52), (84, 116)]
    pairs = [(aa, cc) for aa in range(8) for cc in range(8 - aa)]
    conv_block(a, pairs, lambda aa, cc: 4*(aa+cc), 8, VA, VB,
               lambda i, b, h: 512*(7-i) + 64*(7-b) + 8*h, lambda c, b: 512*c + 64*(7-b), sets)
    if not cfg.early: stamp(a, cfg, 11)
    a("v_add_u32 v18, s35, v17")
    for p in range(8):
        for r in range(4): a(f"v_accvgpr_read_b32 v{20+r}, a{4*p+r}")
        a("v_cvt_pk_bf16_f32 v24, v20, v21"); a("v_cvt_pk_bf16_f32 v25, v22, v23")
        a(f"ds_write_b64 v18, v[24:25] offset:{512*p}")
    a("s_barrier")
    a("s_cmp_eq_u32 s18, 0")
    a("s_cbranch_scc0 L_C2_E1")
    for e in range(2):
        if e == 1: a("L_C2_E1:")
        ps = PSET[e]
        prs = [(aa, cc) for aa in range(8) for cc in range(8 - aa) if aa + cc in ps]
        conv_block(a, prs, lambda aa, cc: 32 + 4*ps.index(aa+cc), 4, VA2, VB2,
                   lambda i, b, h: 512*(7-i) + 64*(3-b) + 8*h, lambda c, b: 512*c + 64*(3-b), sets)
        if e == 0: a("s_branch L_C2_DONE")
    a("L_C2_DONE:")
    for i in range(16): a(f"v_accvgpr_read_b32 v{20+i}, a{32+i}")
    a("s_and_b32 s36, s3, 1"); a("s_add_u32 s36, s36, 2"); a(f"s_mul_i32 s36, s36, {XARR}"); a(f"s_add_u32 s36, s36, {XCP}")
    a("v_add_u32 v19, s36, v3")
    a("s_cmp_lt_u32 s3, 2")
    a("s_cbranch_scc1 L_RED_WAIT")
    for i in range(4): a(f"ds_write_b128 v19, v[{20+4*i}:{23+4*i}] offset:{1024*i}")
    a("s_waitcnt lgkmcnt(0)")
    a("s_barrier")
    a("s_branch L_C3")
    a("L_RED_WAIT:")
    a("s_barrier")
    for i in range(4): a(f"ds_read_b128 v[{36+4*i}:{39+4*i}], v19 offset:{1024*i}")
    a("v_add_u32 v18, s38, v17")
    a("s_lshl_b32 s36, s18, 9")
    a("s_waitcnt lgkmcnt(0)")
    for ti in range(4):
        for r in range(4): a(f"v_add_f32 v{20+4*ti+r}, v{20+4*ti+r}, v{36+4*ti+r}")
        a(f"v_cvt_pk_bf16_f32 v52, v{20+4*ti}, v{21+4*ti}"); a(f"v_cvt_pk_bf16_f32 v53, v{22+4*ti}, v{23+4*ti}")
        if ti & 1:
            a("v_subrev_u32 v54, s36, v18"); a(f"ds_write_b64 v54, v[52:53] offset:{1024*ti + 512}")
        else:
            a("v_add_u32 v54, s36, v18"); a(f"ds_write_b64 v54, v[52:53] offset:{1024*ti}")
    a("s_branch L_C3")
    a("L_GLOAD:")
    a("s_cmp_eq_u32 s3, 7"); a("s_cbranch_scc0 L_HELP")
    mb_poll(a, cfg, "G", WS_MBG, 8, 7)
    srd_off(a, 24, 64, 65, WS_G, 16384)
    a("v_lshlrev_b32 v3, 4, v2")
    for q in range(16):
        a(f"s_movk_i32 s37, {1024*q}"); a(f"s_mov_b32 m0, {L_G + 1024*q}"); a("s_nop 0")
        a(f"buffer_load_dwordx4 v3, s[24:27], s37 offen {cfg.ld_x} lds")
    a("s_waitcnt vmcnt(0)")
    a("L_HELP:")
    a("s_barrier")
    a("s_barrier")
    a("L_C3:")
    a("s_waitcnt lgkmcnt(0)")
    a("s_barrier")
    stamp(a, cfg, 12)
    srd_off(a, 24, 64, 65, WS_OT, D*XROW)
    a("s_load_dwordx2 s[6:7], s[0:1], 40")
    a("s_load_dwordx2 s[8:9], s[0:1], 96")
    a("s_load_dwordx2 s[10:11], s[0:1], 112")
    a("s_waitcnt lgkmcnt(0)")
    srd(a, 28, 6, 7, D*2); srd(a, 32, 8, 9, D*2)
    def epi(s_ch, s_arr, v_t0):
        a(f"s_lshl_b32 s44, s{s_ch}, 1"); a("v_mov_b32 v4, s44")
        a("buffer_load_ushort v5, v4, s[28:31], 0 offen"); a("buffer_load_ushort v6, v4, s[32:35], 0 offen")
        a(f"s_mul_i32 s45, s{s_arr}, {XARR}"); a(f"s_mul_i32 s46, s{s_arr}, {KARR}"); a(f"s_add_u32 s46, s46, {L_K}")
        a(f"v_lshlrev_b32 v7, 1, v{v_t0}"); a("v_add_u32 v8, s46, v7")
        a("v_sub_u32 v9, 4080, v7"); a("v_add_u32 v9, s45, v9")
        a(f"v_lshlrev_b32 v10, 2, v{v_t0}"); a(f"v_add_u32 v10, {L_G}, v10")
        a("ds_read_b128 v[20:23], v8"); a(f"ds_read_b128 v[24:27], v8 offset:{KARR}")
        a("ds_read_b128 v[28:31], v9"); a(f"ds_read_b128 v[32:35], v9 offset:{XARR}")
        a("ds_read_b128 v[36:39], v10"); a("ds_read_b128 v[40:43], v10 offset:16")
        a("ds_read_b128 v[44:47], v10 offset:8192"); a("ds_read_b128 v[48:51], v10 offset:8208")
        a(f"s_mul_i32 s47, s{s_ch}, {XROW}"); a("v_add_u32 v7, s47, v7")
        a("s_waitcnt vmcnt(0)")
        a("v_lshlrev_b32 v12, 16, v5"); a("v_mov_b32 v13, v12"); a("v_lshlrev_b32 v14, 16, v6"); a("v_mov_b32 v15, v14")
        a("s_waitcnt lgkmcnt(0)")
        for i in range(4):
            a(f"v_lshlrev_b32 v52, 16, v{20+i}"); a(f"v_and_b32 v53, 0xffff0000, v{20+i}")
            a(f"v_lshlrev_b32 v54, 16, v{24+i}"); a(f"v_and_b32 v55, 0xffff0000, v{24+i}")
            a(f"v_and_b32 v56, 0xffff0000, v{28+3-i}"); a(f"v_lshlrev_b32 v57, 16, v{28+3-i}")
            a(f"v_and_b32 v58, 0xffff0000, v{32+3-i}"); a(f"v_lshlrev_b32 v59, 16, v{32+3-i}")
            a("v_pk_fma_f32 v[52:53], v[56:57], v[12:13], v[52:53]")
            a("v_pk_fma_f32 v[54:55], v[58:59], v[14:15], v[54:55]")
            a("v_pk_mul_f32 v[52:53], v[52:53], v[58:59]")
            a(f"v_pk_mul_f32 v[52:53], v[52:53], v[{36+2*i}:{37+2*i}]")
            a(f"v_pk_fma_f32 v[52:53], v[54:55], v[{44+2*i}:{45+2*i}], v[52:53]")
            a(f"v_cvt_pk_bf16_f32 v{60+i}, v52, v53")
        a(f"buffer_store_dwordx4 v[60:63], v7, s[24:27], 0 offen {cfg.st_ot}")
    a("s_lshr_b32 s42, s3, 2"); a("s_add_u32 s43, s16, s42"); a("s_lshl_b32 s42, s42, 1")
    a("v_and_b32 v1, 255, v0"); a("v_lshlrev_b32 v1, 3, v1")
    epi(43, 42, 1)
    a("s_cmp_ge_u32 s3, 2")
    a("s_cbranch_scc1 L_EPI_DONE")
    a("v_lshrrev_b32 v1, 5, v0"); a("v_and_b32 v2, 1, v1"); a("v_xor_b32 v2, s18, v2")
    a("v_lshl_add_u32 v1, v1, 1, v2"); a("v_lshlrev_b32 v1, 8, v1"); a("v_and_b32 v2, 31, v0"); a("v_lshl_add_u32 v1, v2, 3, v1")
    a("s_mov_b32 s42, 4")
    epi(17, 42, 1)
    a("L_EPI_DONE:")
    stamp(a, cfg, 13)
    a("s_waitcnt vmcnt(0)")
    a("s_barrier")
    a("s_cmp_eq_u32 s3, 7")
    a("s_cbranch_scc0 L_D2")
    mb_send(a, cfg, WS_MB2, 32, "grp")
    mb_poll(a, cfg, "B", WS_MB2, 32, 8)
    a("L_D2:")
    a("s_barrier")
    if cfg.stamps: a(f"{cfg.clk} s[68:69]")
    a("v_and_b32 v2, 63, v0")
    a("v_lshrrev_b32 v3, 3, v2"); a(f"v_mul_u32_u24 v3, {XROW}, v3"); a("v_and_b32 v4, 7, v2"); a("v_lshl_add_u32 v3, v4, 4, v3")
    a(f"s_mul_i32 s22, s19, {80*XROW}"); a("s_lshl_b32 s23, s20, 7"); a("s_add_u32 s22, s22, s23"); a("v_add_u32 v3, s22, v3")
    srd(a, 12, 10, 11, S*D*2)
    for r in range(2):
        if r == 1:
            a("s_cmp_ge_u32 s3, 2"); a("s_cbranch_scc1 L_P3_LD")
        a(f"s_add_u32 s22, s3, {8*r}"); a(f"s_mul_i32 s23, s22, {8*XROW}"); a("s_mul_i32 s22, s22, 1056"); a("s_mov_b32 m0, s22"); a("s_nop 0")
        a(f"buffer_load_dwordx4 v3, s[24:27], s23 offen {cfg.ld_ot} lds")
    a("L_P3_LD:")
    a("v_mul_u32_u24 v5, 205, v0"); a("v_lshrrev_b32 v5, 11, v5"); a("v_mul_u32_u24 v6, 10, v5"); a("v_sub_u32 v6, v0, v6")
    a("v_mul_u32_u24 v7, 1056, v6"); a("v_lshl_add_u32 v7, v5, 3, v7")
    a("s_lshl_b32 s22, s20, 6"); a("v_lshl_add_u32 v8, v5, 2, s22"); a("v_mul_u32_u24 v8, 1280, v8")
    a("s_mul_i32 s23, s19, 160"); a("v_lshl_add_u32 v9, v6, 4, s23"); a("v_add_u32 v8, v8, v9")
    a("s_waitcnt vmcnt(0)")
    a("s_barrier")
    a("v_cmp_gt_u32 vcc, 160, v0")
    a("s_and_saveexec_b64 s[22:23], vcc")
    a("s_cbranch_execz L_FINISH")
    for i in range(8): a(f"ds_read_b64 v[{16+2*i}:{17+2*i}], v7 offset:{128*i}")
    a("s_mov_b32 s24, 0x05040100"); a("s_mov_b32 s25, 0x07060302")
    a("s_waitcnt lgkmcnt(0)")
    for r in range(4):
        for c in range(4):
            a(f"v_perm_b32 v{32+4*r+c}, v{16+2*(2*c+1)+(r>>1)}, v{16+2*(2*c)+(r>>1)}, s{24+(r&1)}")
    for r in range(4):
        a(f"buffer_store_dwordx4 v[{32+4*r}:{35+4*r}], v8, s[12:15], 0 offen offset:{1280*r} {cfg.st_out}")
    a("L_FINISH:")
    if cfg.stamps:
        a("s_mov_b32 s98, s68"); a("s_mov_b32 s99, s69")
        a(f"{cfg.clk} s[100:101]")
        stamp_flush(a, cfg, 16)
    a("L_END:")
    a("s_endpgm")
    body = a.finish()
    kd = f""".section .rodata,"a"
.p2align 6
.amdhsa_kernel {KNAME}
  .amdhsa_next_free_vgpr 216
  .amdhsa_next_free_sgpr 102
  .amdhsa_accum_offset 168
  .amdhsa_group_segment_fixed_size 0
  .amdhsa_kernarg_size 136
  .amdhsa_user_sgpr_count 2
  .amdhsa_user_sgpr_kernarg_segment_ptr 1
  .amdhsa_system_sgpr_workgroup_id_x 1
  .amdhsa_float_denorm_mode_32 3
.end_amdhsa_kernel
"""
    header = open(__file__.replace("gen3.py", "header.txt")).read()
    return header + f"; @launch grid=(256,1,1) block=(512,1,1) lds={LDS_TOTAL}\n" + '.amdgcn_target "amdgcn-amd-amdhsa--gfx950"\n' + body + kd

if __name__ == "__main__":
    cfg = Cfg()
    for kv in sys.argv[2:]:
        k, v = kv.split("=", 1)
        setattr(cfg, k, (v == "True") if v in ("True", "False") else (int(v) if v.lstrip("-").isdigit() else v))
    open(sys.argv[1], "w").write(gen(cfg))
```

```python
import sys, struct
from asmlib import Asm

S, D = 2048, 640
XROW = 4224
WS_X, WS_G, WS_OT, WS_TS = 0, 0x7B0000, 0x800000, 0xC00000
WS_MB1, WS_MBG, WS_MB2, WS_MB3 = 0xD00000, 0xD10000, 0xD20000, 0xD30000
NAME = "gated_mix__ssm_conv_h3__ssm_conv_s4d__prompt"
KNAME = NAME + "_kernel"
XCP = 4160; XARR = 4*XCP; L_K = 6*XARR; KARR = 4608; L_G = L_K + 6*KARR
LDS_TOTAL = 163840
L_ST = L_G
ST_Q, ST_V, ST_K = 0, 10368, 20736
SLOT = 53*256
L_CNT = LDS_TOTAL - 16
PSET = ([0, 3, 4, 7], [1, 2, 5, 6])
SENT = 0xFFFFFFFF

class Cfg:
    nt_in = "nt"
    st_x = "sc1"; ld_x = "sc1"; st_ot = "sc1"; ld_ot = "sc1"; st_out = "sc1"; st_flag = "sc1"; ld_flag = "sc1"
    stamps = False; clk = "s_memrealtime"
    spin_max = 100000
    sleep = 0
    sentinel = True
    psleep = 8
    prio = True
    sent_early = True
    sent_mode = "w6"
    frac = 0.75

def hexf(x): return "0x%08x" % struct.unpack("<I", struct.pack("<f", float(x)))[0]

NST = 16
def stamp(a, cfg, i):
    if cfg.stamps: a(f"{cfg.clk} s[{70+2*i}:{71+2*i}]")
def stamp_flush(a, cfg):
    if not cfg.stamps: return
    a("s_waitcnt lgkmcnt(0)")
    a(f"s_add_u32 s4, s64, {WS_TS}"); a("s_addc_u32 s5, s65, 0")
    a("s_lshl_b32 s6, s2, 3"); a("s_add_u32 s6, s6, s3"); a("s_lshl_b32 s6, s6, 7")
    a("s_mov_b64 exec, 1")
    a("v_mov_b32 v4, s6")
    for i in range(NST):
        a(f"v_mov_b32 v6, s{70+2*i}"); a(f"v_mov_b32 v7, s{71+2*i}")
        a(f"global_store_dwordx2 v4, v[6:7], s[4:5] offset:{8*i}")
        a("s_nop 1")

def srd(a, s, lo, hi, size):
    a(f"s_mov_b32 s{s}, s{lo}"); a(f"s_and_b32 s{s+1}, s{hi}, 0xffff")
    a(f"s_mov_b32 s{s+2}, {size}"); a(f"s_mov_b32 s{s+3}, 0x00020000")
def srd_off(a, s, lo, hi, off, size):
    a(f"s_add_u32 s{s}, s{lo}, {off}"); a(f"s_addc_u32 s{s+1}, s{hi}, 0"); a(f"s_and_b32 s{s+1}, s{s+1}, 0xffff")
    a(f"s_mov_b32 s{s+2}, {size}"); a(f"s_mov_b32 s{s+3}, 0x00020000")
def cmul(a, d, z, w, t=2):
    a(f"v_pk_mul_f32 v[{t}:{t+1}], v[{z}:{z+1}], v[{w}:{w+1}] op_sel:[0,0] op_sel_hi:[1,0]")
    a(f"v_pk_fma_f32 v[{d}:{d+1}], v[{z}:{z+1}], v[{w}:{w+1}], v[{t}:{t+1}] op_sel:[1,1,0] op_sel_hi:[0,1,1] neg_lo:[1,0,0]")

def mb_send(a, cfg, region, nlanes, mode):
    a("v_and_b32 v4, 63, v0")
    if mode == "grp":
        a("v_lshl_add_u32 v4, v4, 3, s19"); a("v_lshlrev_b32 v4, 8, v4"); a("s_lshl_b32 s21, s20, 3")
    else:
        a("s_lshl_b32 s21, s20, 3"); a("v_add_u32 v4, s21, v4"); a("v_lshlrev_b32 v4, 7, v4"); a("s_lshl_b32 s21, s19, 3")
    a(f"s_add_u32 s21, s21, {region}"); a("v_add_u32 v4, s21, v4")
    a("v_mov_b32 v6, s66"); a("v_mov_b32 v7, s67")
    a(f"s_mov_b64 exec, {hex((1 << nlanes) - 1)}")
    a(f"buffer_store_dwordx2 v[6:7], v4, s[60:63], 0 offen {cfg.st_flag}")
    a("s_mov_b64 exec, -1")
def mb_poll(a, cfg, tag, region, nlanes, shift):
    a("v_and_b32 v4, 63, v0"); a("v_lshlrev_b32 v4, 3, v4")
    a(f"s_lshl_b32 s21, s2, {shift}"); a(f"s_add_u32 s21, s21, {region}"); a("v_add_u32 v4, s21, v4")
    a(f"s_mov_b64 exec, {hex((1 << nlanes) - 1)}")
    a(f"s_mov_b32 s21, {cfg.spin_max}")
    ld = lambda r: a(f"buffer_load_dwordx2 v[{r}:{r+1}], v4, s[60:63], 0 offen {cfg.ld_flag}")
    ld(100); a(f"s_sleep {cfg.psleep}"); ld(102); a(f"s_sleep {cfg.psleep}"); ld(104)
    a(f"POLL_{tag}:")
    for r in (100, 102, 104):
        a("s_waitcnt vmcnt(2)")
        a(f"v_cmp_ne_u32 vcc, s66, v{r}"); a(f"v_cmp_ne_u32 s[22:23], s67, v{r+1}"); a("s_or_b64 vcc, vcc, s[22:23]")
        a(f"s_cbranch_vccz POLL_{tag}_OK")
        ld(r)
    a("s_sub_u32 s21, s21, 1"); a("s_cmp_eq_u32 s21, 0"); a(f"s_cbranch_scc0 POLL_{tag}")
    a(f"POLL_{tag}_OK:")
    a("s_mov_b64 exec, -1")

def op_loads(pairs, b, A0, B0, VA, VB, offA, offB):
    L = []; seen = []
    for (aa, cc) in pairs:
        if ("A", aa) not in seen: seen.append(("A", aa))
        if ("B", cc) not in seen: seen.append(("B", cc))
    for kind, i in seen:
        if kind == "A":
            L.append(f"ds_read_b64 v[{A0+4*i}:{A0+4*i+1}], v{VA} offset:{offA(i, b, 0)}")
            L.append(f"ds_read_b64 v[{A0+4*i+2}:{A0+4*i+3}], v{VA} offset:{offA(i, b, 1)}")
        else:
            L.append(f"ds_read_b128 v[{B0+4*i}:{B0+4*i+3}], v{VB} offset:{offB(i, b)}")
    return L

def mfma_iter(a, pairs, acc_of, A0, B0, fill, first, frac):
    a("s_waitcnt lgkmcnt(0)")
    k = 0; seen = set()
    for idx, (aa, cc) in enumerate(pairs):
        d = acc_of(aa, cc)
        c = "0" if (first and d not in seen) else f"v[{d}:{d+3}]"
        seen.add(d)
        a(f"v_mfma_f32_16x16x32_bf16 v[{d}:{d+3}], v[{A0+4*aa}:{A0+4*aa+3}], v[{B0+4*cc}:{B0+4*cc+3}], {c}")
        want = -(-len(fill) * (idx + 1) // max(1, int(len(pairs) * frac)))
        while k < min(len(fill), want): a(fill[k]); k += 1
    while k < len(fill): a(fill[k]); k += 1

def gen(cfg):
    a = Asm()
    a.lines += [".text", f".globl {KNAME}", ".p2align 8", f".type {KNAME},@function", f"{KNAME}:"]
    nt = cfg.nt_in
    a("s_cmp_ge_u32 s2, 256")
    a("s_cbranch_scc1 L_END")
    a("s_load_dwordx8 s[36:43], s[0:1], 56")
    a("s_load_dwordx2 s[44:45], s[0:1], 88")
    a("s_load_dwordx4 s[4:7], s[0:1], 0")
    a("s_load_dwordx4 s[8:11], s[0:1], 16")
    a("s_load_dwordx2 s[12:13], s[0:1], 120")
    a("s_load_dwordx2 s[64:65], s[0:1], 128")
    a("s_load_dwordx2 s[46:47], s[0:1], 104")
    a("s_load_dwordx4 s[48:51], s[0:1], 32")
    a("s_load_dwordx2 s[52:53], s[0:1], 96")
    a("s_load_dwordx2 s[54:55], s[0:1], 112")
    a("v_lshrrev_b32 v1, 6, v0")
    a("v_and_b32 v2, 63, v0")
    a("v_readfirstlane_b32 s3, v1")
    a("v_mov_b32 v3, 0"); a(f"v_mov_b32 v4, {L_CNT}")
    a("ds_write_b32 v4, v3")
    a("ds_write_b32 v4, v3 offset:4")
    a(f"v_mov_b32 v5, {L_CNT - 16}")
    a("ds_write_b32 v5, v3"); a("ds_write_b32 v5, v3 offset:4"); a("ds_write_b32 v5, v3 offset:8"); a("ds_write_b32 v5, v3 offset:12")
    for i in range(NST): stamp(a, cfg, i)
    a("s_and_b32 s19, s2, 7"); a("s_lshr_b32 s20, s2, 3")
    a("s_mul_i32 s17, s19, 80"); a("s_lshr_b32 s21, s20, 1"); a("s_mul_i32 s21, s21, 5"); a("s_add_u32 s17, s17, s21")
    a("s_and_b32 s18, s20, 1"); a("s_mul_i32 s21, s18, 3"); a("s_add_u32 s16, s17, s21"); a("s_add_u32 s17, s17, 2")
    a("s_waitcnt lgkmcnt(0)")
    a("s_barrier")
    a("s_cmp_lt_u32 s3, 5")
    a("s_cbranch_scc1 L_T")
    a("s_sub_u32 s22, s3, 5")
    a("s_add_u32 s14, s16, s22"); a("s_cmp_eq_u32 s22, 2"); a("s_cselect_b32 s14, s17, s14")
    P = 152
    a("s_mul_i32 s23, s14, 384"); a("v_lshl_add_u32 v6, v2, 1, s23")
    a("s_lshl_b32 s23, s14, 1"); a("v_mov_b32 v7, s23")
    srd(a, 56, 44, 45, D*2)
    a(f"buffer_load_ushort v{P+12}, v7, s[56:59], 0 offen")
    for i in range(4):
        srd(a, 24 + 4*i, 36 + 2*i, 37 + 2*i, D*192*2)
        for st_ in range(3):
            a(f"buffer_load_ushort v{P+4*st_+i}, v6, s[{24+4*i}:{27+4*i}], 0 offen offset:{128*st_}")
    a(f"s_mul_i32 s15, s22, {2*KARR}"); a(f"s_add_u32 s15, s15, {L_K}")
    a(f"s_mul_i32 s21, s22, {SLOT}")
    AV = 16
    a("v_lshlrev_b32 v7, 2, v2"); a("v_add_u32 v7, s21, v7")
    for c in range(16): a(f"v_xor_b32 v{AV+c}, {c << 4}, v7")
    RX, RY = 32, 40
    a("v_and_b32 v8, 31, v2"); a("v_lshrrev_b32 v9, 5, v2"); a("v_min_u32 v10, 20, v8")
    for (R, rowreg, rowoff) in ((RX, 10, 32), (RY, 8, 0)):
        a(f"v_and_b32 v11, 15, v{rowreg}"); a("v_xor_b32 v11, v11, v9"); a("v_lshlrev_b32 v11, 4, v11")
        a(f"v_lshl_add_u32 v11, v{rowreg}, 8, v11")
        if rowoff: a(f"v_add_u32 v11, {rowoff*256}, v11")
        a("v_add_u32 v11, s21, v11")
        for i in range(8): a(f"v_xor_b32 v{R+i}, {32*i}, v11")
    ACC = 48
    for i in range(4): a(f"v_mov_b32 v{8+i}, 0")
    a("v_lshlrev_b32 v3, 4, v2"); a("v_add_u32 v6, s15, v3")
    a("s_mov_b64 exec, 0x3fffffff")
    a("ds_write_b128 v6, v[8:11]"); a(f"ds_write_b128 v6, v[8:11] offset:{KARR}")
    a("s_mov_b64 exec, -1")
    for i in range(16): a(f"v_mov_b32 v{ACC+i}, 0")
    stamp(a, cfg, 1)
    a("s_waitcnt vmcnt(0)")
    stamp(a, cfg, 2)
    a(f"v_lshlrev_b32 v6, 16, v{P+12}"); a("v_mul_f32 v6, 0x3fb8aa3b, v6"); a("v_exp_f32 v6, v6")
    a("v_cvt_pk_bf16_f32 v6, v6, v6"); a("v_lshlrev_b32 v6, 16, v6"); a("v_add_f32 v7, v6, v6")
    E1, E2, E4, E8, E256, E128, Z, Z2, C = 64, 66, 68, 70, 72, 74, 76, 78, 80
    Q1, Q2, Q3 = 82, 84, 86
    OA, OB = 88, 120
    class Em:
        def __init__(s): s.t = a
    def capture(fn):
        L = Asm(); fn(L); return L.lines
    def cexp(b, dst, h):
        if h == 1:
            b("v_exp_f32 v8, v14"); b("v_fract_f32 v9, v15")
        else:
            b(f"v_mul_f32 v8, {hexf(h)}, v14"); b(f"v_mul_f32 v9, {hexf(h)}, v15")
            b("v_exp_f32 v8, v8"); b("v_fract_f32 v9, v9")
        b(f"v_cos_f32 v{dst}, v9"); b(f"v_sin_f32 v{dst+1}, v9")
        b(f"v_mul_f32 v{dst}, v8, v{dst}"); b(f"v_mul_f32 v{dst+1}, v8, v{dst+1}")
    def setup(b):
        b(f"v_lshlrev_b32 v8, 16, v{P}"); b("v_mul_f32 v8, 0x3fb8aa3b, v8"); b("v_exp_f32 v8, v8")
        b(f"v_lshlrev_b32 v15, 16, v{P+1}"); b("v_mul_f32 v15, v15, v6"); b("v_mul_f32 v15, 0.15915494, v15")
        b("v_cvt_pk_bf16_f32 v8, v8, v8"); b("v_lshlrev_b32 v8, 16, v8")
        b("v_mul_f32 v14, v8, v6"); b("v_mul_f32 v14, 0xbfb8aa3b, v14")
        b(f"v_lshlrev_b32 v{C}, 16, v{P+2}"); b(f"v_lshlrev_b32 v{C+1}, 16, v{P+3}")
        b(f"v_mul_f32 v{C}, v{C}, v7"); b(f"v_mul_f32 v{C+1}, v{C+1}, v7")
        cexp(b, E1, 1); cexp(b, E8, 8); cexp(b, E256, 256); cexp(b, E128, 128)
        cmul(b, E2, E1, E1); cmul(b, E4, E2, E2)
        cmul(b, Q1, C, E256); cmul(b, Q2, Q1, E256); cmul(b, Q3, Q2, E256)
        for i in range(8): b(f"v_mov_b32 v{P+i}, v{P+4+i}")
    pend = []; rot = [0]
    def flush(keep=0):
        while len(pend) > keep: a(pend.pop(0))
    def store_pair(rowA, za, rowB, zb, neg):
        n = "-" if neg else ""
        t = (8, 10, 12)[rot[0] % 3]; rot[0] += 1
        a(f"v_cvt_pk_bf16_f32 v{t}, v{za}, {n}v{za+1}")
        if rowB is None:
            w = f"ds_write_b32 v{AV + (rowA & 15)}, v{t} offset:{rowA*256}"
        else:
            assert (rowA & 15) == (rowB & 15)
            a(f"v_cvt_pk_bf16_f32 v{t+1}, v{zb}, {n}v{zb+1}")
            w = f"ds_write2st64_b32 v{AV + (rowA & 15)}, v{t}, v{t+1} offset0:{rowA} offset1:{rowB}"
        flush(1); pend.append(w)
    def chains():
        a(f"v_mov_b32 v{Z}, 1.0"); a(f"v_mov_b32 v{Z+1}, 0")
        store_pair(0, Z, 16, E128, False)
        cmul(a, Z2, E128, E8)
        store_pair(1, E8, 17, Z2, False)
        cmul(a, Z, E8, E8); cmul(a, Z2, Z2, E8, 4)
        store_pair(2, Z, 18, Z2, False)
        for lam in range(3, 16):
            cmul(a, Z, Z, E8); cmul(a, Z2, Z2, E8, 4)
            store_pair(lam, Z, lam + 16, Z2, False)
        cmul(a, Z, Q1, E2)
        store_pair(32+0, C, 32+16, Z, True)
        cmul(a, Z2, C, E1); cmul(a, Z, Z, E2, 4)
        store_pair(32+1, Z2, 32+17, Z, True)
        cmul(a, Z2, Z2, E1); cmul(a, Z, Z, E2, 4)
        store_pair(32+2, Z2, 32+18, Z, True)
        cmul(a, Z2, Z2, E1); cmul(a, Z, Q2, E4, 4)
        store_pair(32+3, Z2, 32+19, Z, True)
        cmul(a, Z2, Z2, E1); cmul(a, Z, Q3, E4, 4)
        store_pair(32+4, Z2, 32+20, Z, True)
        cmul(a, Z, Q3, E256, 4)
        store_pair(32+8, Q1, None, None, True)
        cmul(a, Z2, Z2, E1); store_pair(32+5, Z2, None, None, True)
        store_pair(32+11, Z, None, None, True)
        cmul(a, Z2, Z2, E1); cmul(a, Z, Z, E256, 4); store_pair(32+6, Z2, None, None, True)
        store_pair(32+12, Z, None, None, True)
        cmul(a, Z2, Z2, E1); cmul(a, Z, Z, E256, 4); store_pair(32+7, Z2, None, None, True)
        store_pair(32+13, Z, None, None, True)
        cmul(a, Z, Z, E256, 4); store_pair(32+9, Q2, None, None, True)
        store_pair(32+14, Z, None, None, True)
        cmul(a, Z, Z, E256, 4); store_pair(32+10, Q3, None, None, True)
        store_pair(32+15, Z, None, None, True)
        flush()
    setup(a)
    a("s_mov_b32 s23, 3")
    a("L_GEN:")
    chains()
    a("s_waitcnt lgkmcnt(0)")
    for i in range(8):
        a(f"ds_read_b128 v[{OA+4*i}:{OA+4*i+3}], v{RX+i}")
        a(f"ds_read_b128 v[{OB+4*i}:{OB+4*i+3}], v{RY+i}")
    su = capture(setup); per = -(-len(su) // 8); k = 0
    for i in range(8):
        for l in su[k:k+per]: a(l)
        k += per
        a(f"s_waitcnt lgkmcnt({14-2*i})")
        a(f"v_mfma_f32_32x32x16_bf16 v[{ACC}:{ACC+15}], v[{OA+4*i}:{OA+4*i+3}], v[{OB+4*i}:{OB+4*i+3}], v[{ACC}:{ACC+15}]")
    a("s_sub_u32 s23, s23, 1")
    if cfg.stamps:
        a("s_cmp_eq_u32 s23, 2"); a("s_cbranch_scc0 L_GS1"); stamp(a, cfg, 9); a("L_GS1:")
        a("s_cmp_eq_u32 s23, 1"); a("s_cbranch_scc0 L_GS2"); stamp(a, cfg, 11); a("L_GS2:")
    a("s_cmp_lg_u32 s23, 0")
    a("s_cbranch_scc1 L_GEN")
    stamp(a, cfg, 3)
    a("v_and_b32 v2, 63, v0")
    a("v_and_b32 v8, 31, v2"); a("v_lshrrev_b32 v9, 5, v2")
    a("v_lshlrev_b32 v10, 2, v8"); a("v_lshl_add_u32 v10, v9, 9, v10"); a("v_add_u32 v10, s21, v10")
    a(f"s_add_u32 s22, s15, {KARR + 480}")
    a("v_lshlrev_b32 v11, 4, v2"); a("v_add_u32 v11, s22, v11")
    a("s_mov_b32 s23, 0x0000ffff")
    a("v_lshlrev_b32 v13, 2, v8"); a("v_add_u32 v13, s21, v13")
    a("v_lshlrev_b32 v14, 2, v2"); a("v_add_u32 v14, s21, v14")
    for r in range(12):
        a(f"v_cvt_pk_bf16_f32 v{16+r}, v{ACC+r}, v{ACC+r}")
    for r in range(12):
        row = 8*(r >> 2) + (r & 3)
        a(f"ds_write_b32 v10, v{16+r} offset:{row*128}")
    a("s_waitcnt lgkmcnt(0)")
    T = 64
    for r in range(8): a(f"ds_read_b32 v{T+r}, v13 offset:{r*128}")
    a(f"ds_read_b32 v{T+8}, v13 offset:{8*128}"); a(f"ds_read_b32 v{T+9}, v13 offset:{16*128}")
    a(f"ds_read_b32 v{T+10}, v13 offset:{17*128}"); a(f"ds_read_b32 v{T+11}, v13 offset:{18*128}")
    a(f"ds_read_b32 v{T+12}, v13 offset:{8*128+4}"); a(f"ds_read_b32 v{T+13}, v14 offset:{9*128}")
    a(f"ds_read_b32 v{T+14}, v14 offset:{19*128}")
    a("s_waitcnt lgkmcnt(4)")
    a(f"ds_read_b32 v{T+15}, v14 offset:{9*128+4}"); a(f"ds_read_b32 v{T+16}, v14 offset:{11*128}")
    a(f"ds_read_b32 v{T+17}, v14 offset:{11*128+4}"); a(f"ds_read_b32 v{T+18}, v14 offset:{13*128}")
    a(f"ds_read_b32 v{T+19}, v14 offset:{13*128+4}")
    def mix(d, lo, hi): a(f"v_bfi_b32 v{d}, s23, v{lo}, v{hi}")
    O = 88
    a("v_cmp_gt_u32 vcc, 32, v2")
    a("v_and_b32 v15, 1, v2"); a("v_cmp_eq_u32 s[24:25], 1, v15")
    a("s_waitcnt lgkmcnt(0)")
    for i in range(4): mix(O+i, T+2*i, T+2*i+1)
    a(f"v_mov_b32 v{O+4}, v{T+8}"); mix(O+5, T+9, T+10); a(f"v_mov_b32 v{O+6}, v{T+10}"); mix(O+7, T+11, T+12)
    for i in range(4): a(f"v_cndmask_b32 v{O+i}, v{O+4+i}, v{O+i}, vcc")
    a(f"v_mov_b32 v{O+8}, v{T+13}"); mix(O+9, T+13, T+14); a(f"v_mov_b32 v{O+10}, v{T+14}"); a(f"v_mov_b32 v{O+11}, v{T+15}")
    for k in range(2):
        s0, s1 = T+16+2*k, T+17+2*k
        d = O + 12 + 4*k
        a(f"v_mov_b32 v{d}, v{s0}"); a(f"v_mov_b32 v{d+1}, v{s0}"); mix(d+2, s0, s1)
        a(f"v_cndmask_b32 v{d+2}, v{d+2}, v{s1}, s[24:25]"); a(f"v_mov_b32 v{d+3}, v{s1}")
    a(f"ds_write_b128 v11, v[{O}:{O+3}]")
    a(f"ds_write_b128 v11, v[{O+8}:{O+11}] offset:1024")
    a(f"ds_write_b128 v11, v[{O+12}:{O+15}] offset:2048")
    a(f"ds_write_b128 v11, v[{O+16}:{O+19}] offset:3072")
    if cfg.sentinel and cfg.sent_mode == "w6":
        a("s_cmp_eq_u32 s3, 6"); a("s_cbranch_scc0 L_PRE_B2")
        srd_off(a, 56, 64, 65, WS_OT, D*XROW)
        a("v_lshrrev_b32 v3, 3, v2"); a(f"v_mul_u32_u24 v3, {XROW}, v3"); a("v_and_b32 v4, 7, v2"); a("v_lshl_add_u32 v3, v4, 4, v3")
        a(f"s_mul_i32 s22, s19, {80*XROW}"); a("s_lshl_b32 s23, s20, 7"); a("s_add_u32 s22, s22, s23"); a("v_add_u32 v3, s22, v3")
        for i in range(4): a(f"v_mov_b32 v{8+i}, -1")
        for i in range(10):
            a(f"s_mov_b32 s22, {8*XROW*i}")
            a(f"buffer_store_dwordx4 v[8:11], v3, s[56:59], s22 offen {cfg.st_ot}")
    a("s_branch L_PRE_B2")
    a("L_T:")
    if cfg.prio: a("s_setprio 3")
    a("s_cmp_eq_u32 s3, 4"); a("s_cbranch_scc0 L_T1")
    a("s_cmp_eq_u32 s2, 0"); a("s_cbranch_scc0 L_T1")
    srd(a, 40, 12, 13, 256)
    a("s_memrealtime s[22:23]"); a("s_waitcnt lgkmcnt(0)")
    a("s_or_b32 s22, s22, 1"); a("s_or_b32 s23, s23, 0x80000000")
    a("v_mov_b32 v8, s22"); a("v_mov_b32 v9, s23"); a("v_mov_b32 v10, 0")
    a("s_mov_b64 exec, 1")
    a(f"buffer_store_dwordx2 v[8:9], v10, s[40:43], 0 offen {cfg.st_flag}")
    a("s_mov_b64 exec, -1")
    a("L_T1:")
    srd(a, 24, 4, 5, S*D*2); srd(a, 28, 6, 7, S*D*2); srd(a, 32, 8, 9, S*D*2)
    a("v_mul_u32_u24 v3, 205, v2"); a("v_lshrrev_b32 v3, 11, v3")
    a("v_mul_u32_u24 v4, 10, v3"); a("v_sub_u32 v4, v2, v4")
    a("v_mul_u32_u24 v3, 1280, v3"); a("v_lshl_add_u32 v3, v4, 4, v3")
    a("s_mul_i32 s21, s20, 81920"); a("s_mul_i32 s22, s19, 160"); a("s_add_u32 s21, s21, s22")
    a("v_add_u32 v3, s21, v3"); a("v_subrev_u32 v4, 3840, v3"); a("v_add_u32 v5, 1280, v3")
    a("s_mov_b32 exec_hi, 0xff")
    def dma_i(ireg):
        a(f"s_mul_i32 s22, {ireg}, 640"); a(f"s_lshr_b32 s23, {ireg}, 1"); a("s_lshl_b32 s23, s23, 4")
        a("s_add_u32 s22, s22, s23"); a(f"s_mul_i32 s14, {ireg}, 5120"); a("s_sub_u32 s23, s14, 5120")
    a("s_cmp_eq_u32 s3, 0"); a("s_cbranch_scc0 L_DMA")
    a(f"s_mov_b32 m0, {L_ST + ST_K}"); a("s_nop 0")
    a(f"buffer_load_dwordx4 v4, s[28:31], 0 offen {nt} lds")
    a("L_DMA:")
    a("s_mov_b32 s15, s3")
    a("L_DMA_LOOP:")
    dma_i("s15")
    a("s_cmp_eq_u32 s15, 0"); a("s_cbranch_scc1 L_DMA_VQ")
    a(f"s_add_u32 m0, s22, {L_ST + ST_K}"); a("s_nop 0")
    a(f"buffer_load_dwordx4 v5, s[28:31], s23 offen {nt} lds")
    a("s_cmp_eq_u32 s15, 16"); a("s_cbranch_scc1 L_DMA_DONE")
    a("L_DMA_VQ:")
    a(f"s_add_u32 m0, s22, {L_ST + ST_V}"); a("s_nop 0")
    a(f"buffer_load_dwordx4 v3, s[32:35], s14 offen {nt} lds")
    a(f"s_add_u32 m0, s22, {L_ST + ST_Q}"); a("s_nop 0")
    a(f"buffer_load_dwordx4 v3, s[24:27], s14 offen {nt} lds")
    a("s_add_u32 s15, s15, 5"); a("s_cmp_le_u32 s15, 16"); a("s_cbranch_scc1 L_DMA_LOOP")
    a("L_DMA_DONE:")
    a("s_mov_b64 exec, -1")
    srd(a, 36, 10, 11, D*8)
    srd(a, 40, 46, 47, D*2)
    a("v_lshrrev_b32 v11, 3, v0"); a("v_and_b32 v13, 7, v0")
    a("s_mul_i32 s23, s19, 640"); a("v_lshl_add_u32 v12, v11, 4, s23")
    a("buffer_load_dwordx4 v[16:19], v12, s[36:39], 0 offen")
    def dscalar(dst, base, ch):
        a(f"s_lshl_b32 s22, {ch}, 1"); a("s_andn2_b32 s22, s22, 3")
        a(f"s_load_dword s{dst}, s[{base}:{base+1}], s22")
    a("s_and_b32 s23, s3, 3"); a("s_lshl_b32 s23, s23, 1"); a("s_lshl_b32 s14, s2, 3"); a("s_add_u32 s23, s23, s14")
    a("v_lshrrev_b32 v12, 5, v2"); a("v_add_u32 v12, s23, v12")
    a("v_and_b32 v14, 31, v2"); a("v_lshlrev_b32 v14, 4, v14")
    a("v_mul_u32_u24 v15, 1280, v12"); a("v_add_u32 v15, v15, v14")
    a("v_add_u32 v20, 1024, v15"); a("v_cmp_gt_u32 vcc, 256, v14"); a("v_mov_b32 v21, -1"); a("v_cndmask_b32 v20, v21, v20, vcc")
    a("v_mul_u32_u24 v21, 1296, v13"); a("v_lshl_add_u32 v21, v11, 2, v21"); a(f"v_add_u32 v21, {L_ST}, v21")
    a("s_mul_i32 s23, s19, 80"); a("v_lshl_add_u32 v22, v11, 1, s23")
    a(f"s_movk_i32 s14, {2*XROW}"); a("v_mul_lo_u32 v22, v22, s14")
    a("s_lshl_b32 s15, s20, 7"); a("s_sub_u32 s15, 4080, s15")
    a("v_lshlrev_b32 v23, 4, v13"); a("v_sub_u32 v23, s15, v23"); a("v_add_u32 v22, v22, v23")
    srd_off(a, 44, 64, 65, WS_X, 1280*XROW)
    nsent = 0
    if cfg.sentinel and cfg.sent_mode != "w6":
        nsent = 2
        srd_off(a, 56, 64, 65, WS_OT, D*XROW)
        a("v_lshrrev_b32 v3, 3, v2"); a(f"v_mul_u32_u24 v3, {XROW}, v3"); a("v_and_b32 v4, 7, v2"); a("v_lshl_add_u32 v3, v4, 4, v3")
        a(f"s_mul_i32 s22, s19, {80*XROW}"); a("s_lshl_b32 s23, s20, 7"); a("s_add_u32 s22, s22, s23"); a("v_add_u32 v3, s22, v3")
        for i in range(4): a(f"v_mov_b32 v{8+i}, -1")
        a(f"s_mul_i32 s22, s3, {16*XROW}"); a(f"s_add_u32 s23, s22, {8*XROW}")
        if cfg.sent_early:
            a(f"buffer_store_dwordx4 v[8:11], v3, s[56:59], s22 offen {cfg.st_ot}")
            a(f"buffer_store_dwordx4 v[8:11], v3, s[56:59], s23 offen {cfg.st_ot}")
    a("s_cmp_eq_u32 s3, 4"); a("s_cbranch_scc1 L_W4")
    stamp(a, cfg, 1)
    a("s_waitcnt vmcnt(0)")
    a("buffer_load_dwordx4 v[24:27], v15, s[24:27], 0 offen")
    a("buffer_load_dwordx4 v[28:31], v15, s[24:27], 0 offen offset:512")
    a("buffer_load_dwordx4 v[32:35], v20, s[24:27], 0 offen")
    a("buffer_load_dwordx4 v[36:39], v14, s[40:43], 0 offen")
    a("buffer_load_dwordx4 v[40:43], v14, s[40:43], 0 offen offset:512")
    a("buffer_load_dwordx4 v[44:47], v14, s[40:43], 0 offen offset:1024")
    a("s_branch L_TS0")
    a("L_W4:")
    srd(a, 40, 12, 13, 256)
    a("v_mov_b32 v26, 0")
    a(f"buffer_load_dwordx2 v[24:25], v26, s[40:43], 0 offen {cfg.ld_flag}")
    stamp(a, cfg, 1)
    a("s_waitcnt vmcnt(0)")
    a(f"s_mov_b32 s21, {cfg.spin_max}")
    a("L_NONCE_CHK:")
    a("v_readfirstlane_b32 s66, v24"); a("v_readfirstlane_b32 s67, v25")
    a("s_cmp_eq_u32 s66, 0"); a("s_cselect_b32 s14, 0, s67"); a("s_cmp_lg_u32 s14, 0")
    a("s_cbranch_scc1 L_NONCE_OK")
    a("s_sub_u32 s21, s21, 1"); a("s_cmp_eq_u32 s21, 0"); a("s_cbranch_scc1 L_NONCE_OK")
    a(f"buffer_load_dwordx2 v[24:25], v26, s[40:43], 0 offen {cfg.ld_flag}")
    a("s_waitcnt vmcnt(0)")
    a("s_branch L_NONCE_CHK")
    a("L_NONCE_OK:")
    a(f"v_mov_b32 v4, {L_CNT}")
    a("s_mov_b64 exec, 1")
    a("ds_write_b64 v4, v[24:25] offset:8")
    a("s_mov_b64 exec, -1")
    a("L_TS0:")
    a(f"v_mov_b32 v4, {L_CNT}"); a("v_mov_b32 v5, 1")
    a("s_mov_b64 exec, 1")
    a("ds_add_u32 v4, v5")
    a("L_TSYNC:")
    a("ds_read_b32 v5, v4"); a("s_waitcnt lgkmcnt(0)")
    a("v_cmp_gt_u32 vcc, 5, v5"); a("s_cbranch_vccnz L_TSYNC")
    a("s_mov_b64 exec, -1")
    stamp(a, cfg, 2)
    if cfg.sentinel and not cfg.sent_early and cfg.sent_mode != "w6":
        a(f"buffer_store_dwordx4 v[8:11], v3, s[56:59], s22 offen {cfg.st_ot}")
        a(f"buffer_store_dwordx4 v[8:11], v3, s[56:59], s23 offen {cfg.st_ot}")
    KR, VR, QR = 48, 60, 68
    for r in range(11): a(f"ds_read_b32 v{KR+r}, v21 offset:{ST_K + r*160 + (r >> 3)*16}")
    for r in range(8): a(f"ds_read_b32 v{VR+r}, v21 offset:{ST_V + r*160}")
    for r in range(8): a(f"ds_read_b32 v{QR+r}, v21 offset:{ST_Q + r*160}")
    W = 80
    a(f"v_lshlrev_b32 v{W+0}, 16, v16");  a(f"v_lshlrev_b32 v{W+1}, 16, v18")
    a(f"v_and_b32 v{W+2}, 0xffff0000, v16"); a(f"v_and_b32 v{W+3}, 0xffff0000, v18")
    a(f"v_lshlrev_b32 v{W+4}, 16, v17");  a(f"v_lshlrev_b32 v{W+5}, 16, v19")
    a(f"v_and_b32 v{W+6}, 0xffff0000, v17"); a(f"v_and_b32 v{W+7}, 0xffff0000, v19")
    K2, V2, KV = 88, 110, 128
    a("s_mov_b32 s14, 0x05040100"); a("s_mov_b32 s15, 0x07060302")
    a("s_waitcnt lgkmcnt(0)")
    O2 = 144
    for e in range(2):
        for i in range(4): a(f"v_perm_b32 v{O2+8*e+4+i}, v{QR+6-2*i}, v{QR+7-2*i}, s{14+e}")
    st = cfg.st_x
    a(f"s_movk_i32 s22, {XROW}"); a(f"s_movk_i32 s23, {3*XROW}")
    a(f"buffer_store_dwordx4 v[{O2+4}:{O2+7}], v22, s[44:47], s22 offen {st}")
    a(f"buffer_store_dwordx4 v[{O2+12}:{O2+15}], v22, s[44:47], s23 offen {st}")
    for r in range(11):
        a(f"v_lshlrev_b32 v{K2+2*r}, 16, v{KR+r}"); a(f"v_and_b32 v{K2+2*r+1}, 0xffff0000, v{KR+r}")
    for r in range(8):
        a(f"v_lshlrev_b32 v{V2+2*r}, 16, v{VR+r}"); a(f"v_and_b32 v{V2+2*r+1}, 0xffff0000, v{VR+r}")
    def pk(op, d, *srcs): a(f"{op} v[{d}:{d+1}], " + ", ".join(f"v[{s_}:{s_+1}]" for s_ in srcs))
    for r in range(8): pk("v_pk_mul_f32", KV+2*r, K2+2*(r+0), W+6)
    for r in range(8): pk("v_pk_fma_f32", KV+2*r, K2+2*(r+1), W+4, KV+2*r)
    for r in range(8): pk("v_pk_fma_f32", KV+2*r, K2+2*(r+2), W+2, KV+2*r)
    for r in range(8): pk("v_pk_fma_f32", KV+2*r, K2+2*(r+3), W+0, KV+2*r)
    for r in range(8): pk("v_pk_mul_f32", KV+2*r, KV+2*r, V2+2*r)
    for e in range(2):
        for i in range(4): a(f"v_cvt_pk_bf16_f32 v{O2+8*e+i}, v{KV+2*(7-2*i)+e}, v{KV+2*(6-2*i)+e}")
    a(f"s_movk_i32 s22, {2*XROW}")
    a(f"buffer_store_dwordx4 v[{O2}:{O2+3}], v22, s[44:47], 0 offen {st}")
    a(f"buffer_store_dwordx4 v[{O2+8}:{O2+11}], v22, s[44:47], s22 offen {st}")
    stamp(a, cfg, 3)
    a("s_and_b32 s14, s3, 1"); a("s_cmp_eq_u32 s14, 0"); a("s_cbranch_scc0 L_NOSSM")
    a("s_lshr_b32 s22, s3, 1"); a("s_add_u32 s14, s16, s22"); a("s_cmp_eq_u32 s3, 4"); a("s_cselect_b32 s14, s17, s14")
    a("s_lshl_b32 s23, s14, 12")
    srd_off(a, 56, 48, 49, "s23", 4096)
    a("v_lshlrev_b32 v3, 4, v2")
    a(f"s_mul_i32 s14, s3, {KARR}")
    for q in range(4):
        a(f"s_add_u32 m0, s14, {L_K + 480 + 1024*q}"); a(f"s_movk_i32 s23, {1024*q}")
        a(f"buffer_load_dwordx4 v3, s[56:59], s23 offen {nt} lds")
    a("s_waitcnt vmcnt(4)")
    a("s_branch L_XACK0")
    a("L_NOSSM:")
    a("s_waitcnt vmcnt(0)")
    a("L_XACK0:")
    a("s_cmp_eq_u32 s3, 4"); a("s_cbranch_scc1 L_W4D")
    srd_off(a, 36, 64, 65, WS_G, 16384)
    stamp(a, cfg, 13)
    a(f"v_mov_b32 v4, {L_CNT}"); a("v_mov_b32 v5, 1")
    a("s_mov_b64 exec, 1")
    a("ds_add_u32 v4, v5 offset:4")
    a("s_mov_b64 exec, -1")
    a("v_mov_b32 v4, 0"); a("s_mov_b32 s14, 0x3f803f80")
    for c in range(3):
        for i in range(4):
            xq = 24 + 4*c + i; wq = 36 + 4*c + i; t = 48 + 4*((4*c+i) % 2)
            a(f"v_lshlrev_b32 v{t}, 16, v{xq}"); a(f"v_and_b32 v{t+1}, 0xffff0000, v{xq}")
            a(f"v_lshlrev_b32 v{t+2}, 16, v{wq}"); a(f"v_and_b32 v{t+3}, 0xffff0000, v{wq}")
            a(f"v_pk_mul_f32 v[{t}:{t+1}], v[{t}:{t+1}], v[{t+2}:{t+3}]")
            a(f"v_cvt_pk_bf16_f32 v{t}, v{t}, v{t+1}")
            a(f"v_dot2_f32_bf16 v4, v{t}, s14, v4")
    for sh in (1, 2, 4, 8):
        a(f"v_add_f32_dpp v4, v4, v4 row_shr:{sh} row_mask:0xf bank_mask:0xf bound_ctrl:0")
    a("v_add_f32_dpp v4, v4, v4 row_bcast:15 row_mask:0xa bank_mask:0xf")
    a("v_cvt_pk_bf16_f32 v4, v4, v4"); a("v_lshlrev_b32 v4, 16, v4")
    a("v_mul_f32 v5, 0xbfb8aa3b, v4"); a("v_exp_f32 v5, v5"); a("v_add_f32 v5, 1.0, v5"); a("v_rcp_f32 v5, v5")
    a("v_cvt_pk_bf16_f32 v5, v5, v5"); a("v_lshlrev_b32 v5, 16, v5")
    a("v_sub_f32 v6, 1.0, v5"); a("v_cvt_pk_bf16_f32 v6, v5, v6")
    a(f"v_mov_b32 v9, {L_CNT}"); a("ds_read_b32 v7, v9 offset:8")
    a("v_lshlrev_b32 v9, 3, v12"); a("v_and_b32 v8, 31, v2"); a("v_cmp_eq_u32 vcc, 31, v8")
    a("s_waitcnt lgkmcnt(0)")
    a("s_and_saveexec_b64 s[22:23], vcc")
    a(f"buffer_store_dwordx2 v[6:7], v9, s[36:39], 0 offen {st}")
    a("s_mov_b64 exec, -1")
    a("s_branch L_PRE_B2")
    a("L_W4D:")
    stamp(a, cfg, 13)
    a(f"v_mov_b32 v4, {L_CNT}")
    a("s_mov_b64 exec, 1")
    a("L_TSYNC2:")
    a("ds_read_b32 v5, v4 offset:4"); a("s_waitcnt lgkmcnt(0)")
    a("v_cmp_gt_u32 vcc, 4, v5"); a("s_cbranch_vccnz L_TSYNC2")
    a("s_mov_b64 exec, -1")
    stamp(a, cfg, 5)
    srd(a, 60, 64, 65, 0x1000000)
    mb_send(a, cfg, WS_MB1, 32, "grp")
    mb_poll(a, cfg, "A", WS_MB1, 32, 8)
    a("L_PRE_B2:")
    if cfg.prio: a("s_setprio 0")
    stamp(a, cfg, 4)
    for n_, (base, ch) in enumerate(((50, "s16"), (50, None), (50, "s17"), (52, "s16"), (52, None), (52, "s17"))):
        if ch is None: a("s_add_u32 s14, s16, 1"); ch = "s14"
        a(f"s_lshl_b32 s22, {ch}, 1"); a("s_and_b32 s22, s22, 0xfffffffc")
        a(f"s_load_dword s{8+n_}, s[{base}:{base+1}], s22")
    srd(a, 60, 64, 65, 0x1000000)
    a("v_and_b32 v2, 63, v0")
    a("s_lshr_b32 s21, s3, 1"); a("s_add_u32 s22, s16, s21"); a("s_cmp_ge_u32 s3, 4"); a("s_cselect_b32 s22, s17, s22")
    a("s_and_b32 s23, s3, 1")
    a("s_lshl_b32 s14, s22, 1"); a("s_add_u32 s14, s14, s23"); a(f"s_mul_i32 s14, s14, {XROW}")
    srd_off(a, 24, 64, 65, "s14", 4096)
    a(f"s_mul_i32 s34, s3, {XARR}"); a(f"s_mul_i32 s35, s3, {KARR}"); a(f"s_add_u32 s35, s35, {L_K}")
    a("v_lshlrev_b32 v3, 4, v2"); a("v_add_u32 v4, 4, v3")
    a("v_and_b32 v8, 15, v2"); a("v_lshrrev_b32 v9, 4, v2")
    a("v_sub_u32 v10, 3, v8"); a("v_and_b32 v10, 3, v10")
    a("v_lshlrev_b32 v11, 3, v9"); a("v_sub_u32 v11, v11, v8"); a("v_add_u32 v11, 2031, v11"); a("v_sub_u32 v11, v11, v10")
    a("v_lshlrev_b32 v11, 1, v11"); a(f"v_mul_u32_u24 v12, {XCP}, v10"); a("v_add_u32 v11, v11, v12"); a("v_subrev_u32 v11, 4032, v11")
    a("v_lshlrev_b32 v12, 5, v8"); a("v_lshl_add_u32 v12, v9, 4, v12")
    VA, VB, VA2, VB2, VY, VX = 13, 14, 15, 16, 17, 18
    a(f"v_add_u32 v{VA}, s34, v11"); a(f"v_add_u32 v{VB}, s35, v12")
    a("s_add_u32 s36, s23, 4"); a(f"s_mul_i32 s37, s36, {XARR}"); a(f"s_mul_i32 s38, s36, {KARR}"); a(f"s_add_u32 s38, s38, {L_K}")
    a("s_lshr_b32 s39, s3, 1"); a("s_sub_u32 s39, 1, s39"); a("s_lshl_b32 s39, s39, 8")
    a("s_add_u32 s40, s37, s39"); a("s_add_u32 s41, s38, s39")
    a(f"v_add_u32 v{VA2}, s40, v11"); a(f"v_add_u32 v{VB2}, s41, v12")
    a(f"v_lshlrev_b32 v{VY}, 5, v8"); a(f"v_lshl_add_u32 v{VY}, v9, 3, v{VY}")
    a(f"v_add_u32 v19, s35, v{VY}")
    a("v_lshrrev_b32 v5, 1, v2"); a(f"v_mul_u32_u24 v5, {XCP}, v5"); a("v_and_b32 v6, 1, v2")
    a("v_lshl_add_u32 v5, v6, 4, v5"); a("v_add_u32 v5, s34, v5")
    a(f"v_add_u32 v{VX}, s34, v3")
    for i in range(4): a(f"v_mov_b32 v{8+i}, 0")
    stamp(a, cfg, 6)
    a("s_and_b32 s14, s3, 5"); a("s_cmp_eq_u32 s14, 4"); a("s_cbranch_scc1 L_B3W")
    a("s_waitcnt vmcnt(0)")
    a("L_B3W:")
    a("s_waitcnt lgkmcnt(0)")
    a("s_barrier")
    stamp(a, cfg, 7)
    ld = cfg.ld_x
    W = 64
    def xload():
        for q in range(4):
            a(f"buffer_load_dwordx4 v[{W+8*q}:{W+8*q+3}], v3, s[24:27], 0 offen offset:{1024*q} {ld}")
            a(f"buffer_load_dwordx4 v[{W+8*q+4}:{W+8*q+7}], v3, s[24:27], 0 offen offset:{1024*q+16} {ld}")
        for cp, vreg in ((0, 3), (2, 4)):
            for q in range(4):
                a(f"s_add_u32 m0, s34, {cp*XCP + 1024*q}"); a(f"s_movk_i32 s36, {1024*q}")
                a(f"buffer_load_dwordx4 v{vreg}, s[24:27], s36 offen {ld} lds")
        a("s_mov_b64 exec, 0xff")
        a("ds_write_b128 v5, v[8:11] offset:4096")
        a("s_mov_b64 exec, -1")
        a("s_waitcnt vmcnt(8)")
        stamp(a, cfg, 8)
        for q in range(4):
            w = W + 8*q
            for j in range(4): a(f"v_alignbit_b32 v{96+j}, v{w+j+1}, v{w+j}, 16")
            for j in range(4): a(f"v_alignbit_b32 v{100+j}, v{w+j+2}, v{w+j+1}, 16")
            if q: pass
            a(f"ds_write_b128 v{VX}, v[96:99] offset:{1*XCP + 1024*q}")
            a(f"ds_write_b128 v{VX}, v[100:103] offset:{3*XCP + 1024*q}")
            W2 = None
        a("s_waitcnt vmcnt(0) lgkmcnt(0)")
    a("s_cmp_ge_u32 s3, 4"); a("s_cbranch_scc1 L_HELP")
    xload()
    stamp(a, cfg, 9)
    a("s_barrier")
    sets = [(20, 52), (84, 116)]
    ACC0, ACC2 = 148, 180
    pairs = [(aa, cc) for aa in range(8) for cc in range(8 - aa)]
    offA = lambda i, b, h: 512*(7-i) + 64*(7-b) + 8*h
    offB = lambda c, b: 512*c + 64*(7-b)
    offA2 = lambda i, b, h: 512*(7-i) + 64*(3-b) + 8*h
    offB2 = lambda c, b: 512*c + 64*(3-b)
    for l in op_loads(pairs, 0, *sets[0], VA, VB, offA, offB): a(l)
    a(f"v_mov_b32 v6, {L_CNT - 4}")
    for b in range(7):
        fill = op_loads(pairs, b+1, *sets[(b+1) & 1], VA, VB, offA, offB)
        if b == 6:
            a("L_C1:")
            a("ds_read_b32 v7, v6"); a("s_waitcnt lgkmcnt(0)")
            a("v_cmp_gt_u32 vcc, 2, v7"); a("s_cbranch_vccnz L_C1")
        mfma_iter(a, pairs, lambda aa, cc: ACC0 + 4*(aa+cc), *sets[b & 1], fill, b == 0, cfg.frac)
    a("s_cmp_eq_u32 s18, 0"); a("s_cbranch_scc0 L_C2_E1")
    ywr = []
    for p in range(8):
        tt = (4, 6)[p & 1]
        ywr += [f"v_cvt_pk_bf16_f32 v{tt}, v{ACC0+4*p}, v{ACC0+4*p+1}", f"v_cvt_pk_bf16_f32 v{tt+1}, v{ACC0+4*p+2}, v{ACC0+4*p+3}",
                f"ds_write_b64 v19, v[{tt}:{tt+1}] offset:{512*p}"]
    for e in range(2):
        if e == 1: a("L_C2_E1:")
        ps = PSET[e]
        prs = [(aa, cc) for aa in range(8) for cc in range(8 - aa) if aa + cc in ps]
        a("s_waitcnt lgkmcnt(0)")
        pre = op_loads(prs, 0, *sets[0], VA2, VB2, offA2, offB2)
        last = {aa + cc: idx for idx, (aa, cc) in enumerate(pairs)}
        ins = {i: [] for i in range(len(pairs))}
        for n_, l in enumerate(pre): ins[min(len(pairs)-1, n_ + 1)].append(l)
        for p_ in range(5):
            c0_, c1_, w_ = ywr[3*p_:3*p_+3]
            ins[min(35, last[p_] + 5)] += [c0_, c1_]; ins[min(35, last[p_] + 7)].append(w_)
        A0, B0 = sets[1]
        for idx, (aa, cc) in enumerate(pairs):
            d = ACC0 + 4*(aa+cc)
            a(f"v_mfma_f32_16x16x32_bf16 v[{d}:{d+3}], v[{A0+4*aa}:{A0+4*aa+3}], v[{B0+4*cc}:{B0+4*cc+3}], v[{d}:{d+3}]")
            for l in ins[idx]: a(l)
        stamp(a, cfg, 10)
        for b in range(4):
            fill = op_loads(prs, b+1, *sets[(b+1) & 1], VA2, VB2, offA2, offB2) if b < 3 else []
            if b == 0: fill = fill[:6] + ywr[15:17] + fill[6:9] + ywr[17:20] + fill[9:12] + ywr[20:23] + fill[12:15] + ywr[23:24] + fill[15:]
            if b == 1:
                a("s_waitcnt lgkmcnt(0)"); a("s_barrier")
            mfma_iter(a, prs, lambda aa, cc: ACC2 + 4*ps.index(aa+cc), *sets[b & 1], fill, b == 0, 0.95)
        if e == 0: a("s_branch L_C2_DONE")
    a("L_C2_DONE:")
    stamp(a, cfg, 11)
    def dscal_fix():
        a("s_waitcnt lgkmcnt(0)")
        for n_, ch in enumerate(("s16", None, "s17", "s16", None, "s17")):
            if ch is None: a("s_add_u32 s14, s16, 1"); ch = "s14"
            a(f"s_and_b32 s22, {ch}, 1"); a("s_lshl_b32 s22, s22, 4")
            a(f"s_lshr_b32 s{8+n_}, s{8+n_}, s22"); a(f"s_lshl_b32 s{8+n_}, s{8+n_}, 16")
    a("s_and_b32 s36, s3, 1"); a("s_lshl_b32 s39, s36, 2"); a("s_add_u32 s36, s36, 2"); a(f"s_mul_i32 s36, s36, {XARR}"); a(f"s_add_u32 s36, s36, {XCP}")
    a("v_add_u32 v4, s36, v3")
    a("s_lshl_b32 s37, s18, 9")
    a(f"v_add_u32 v5, s38, v{VY}")
    a("v_add_u32 v6, s37, v5"); a("v_subrev_u32 v7, s37, v5")
    a(f"s_add_u32 s39, s39, {L_CNT - 16}"); a("v_mov_b32 v8, s39"); a("v_mov_b32 v9, 1")
    def lds_sync(tag, vaddr, off, target):
        a("s_waitcnt lgkmcnt(0)")
        a("s_mov_b64 exec, 1")
        a(f"ds_add_u32 v{vaddr}, v9 offset:{off}")
        a(f"L_SY_{tag}:")
        a(f"ds_read_b32 v10, v{vaddr} offset:{off}"); a("s_waitcnt lgkmcnt(0)")
        a(f"v_cmp_gt_u32 vcc, {target}, v10"); a(f"s_cbranch_vccnz L_SY_{tag}")
        a("s_mov_b64 exec, -1")
    a("s_cmp_lt_u32 s3, 2"); a("s_cbranch_scc0 L_RED_HI")
    for (lbl, keep, give) in (("lo", (0, 1), (2, 3)), ("hi", (2, 3), (0, 1))):
        if lbl == "hi": a("L_RED_HI:")
        a("s_nop 4")
        for ti in give: a(f"ds_write_b128 v4, v[{ACC2+4*ti}:{ACC2+4*ti+3}] offset:{1024*ti}")
        lds_sync("R" + lbl, 8, 0, 2)
        for n_, ti in enumerate(keep): a(f"ds_read_b128 v[{20+4*n_}:{23+4*n_}], v4 offset:{1024*ti}")
        a("s_waitcnt lgkmcnt(0)")
        for n_, ti in enumerate(keep):
            for r in range(0, 4, 2):
                a(f"v_pk_add_f32 v[{20+4*n_+r}:{21+4*n_+r}], v[{20+4*n_+r}:{21+4*n_+r}], v[{ACC2+4*ti+r}:{ACC2+4*ti+r+1}]")
            a(f"v_cvt_pk_bf16_f32 v{28+2*n_}, v{20+4*n_}, v{21+4*n_}"); a(f"v_cvt_pk_bf16_f32 v{29+2*n_}, v{22+4*n_}, v{23+4*n_}")
        for n_, ti in enumerate(keep):
            if ti & 1: a(f"ds_write_b64 v7, v[{28+2*n_}:{29+2*n_}] offset:{1024*ti + 512}")
            else: a(f"ds_write_b64 v6, v[{28+2*n_}:{29+2*n_}] offset:{1024*ti}")
        if lbl == "lo": a("s_branch L_RED_DONE")
    a("L_RED_DONE:")
    a(f"v_mov_b32 v8, {L_CNT - 16}")
    lds_sync("Y2", 8, 8, 4)
    stamp(a, cfg, 12)
    dscal_fix()
    srd_off(a, 28, 64, 65, WS_OT, D*XROW)
    a("v_lshrrev_b32 v1, 6, v0"); a("v_and_b32 v2, 1, v1"); a("v_xor_b32 v2, s18, v2"); a("v_lshl_add_u32 v1, v1, 1, v2")
    a("v_lshlrev_b32 v1, 8, v1"); a("v_and_b32 v2, 63, v0"); a("v_lshl_add_u32 v1, v2, 2, v1")
    a("v_lshlrev_b32 v7, 1, v1")
    a(f"v_add_u32 v8, {L_K + 4*KARR}, v7"); a(f"v_sub_u32 v9, {4*XARR + 4088}, v7")
    a("v_lshlrev_b32 v10, 2, v1"); a(f"v_add_u32 v10, {L_G}, v10")
    a("ds_read_b64 v[20:21], v8"); a(f"ds_read_b64 v[22:23], v8 offset:{KARR}")
    a("ds_read_b64 v[24:25], v9"); a(f"ds_read_b64 v[26:27], v9 offset:{XARR}")
    a("ds_read_b128 v[28:31], v10"); a("ds_read_b128 v[32:35], v10 offset:8192")
    a(f"s_mul_i32 s47, s17, {XROW}"); a("v_add_u32 v7, s47, v7")
    a("v_mov_b32 v12, s10"); a("v_mov_b32 v13, s10"); a("v_mov_b32 v14, s13"); a("v_mov_b32 v15, s13")
    a("s_waitcnt lgkmcnt(0)")
    for i in range(2):
        t = 52 + 8*i
        a(f"v_lshlrev_b32 v{t}, 16, v{20+i}"); a(f"v_and_b32 v{t+1}, 0xffff0000, v{20+i}")
        a(f"v_lshlrev_b32 v{t+2}, 16, v{22+i}"); a(f"v_and_b32 v{t+3}, 0xffff0000, v{22+i}")
        a(f"v_and_b32 v{t+4}, 0xffff0000, v{24+1-i}"); a(f"v_lshlrev_b32 v{t+5}, 16, v{24+1-i}")
        a(f"v_and_b32 v{t+6}, 0xffff0000, v{26+1-i}"); a(f"v_lshlrev_b32 v{t+7}, 16, v{26+1-i}")
    for i in range(2):
        t = 52 + 8*i
        a(f"v_pk_fma_f32 v[{t}:{t+1}], v[{t+4}:{t+5}], v[12:13], v[{t}:{t+1}]")
        a(f"v_pk_fma_f32 v[{t+2}:{t+3}], v[{t+6}:{t+7}], v[14:15], v[{t+2}:{t+3}]")
    for i in range(2):
        t = 52 + 8*i
        a(f"v_pk_mul_f32 v[{t}:{t+1}], v[{t}:{t+1}], v[{t+6}:{t+7}]")
        a(f"v_pk_mul_f32 v[{t}:{t+1}], v[{t}:{t+1}], v[{28+2*i}:{29+2*i}]")
        a(f"v_pk_fma_f32 v[{t}:{t+1}], v[{t+2}:{t+3}], v[{32+2*i}:{33+2*i}], v[{t}:{t+1}]")
        a(f"v_cvt_pk_bf16_f32 v{68+i}, v{t}, v{t+1}")
    if cfg.sentinel:
        for i in range(2): a(f"v_min_u32 v{68+i}, 0xfffffffe, v{68+i}")
    a(f"buffer_store_dwordx2 v[68:69], v7, s[28:31], 0 offen {cfg.st_ot}")
    a("s_branch L_FINAL")
    def epi_oct(tagc):
        a("s_lshl_b32 s43, s42, 1")
        a(f"s_mul_i32 s45, s43, {XARR}"); a(f"s_mul_i32 s46, s43, {KARR}"); a(f"s_add_u32 s46, s46, {L_K}")
        a("v_lshlrev_b32 v7, 1, v1"); a("v_add_u32 v8, s46, v7")
        a("v_sub_u32 v9, 4080, v7"); a("v_add_u32 v9, s45, v9")
        a("v_lshlrev_b32 v10, 2, v1"); a(f"v_add_u32 v10, {L_G}, v10")
        a("ds_read_b128 v[20:23], v8"); a(f"ds_read_b128 v[24:27], v8 offset:{KARR}")
        a("ds_read_b128 v[28:31], v9"); a(f"ds_read_b128 v[32:35], v9 offset:{XARR}")
        a("ds_read_b128 v[36:39], v10"); a("ds_read_b128 v[40:43], v10 offset:16")
        a("ds_read_b128 v[44:47], v10 offset:8192"); a("ds_read_b128 v[48:51], v10 offset:8208")
        a("s_add_u32 s47, s16, s42"); a(f"s_mul_i32 s47, s47, {XROW}"); a("v_add_u32 v7, s47, v7")
        a("s_cmp_eq_u32 s42, 0"); a("s_cselect_b32 s44, s8, s9"); a("s_cselect_b32 s45, s11, s12")
        a("v_mov_b32 v12, s44"); a("v_mov_b32 v13, s44"); a("v_mov_b32 v14, s45"); a("v_mov_b32 v15, s45")
        a("s_waitcnt lgkmcnt(0)")
        for i in range(4):
            t = 52 + 8*(i & 1)
            a(f"v_lshlrev_b32 v{t}, 16, v{20+i}"); a(f"v_and_b32 v{t+1}, 0xffff0000, v{20+i}")
            a(f"v_lshlrev_b32 v{t+2}, 16, v{24+i}"); a(f"v_and_b32 v{t+3}, 0xffff0000, v{24+i}")
            a(f"v_and_b32 v{t+4}, 0xffff0000, v{28+3-i}"); a(f"v_lshlrev_b32 v{t+5}, 16, v{28+3-i}")
            a(f"v_and_b32 v{t+6}, 0xffff0000, v{32+3-i}"); a(f"v_lshlrev_b32 v{t+7}, 16, v{32+3-i}")
            a(f"v_pk_fma_f32 v[{t}:{t+1}], v[{t+4}:{t+5}], v[12:13], v[{t}:{t+1}]")
            a(f"v_pk_fma_f32 v[{t+2}:{t+3}], v[{t+6}:{t+7}], v[14:15], v[{t+2}:{t+3}]")
            a(f"v_pk_mul_f32 v[{t}:{t+1}], v[{t}:{t+1}], v[{t+6}:{t+7}]")
            a(f"v_pk_mul_f32 v[{t}:{t+1}], v[{t}:{t+1}], v[{36+2*i}:{37+2*i}]")
            a(f"v_pk_fma_f32 v[{t}:{t+1}], v[{t+2}:{t+3}], v[{44+2*i}:{45+2*i}], v[{t}:{t+1}]")
            a(f"v_cvt_pk_bf16_f32 v{68+i}, v{t}, v{t+1}")
        if cfg.sentinel:
            for i in range(4): a(f"v_min_u32 v{68+i}, 0xfffffffe, v{68+i}")
        a(f"buffer_store_dwordx4 v[68:71], v7, s[28:31], 0 offen {cfg.st_ot}")
    a("L_HELP:")
    a("s_barrier")
    a("s_cmp_ge_u32 s3, 6"); a("s_cbranch_scc1 L_H67")
    xload()
    a(f"v_mov_b32 v4, {L_CNT - 4}"); a("v_mov_b32 v5, 1")
    a("s_mov_b64 exec, 1"); a("ds_add_u32 v4, v5"); a("s_mov_b64 exec, -1")
    a("s_branch L_HELP2")
    a("L_H67:")
    if cfg.sentinel and cfg.sent_mode == "w6":
        a("s_cmp_eq_u32 s3, 6"); a("s_cbranch_scc0 L_H7")
        a(f"v_mov_b32 v4, {L_CNT}"); a("ds_read_b64 v[6:7], v4 offset:8")
        a("s_waitcnt vmcnt(0) lgkmcnt(0)")
        a("v_readfirstlane_b32 s66, v6"); a("v_readfirstlane_b32 s67, v7")
        mb_send(a, cfg, WS_MB3, 32, "grp")
        mb_poll(a, cfg, "S", WS_MB3, 32, 8)
        a("s_branch L_HELP2")
        a("L_H7:")
    onew = cfg.sentinel and cfg.sent_mode == "w6"
    nq = 16 if onew else 8
    a(f"v_mov_b32 v4, {L_CNT}"); a("ds_read_b32 v5, v4 offset:8")
    srd_off(a, 24, 64, 65, WS_G, 16384)
    if onew: a("s_mov_b32 s36, 0")
    else: a("s_sub_u32 s36, s3, 6"); a("s_lshl_b32 s36, s36, 13")
    a("v_lshlrev_b32 v3, 4, v2"); a("v_add_u32 v6, s36, v3")
    for k_ in range(1, nq // 4): a(f"v_add_u32 v{9+k_}, {4096*k_}, v6")
    a(f"s_mov_b32 s21, {cfg.spin_max}")
    a("L_G_POLL:")
    for q in range(nq):
        a(f"buffer_load_dwordx4 v[{20+4*q}:{23+4*q}], v{6 if q < 4 else 9 + (q >> 2)}, s[24:27], 0 offen offset:{1024*(q & 3)} {cfg.ld_x}")
    a("s_waitcnt vmcnt(0) lgkmcnt(0)")
    a("v_xor_b32 v7, v21, v5")
    for q in range(nq):
        for h in (1, 3):
            if q == 0 and h == 1: continue
            a(f"v_xor_b32 v8, v{20+4*q+h}, v5"); a("v_or_b32 v7, v7, v8")
    a("v_cmp_ne_u32 vcc, 0, v7")
    a("s_cbranch_vccz L_G_OK")
    a("s_sub_u32 s21, s21, 1"); a("s_cmp_eq_u32 s21, 0"); a("s_cbranch_scc0 L_G_POLL")
    a("L_G_OK:")
    a("s_lshr_b32 s36, s36, 1")
    a("v_lshlrev_b32 v9, 3, v2"); a("v_add_u32 v9, s36, v9"); a(f"v_add_u32 v9, {L_G}, v9")
    for q in range(nq):
        r = 20 + 4*q
        a(f"v_lshlrev_b32 v{r+1}, 16, v{r+2}"); a(f"v_and_b32 v{r+3}, 0xffff0000, v{r+2}")
        a(f"v_and_b32 v{r+2}, 0xffff0000, v{r}"); a(f"v_lshlrev_b32 v{r}, 16, v{r}")
    for q in range(nq):
        r = 20 + 4*q
        a(f"ds_write_b64 v9, v[{r}:{r+1}] offset:{512*q}")
        a(f"ds_write_b64 v9, v[{r+2}:{r+3}] offset:{8192 + 512*q}")
    a("L_HELP2:")
    dscal_fix()
    srd_off(a, 28, 64, 65, WS_OT, D*XROW)
    a("s_barrier")
    a("v_and_b32 v1, 255, v0"); a("v_lshlrev_b32 v1, 3, v1")
    a("s_mov_b32 s42, 0")
    a("L_EPI_LOOP:")
    epi_oct("h")
    a("s_add_u32 s42, s42, 1"); a("s_cmp_lt_u32 s42, 2"); a("s_cbranch_scc1 L_EPI_LOOP")
    stamp(a, cfg, 10)
    a("L_FINAL:")
    a("v_and_b32 v2, 63, v0")
    a("v_lshrrev_b32 v3, 3, v2"); a(f"v_mul_u32_u24 v3, {XROW}, v3"); a("v_and_b32 v4, 7, v2"); a("v_lshl_add_u32 v3, v4, 4, v3")
    a(f"s_mul_i32 s22, s19, {80*XROW}"); a("s_lshl_b32 s23, s20, 7"); a("s_add_u32 s22, s22, s23"); a("v_add_u32 v3, s22, v3")
    srd(a, 12, 54, 55, S*D*2)
    a("v_mul_u32_u24 v5, 205, v0"); a("v_lshrrev_b32 v5, 11, v5"); a("v_mul_u32_u24 v6, 10, v5"); a("v_sub_u32 v6, v0, v6")
    a("v_mul_u32_u24 v7, 1056, v6"); a("v_lshl_add_u32 v7, v5, 3, v7")
    a("s_lshl_b32 s22, s20, 6"); a("v_lshl_add_u32 v8, v5, 2, s22"); a("v_mul_u32_u24 v8, 1280, v8")
    a("s_mul_i32 s23, s19, 160"); a("v_lshl_add_u32 v9, v6, 4, s23"); a("v_add_u32 v8, v8, v9")
    if not cfg.sentinel:
        a("s_waitcnt vmcnt(0)")
        a("s_barrier")
        a("s_cmp_eq_u32 s3, 7"); a("s_cbranch_scc0 L_D2")
        mb_send(a, cfg, WS_MB2, 32, "grp")
        mb_poll(a, cfg, "B", WS_MB2, 32, 8)
        a("L_D2:")
        a("s_barrier")
        stamp(a, cfg, 14)
        for r in range(2):
            if r == 1: a("s_cmp_ge_u32 s3, 2"); a("s_cbranch_scc1 L_P3_LD")
            a(f"s_add_u32 s22, s3, {8*r}"); a(f"s_mul_i32 s23, s22, {8*XROW}"); a("s_mul_i32 s22, s22, 1056"); a("s_mov_b32 m0, s22"); a("s_nop 0")
            a(f"buffer_load_dwordx4 v3, s[28:31], s23 offen {cfg.ld_ot} lds")
        a("L_P3_LD:")
        a("s_waitcnt vmcnt(0)")
    else:
        a("s_barrier")
        a("v_lshrrev_b32 v10, 3, v2"); a("v_and_b32 v11, 7, v2")
        a(f"s_mul_i32 s22, s19, {80*XROW}"); a("s_lshl_b32 s23, s20, 7"); a("s_add_u32 s22, s22, s23")
        a("s_cmp_lt_u32 s3, 2"); a("s_cbranch_scc0 L_OT_B")
        a("s_lshl_b32 s23, s3, 3"); a("v_add_u32 v10, s23, v10"); a("v_mul_u32_u24 v10, 5, v10"); a("v_add_u32 v10, 2, v10")
        a("v_mov_b32 v12, v10")
        a("s_branch L_OT_C")
        a("L_OT_B:")
        a("s_sub_u32 s23, s3, 2"); a("s_lshl_b32 s23, s23, 3"); a("v_add_u32 v10, s23, v10")
        a("s_cmp_lt_u32 s3, 4"); a("s_cselect_b32 s23, 48, 0"); a("v_add_u32 v12, s23, v10")
        for r in (10, 12):
            a(f"v_lshrrev_b32 v13, 2, v{r}"); a(f"v_and_b32 v14, 3, v{r}"); a("v_lshrrev_b32 v15, 1, v14")
            a("v_add_u32 v14, v14, v15"); a(f"v_mad_u32_u24 v{r}, v13, 5, v14")
        a("L_OT_C:")
        a(f"s_movk_i32 s23, {XROW}")
        for r, d_ in ((10, 4), (12, 5)):
            a(f"v_mul_lo_u32 v{d_}, v{r}, s23"); a(f"v_lshl_add_u32 v{d_}, v11, 4, v{d_}"); a(f"v_add_u32 v{d_}, s22, v{d_}")
            a(f"v_lshrrev_b32 v13, 3, v{r}"); a(f"v_and_b32 v14, 7, v{r}"); a("v_mul_u32_u24 v13, 1056, v13")
            a("v_lshl_add_u32 v13, v14, 7, v13"); a(f"v_lshl_add_u32 v{r}, v11, 4, v13")
        a(f"s_mov_b32 s21, {cfg.spin_max}")
        ld = lambda r, ad: a(f"buffer_load_dwordx4 v[{r}:{r+3}], v{ad}, s[28:31], 0 offen {cfg.ld_ot}")
        a("s_cmp_lt_u32 s3, 2"); a("s_cbranch_scc0 L_OT_POLL2")
        ld(48, 4); a(f"s_sleep {cfg.psleep}"); ld(52, 4); a(f"s_sleep {cfg.psleep}"); ld(56, 4)
        a("L_OT_POLL1:")
        for r in (48, 52, 56):
            a("s_waitcnt vmcnt(2)")
            a(f"v_max_u32 v28, v{r}, v{r+1}"); a(f"v_max3_u32 v28, v28, v{r+2}, v{r+3}")
            a("v_cmp_eq_u32 vcc, -1, v28")
            a(f"s_cbranch_vccz L_OT_OK{r}")
            ld(r, 4)
        a("s_sub_u32 s21, s21, 1"); a("s_cmp_eq_u32 s21, 0"); a("s_cbranch_scc0 L_OT_POLL1")
        for r in (48, 52, 56):
            a(f"L_OT_OK{r}:")
            a(f"ds_write_b128 v10, v[{r}:{r+3}]")
            a("s_branch L_OT_W")
        a("L_OT_POLL2:")
        ld(16, 4); ld(20, 5)
        a("s_waitcnt vmcnt(0)")
        a("v_max_u32 v28, v16, v17"); a("v_max3_u32 v28, v28, v18, v19")
        a("v_max3_u32 v28, v28, v20, v21"); a("v_max3_u32 v28, v28, v22, v23")
        a("v_cmp_eq_u32 vcc, -1, v28")
        a("s_cbranch_vccz L_OT_OK2")
        a("s_sub_u32 s21, s21, 1"); a("s_cmp_eq_u32 s21, 0"); a("s_cbranch_scc0 L_OT_POLL2")
        a("L_OT_OK2:")
        a("ds_write_b128 v10, v[16:19]"); a("ds_write_b128 v12, v[20:23]")
        a("L_OT_W:")
        stamp(a, cfg, 14)
        a("s_waitcnt lgkmcnt(0)")
    a("s_barrier")
    a("v_cmp_gt_u32 vcc, 160, v0")
    a("s_and_saveexec_b64 s[22:23], vcc")
    a("s_cbranch_execz L_FINISH")
    for i in range(8): a(f"ds_read_b64 v[{16+2*i}:{17+2*i}], v7 offset:{128*i}")
    a("s_mov_b32 s24, 0x05040100"); a("s_mov_b32 s25, 0x07060302")
    a("s_waitcnt lgkmcnt(0)")
    for r in range(4):
        for c in range(4):
            a(f"v_perm_b32 v{32+4*r+c}, v{16+2*(2*c+1)+(r>>1)}, v{16+2*(2*c)+(r>>1)}, s{24+(r&1)}")
        a(f"buffer_store_dwordx4 v[{32+4*r}:{35+4*r}], v8, s[12:15], 0 offen offset:{1280*r} {cfg.st_out}")
    a("L_FINISH:")
    if cfg.stamps:
        stamp(a, cfg, 15)
        stamp_flush(a, cfg)
    a("L_END:")
    a("s_endpgm")
    body = a.finish()
    kd = f""".section .rodata,"a"
.p2align 6
.amdhsa_kernel {KNAME}
  .amdhsa_next_free_vgpr 200
  .amdhsa_next_free_sgpr 102
  .amdhsa_accum_offset 200
  .amdhsa_group_segment_fixed_size 0
  .amdhsa_kernarg_size 136
  .amdhsa_user_sgpr_count 2
  .amdhsa_user_sgpr_kernarg_segment_ptr 1
  .amdhsa_system_sgpr_workgroup_id_x 1
  .amdhsa_float_denorm_mode_32 3
.end_amdhsa_kernel
"""
    header = open(__file__.replace("gen5.py", "header.txt")).read()
    return header + f"; @launch grid=(256,1,1) block=(512,1,1) lds={LDS_TOTAL}\n" + '.amdgcn_target "amdgcn-amd-amdhsa--gfx950"\n' + body + kd

if __name__ == "__main__":
    cfg = Cfg()
    for kv in sys.argv[2:]:
        k, v = kv.split("=", 1)
        setattr(cfg, k, (v == "True") if v in ("True", "False") else (int(v) if v.lstrip("-").isdigit() else (float(v) if k == "frac" else v)))
    open(sys.argv[1], "w").write(gen(cfg))
```

```python
import sys, struct
from asmlib import Asm

S, D = 2048, 640
XROW = 4224
WS_X, WS_G, WS_OT, WS_TS = 0, 0x7B0000, 0x800000, 0xC00000
WS_MB1, WS_MBG, WS_MB2, WS_MB3 = 0xD00000, 0xD10000, 0xD20000, 0xD30000
NAME = "gated_mix__ssm_conv_h3__ssm_conv_s4d__prompt"
KNAME = NAME + "_kernel"
XCP = 4160; XARR = 4*XCP; L_K = 6*XARR; KARR = 4608; L_G = L_K + 6*KARR
LDS_TOTAL = 163840
L_ST = L_G
ST_Q, ST_V, ST_K = 0, 10368, 20736
SLOT = 53*256
L_CNT = LDS_TOTAL - 16
PSET = ([0, 3, 4, 7], [1, 2, 5, 6])
SENT = 0xFFFFFFFF

class Cfg:
    nt_in = "nt"
    st_g = "sc1"; ld_g = "sc1"; st_n = "sc1"; ld_n = "sc1"
    st_x = "sc1"; ld_x = "sc1"; st_ot = "sc1"; ld_ot = "sc1"; st_out = "sc1"; st_flag = "sc1"; ld_flag = "sc1"
    stamps = False; clk = "s_memrealtime"
    spin_max = 100000
    sleep = 0
    sentinel = True
    psleep = 8
    map = "rr"
    prio = True
    sent_early = False
    sent_mode = "t"
    frac = 0.75

def hexf(x): return "0x%08x" % struct.unpack("<I", struct.pack("<f", float(x)))[0]

NST = 16
def stamp(a, cfg, i):
    if cfg.stamps: a(f"{cfg.clk} s[{70+2*i}:{71+2*i}]")
def stamp_flush(a, cfg):
    if not cfg.stamps: return
    a("s_waitcnt lgkmcnt(0)")
    a(f"s_add_u32 s4, s64, {WS_TS}"); a("s_addc_u32 s5, s65, 0")
    a("s_lshl_b32 s6, s2, 3"); a("s_add_u32 s6, s6, s3"); a("s_lshl_b32 s6, s6, 7")
    a("s_mov_b64 exec, 1")
    a("v_mov_b32 v4, s6")
    for i in range(NST):
        a(f"v_mov_b32 v6, s{70+2*i}"); a(f"v_mov_b32 v7, s{71+2*i}")
        a(f"global_store_dwordx2 v4, v[6:7], s[4:5] offset:{8*i}")
        a("s_nop 1")

def srd(a, s, lo, hi, size):
    a(f"s_mov_b32 s{s}, s{lo}"); a(f"s_and_b32 s{s+1}, s{hi}, 0xffff")
    a(f"s_mov_b32 s{s+2}, {size}"); a(f"s_mov_b32 s{s+3}, 0x00020000")
def srd_off(a, s, lo, hi, off, size):
    a(f"s_add_u32 s{s}, s{lo}, {off}"); a(f"s_addc_u32 s{s+1}, s{hi}, 0"); a(f"s_and_b32 s{s+1}, s{s+1}, 0xffff")
    a(f"s_mov_b32 s{s+2}, {size}"); a(f"s_mov_b32 s{s+3}, 0x00020000")
def cmul(a, d, z, w, t=2):
    a(f"v_pk_mul_f32 v[{t}:{t+1}], v[{z}:{z+1}], v[{w}:{w+1}] op_sel:[0,0] op_sel_hi:[1,0]")
    a(f"v_pk_fma_f32 v[{d}:{d+1}], v[{z}:{z+1}], v[{w}:{w+1}], v[{t}:{t+1}] op_sel:[1,1,0] op_sel_hi:[0,1,1] neg_lo:[1,0,0]")

def mb_send(a, cfg, region, nlanes, mode):
    a("v_and_b32 v4, 63, v0")
    if mode == "grp":
        a("v_lshl_add_u32 v4, v4, 3, s19"); a("v_lshlrev_b32 v4, 8, v4"); a("s_lshl_b32 s21, s20, 3")
    else:
        a("s_lshl_b32 s21, s20, 3"); a("v_add_u32 v4, s21, v4"); a("v_lshlrev_b32 v4, 7, v4"); a("s_lshl_b32 s21, s19, 3")
    a(f"s_add_u32 s21, s21, {region}"); a("v_add_u32 v4, s21, v4")
    a("v_mov_b32 v6, s66"); a("v_mov_b32 v7, s67")
    a(f"s_mov_b64 exec, {hex((1 << nlanes) - 1)}")
    a(f"buffer_store_dwordx2 v[6:7], v4, s[60:63], 0 offen {cfg.st_flag}")
    a("s_mov_b64 exec, -1")
def mb_poll(a, cfg, tag, region, nlanes, shift):
    a("v_and_b32 v4, 63, v0"); a("v_lshlrev_b32 v4, 3, v4")
    a("s_lshl_b32 s21, s20, 3"); a("s_add_u32 s21, s21, s19")
    a(f"s_lshl_b32 s21, s21, {shift}"); a(f"s_add_u32 s21, s21, {region}"); a("v_add_u32 v4, s21, v4")
    a(f"s_mov_b64 exec, {hex((1 << nlanes) - 1)}")
    a(f"s_mov_b32 s21, {cfg.spin_max}")
    ld = lambda r: a(f"buffer_load_dwordx2 v[{r}:{r+1}], v4, s[60:63], 0 offen {cfg.ld_flag}")
    ld(100); a(f"s_sleep {cfg.psleep}"); ld(102); a(f"s_sleep {cfg.psleep}"); ld(104)
    a(f"POLL_{tag}:")
    for r in (100, 102, 104):
        a("s_waitcnt vmcnt(2)")
        a(f"v_cmp_ne_u32 vcc, s66, v{r}"); a(f"v_cmp_ne_u32 s[22:23], s67, v{r+1}"); a("s_or_b64 vcc, vcc, s[22:23]")
        a(f"s_cbranch_vccz POLL_{tag}_OK")
        ld(r)
    a("s_sub_u32 s21, s21, 1"); a("s_cmp_eq_u32 s21, 0"); a(f"s_cbranch_scc0 POLL_{tag}")
    a(f"POLL_{tag}_OK:")
    a("s_mov_b64 exec, -1")

def op_loads(pairs, b, A0, B0, VA, VB, offA, offB):
    L = []; seen = []
    for (aa, cc) in pairs:
        if ("A", aa) not in seen: seen.append(("A", aa))
        if ("B", cc) not in seen: seen.append(("B", cc))
    for kind, i in seen:
        if kind == "A":
            L.append(f"ds_read_b64 v[{A0+4*i}:{A0+4*i+1}], v{VA} offset:{offA(i, b, 0)}")
            L.append(f"ds_read_b64 v[{A0+4*i+2}:{A0+4*i+3}], v{VA} offset:{offA(i, b, 1)}")
        else:
            L.append(f"ds_read_b128 v[{B0+4*i}:{B0+4*i+3}], v{VB} offset:{offB(i, b)}")
    return L

def mfma_iter(a, pairs, acc_of, A0, B0, fill, first, frac):
    a("s_waitcnt lgkmcnt(0)")
    k = 0; seen = set()
    for idx, (aa, cc) in enumerate(pairs):
        d = acc_of(aa, cc)
        c = "0" if (first and d not in seen) else f"v[{d}:{d+3}]"
        seen.add(d)
        a(f"v_mfma_f32_16x16x32_bf16 v[{d}:{d+3}], v[{A0+4*aa}:{A0+4*aa+3}], v[{B0+4*cc}:{B0+4*cc+3}], {c}")
        want = -(-len(fill) * (idx + 1) // max(1, int(len(pairs) * frac)))
        while k < min(len(fill), want): a(fill[k]); k += 1
    while k < len(fill): a(fill[k]); k += 1

def gen(cfg):
    a = Asm()
    a.lines += [".text", f".globl {KNAME}", ".p2align 8", f".type {KNAME},@function", f"{KNAME}:"]
    nt = cfg.nt_in
    a("s_cmp_ge_u32 s2, 256")
    a("s_cbranch_scc1 L_END")
    a("s_load_dwordx8 s[36:43], s[0:1], 56")
    a("s_load_dwordx2 s[44:45], s[0:1], 88")
    a("s_load_dwordx4 s[4:7], s[0:1], 0")
    a("s_load_dwordx4 s[8:11], s[0:1], 16")
    a("s_load_dwordx2 s[12:13], s[0:1], 120")
    a("s_load_dwordx2 s[64:65], s[0:1], 128")
    a("s_load_dwordx2 s[46:47], s[0:1], 104")
    a("s_load_dwordx4 s[48:51], s[0:1], 32")
    a("s_load_dwordx2 s[52:53], s[0:1], 96")
    a("s_load_dwordx2 s[54:55], s[0:1], 112")
    a("v_lshrrev_b32 v1, 6, v0")
    a("v_and_b32 v2, 63, v0")
    a("v_readfirstlane_b32 s3, v1")
    a("v_mov_b32 v3, 0"); a(f"v_mov_b32 v4, {L_CNT}")
    a("ds_write_b32 v4, v3")
    a("ds_write_b32 v4, v3 offset:4")
    a(f"v_mov_b32 v5, {L_CNT - 16}")
    a("ds_write_b32 v5, v3"); a("ds_write_b32 v5, v3 offset:4"); a("ds_write_b32 v5, v3 offset:8"); a("ds_write_b32 v5, v3 offset:12")
    for i in range(NST): stamp(a, cfg, i)
    if cfg.map == "contig":
        a("s_lshr_b32 s19, s2, 5"); a("s_and_b32 s20, s2, 31")
    else:
        a("s_and_b32 s19, s2, 7"); a("s_lshr_b32 s20, s2, 3")
    a("s_mul_i32 s17, s19, 80"); a("s_lshr_b32 s21, s20, 1"); a("s_mul_i32 s21, s21, 5"); a("s_add_u32 s17, s17, s21")
    a("s_and_b32 s18, s20, 1"); a("s_mul_i32 s21, s18, 3"); a("s_add_u32 s16, s17, s21"); a("s_add_u32 s17, s17, 2")
    a("s_waitcnt lgkmcnt(0)")
    a("s_barrier")
    a("s_cmp_lt_u32 s3, 5")
    a("s_cbranch_scc1 L_T")
    a("s_sub_u32 s22, s3, 5")
    a("s_add_u32 s14, s16, s22"); a("s_cmp_eq_u32 s22, 2"); a("s_cselect_b32 s14, s17, s14")
    P = 152
    a("s_mul_i32 s23, s14, 384"); a("v_lshl_add_u32 v6, v2, 1, s23")
    a("s_lshl_b32 s23, s14, 1"); a("v_mov_b32 v7, s23")
    srd(a, 56, 44, 45, D*2)
    a(f"buffer_load_ushort v{P+12}, v7, s[56:59], 0 offen")
    for i in range(4):
        srd(a, 24 + 4*i, 36 + 2*i, 37 + 2*i, D*192*2)
        for st_ in range(3):
            a(f"buffer_load_ushort v{P+4*st_+i}, v6, s[{24+4*i}:{27+4*i}], 0 offen offset:{128*st_}")
    a(f"s_mul_i32 s15, s22, {2*KARR}"); a(f"s_add_u32 s15, s15, {L_K}")
    a(f"s_mul_i32 s21, s22, {SLOT}")
    AV = 16
    a("v_lshlrev_b32 v7, 2, v2"); a("v_add_u32 v7, s21, v7")
    for c in range(16): a(f"v_xor_b32 v{AV+c}, {c << 4}, v7")
    RX, RY = 32, 40
    a("v_and_b32 v8, 31, v2"); a("v_lshrrev_b32 v9, 5, v2"); a("v_min_u32 v10, 20, v8")
    for (R, rowreg, rowoff) in ((RX, 10, 32), (RY, 8, 0)):
        a(f"v_and_b32 v11, 15, v{rowreg}"); a("v_xor_b32 v11, v11, v9"); a("v_lshlrev_b32 v11, 4, v11")
        a(f"v_lshl_add_u32 v11, v{rowreg}, 8, v11")
        if rowoff: a(f"v_add_u32 v11, {rowoff*256}, v11")
        a("v_add_u32 v11, s21, v11")
        for i in range(8): a(f"v_xor_b32 v{R+i}, {32*i}, v11")
    ACC = 48
    for i in range(4): a(f"v_mov_b32 v{8+i}, 0")
    a("v_lshlrev_b32 v3, 4, v2"); a("v_add_u32 v6, s15, v3")
    a("s_mov_b64 exec, 0x3fffffff")
    a("ds_write_b128 v6, v[8:11]"); a(f"ds_write_b128 v6, v[8:11] offset:{KARR}")
    a("s_mov_b64 exec, -1")
    for i in range(16): a(f"v_mov_b32 v{ACC+i}, 0")
    stamp(a, cfg, 1)
    a("s_waitcnt vmcnt(0)")
    stamp(a, cfg, 2)
    a(f"v_lshlrev_b32 v6, 16, v{P+12}"); a("v_mul_f32 v6, 0x3fb8aa3b, v6"); a("v_exp_f32 v6, v6")
    a("v_cvt_pk_bf16_f32 v6, v6, v6"); a("v_lshlrev_b32 v6, 16, v6"); a("v_add_f32 v7, v6, v6")
    E1, E2, E4, E8, E256, E128, Z, Z2, C = 64, 66, 68, 70, 72, 74, 76, 78, 80
    Q1, Q2, Q3 = 82, 84, 86
    OA, OB = 88, 120
    class Em:
        def __init__(s): s.t = a
    def capture(fn):
        L = Asm(); fn(L); return L.lines
    def cexp(b, dst, h):
        if h == 1:
            b("v_exp_f32 v8, v14"); b("v_fract_f32 v9, v15")
        else:
            b(f"v_mul_f32 v8, {hexf(h)}, v14"); b(f"v_mul_f32 v9, {hexf(h)}, v15")
            b("v_exp_f32 v8, v8"); b("v_fract_f32 v9, v9")
        b(f"v_cos_f32 v{dst}, v9"); b(f"v_sin_f32 v{dst+1}, v9")
        b(f"v_mul_f32 v{dst}, v8, v{dst}"); b(f"v_mul_f32 v{dst+1}, v8, v{dst+1}")
    def setup(b):
        b(f"v_lshlrev_b32 v8, 16, v{P}"); b("v_mul_f32 v8, 0x3fb8aa3b, v8"); b("v_exp_f32 v8, v8")
        b(f"v_lshlrev_b32 v15, 16, v{P+1}"); b("v_mul_f32 v15, v15, v6"); b("v_mul_f32 v15, 0.15915494, v15")
        b("v_cvt_pk_bf16_f32 v8, v8, v8"); b("v_lshlrev_b32 v8, 16, v8")
        b("v_mul_f32 v14, v8, v6"); b("v_mul_f32 v14, 0xbfb8aa3b, v14")
        b(f"v_lshlrev_b32 v{C}, 16, v{P+2}"); b(f"v_lshlrev_b32 v{C+1}, 16, v{P+3}")
        b(f"v_mul_f32 v{C}, v{C}, v7"); b(f"v_mul_f32 v{C+1}, v{C+1}, v7")
        cexp(b, E1, 1); cexp(b, E8, 8); cexp(b, E256, 256); cexp(b, E128, 128)
        cmul(b, E2, E1, E1); cmul(b, E4, E2, E2)
        cmul(b, Q1, C, E256); cmul(b, Q2, Q1, E256); cmul(b, Q3, Q2, E256)
        for i in range(8): b(f"v_mov_b32 v{P+i}, v{P+4+i}")
    pend = []; rot = [0]
    def flush(keep=0):
        while len(pend) > keep: a(pend.pop(0))
    def store_pair(rowA, za, rowB, zb, neg):
        n = "-" if neg else ""
        t = (8, 10, 12)[rot[0] % 3]; rot[0] += 1
        a(f"v_cvt_pk_bf16_f32 v{t}, v{za}, {n}v{za+1}")
        if rowB is None:
            w = f"ds_write_b32 v{AV + (rowA & 15)}, v{t} offset:{rowA*256}"
        else:
            assert (rowA & 15) == (rowB & 15)
            a(f"v_cvt_pk_bf16_f32 v{t+1}, v{zb}, {n}v{zb+1}")
            w = f"ds_write2st64_b32 v{AV + (rowA & 15)}, v{t}, v{t+1} offset0:{rowA} offset1:{rowB}"
        flush(1); pend.append(w)
    def chains():
        a(f"v_mov_b32 v{Z}, 1.0"); a(f"v_mov_b32 v{Z+1}, 0")
        store_pair(0, Z, 16, E128, False)
        cmul(a, Z2, E128, E8)
        store_pair(1, E8, 17, Z2, False)
        cmul(a, Z, E8, E8); cmul(a, Z2, Z2, E8, 4)
        store_pair(2, Z, 18, Z2, False)
        for lam in range(3, 16):
            cmul(a, Z, Z, E8); cmul(a, Z2, Z2, E8, 4)
            store_pair(lam, Z, lam + 16, Z2, False)
        cmul(a, Z, Q1, E2)
        store_pair(32+0, C, 32+16, Z, True)
        cmul(a, Z2, C, E1); cmul(a, Z, Z, E2, 4)
        store_pair(32+1, Z2, 32+17, Z, True)
        cmul(a, Z2, Z2, E1); cmul(a, Z, Z, E2, 4)
        store_pair(32+2, Z2, 32+18, Z, True)
        cmul(a, Z2, Z2, E1); cmul(a, Z, Q2, E4, 4)
        store_pair(32+3, Z2, 32+19, Z, True)
        cmul(a, Z2, Z2, E1); cmul(a, Z, Q3, E4, 4)
        store_pair(32+4, Z2, 32+20, Z, True)
        cmul(a, Z, Q3, E256, 4)
        store_pair(32+8, Q1, None, None, True)
        cmul(a, Z2, Z2, E1); store_pair(32+5, Z2, None, None, True)
        store_pair(32+11, Z, None, None, True)
        cmul(a, Z2, Z2, E1); cmul(a, Z, Z, E256, 4); store_pair(32+6, Z2, None, None, True)
        store_pair(32+12, Z, None, None, True)
        cmul(a, Z2, Z2, E1); cmul(a, Z, Z, E256, 4); store_pair(32+7, Z2, None, None, True)
        store_pair(32+13, Z, None, None, True)
        cmul(a, Z, Z, E256, 4); store_pair(32+9, Q2, None, None, True)
        store_pair(32+14, Z, None, None, True)
        cmul(a, Z, Z, E256, 4); store_pair(32+10, Q3, None, None, True)
        store_pair(32+15, Z, None, None, True)
        flush()
    setup(a)
    a("s_mov_b32 s23, 3")
    a("L_GEN:")
    chains()
    a("s_waitcnt lgkmcnt(0)")
    for i in range(8):
        a(f"ds_read_b128 v[{OA+4*i}:{OA+4*i+3}], v{RX+i}")
        a(f"ds_read_b128 v[{OB+4*i}:{OB+4*i+3}], v{RY+i}")
    su = capture(setup); per = -(-len(su) // 8); k = 0
    for i in range(8):
        for l in su[k:k+per]: a(l)
        k += per
        a(f"s_waitcnt lgkmcnt({14-2*i})")
        a(f"v_mfma_f32_32x32x16_bf16 v[{ACC}:{ACC+15}], v[{OA+4*i}:{OA+4*i+3}], v[{OB+4*i}:{OB+4*i+3}], v[{ACC}:{ACC+15}]")
    a("s_sub_u32 s23, s23, 1")
    if cfg.stamps:
        a("s_cmp_eq_u32 s23, 2"); a("s_cbranch_scc0 L_GS1"); stamp(a, cfg, 9); a("L_GS1:")
        a("s_cmp_eq_u32 s23, 1"); a("s_cbranch_scc0 L_GS2"); stamp(a, cfg, 11); a("L_GS2:")
    a("s_cmp_lg_u32 s23, 0")
    a("s_cbranch_scc1 L_GEN")
    stamp(a, cfg, 3)
    a("v_and_b32 v2, 63, v0")
    a("v_and_b32 v8, 31, v2"); a("v_lshrrev_b32 v9, 5, v2")
    a("v_lshlrev_b32 v10, 2, v8"); a("v_lshl_add_u32 v10, v9, 9, v10"); a("v_add_u32 v10, s21, v10")
    a(f"s_add_u32 s22, s15, {KARR + 480}")
    a("v_lshlrev_b32 v11, 4, v2"); a("v_add_u32 v11, s22, v11")
    a("s_mov_b32 s23, 0x0000ffff")
    a("v_lshlrev_b32 v13, 2, v8"); a("v_add_u32 v13, s21, v13")
    a("v_lshlrev_b32 v14, 2, v2"); a("v_add_u32 v14, s21, v14")
    for r in range(12):
        a(f"v_cvt_pk_bf16_f32 v{16+r}, v{ACC+r}, v{ACC+r}")
    for r in range(12):
        row = 8*(r >> 2) + (r & 3)
        a(f"ds_write_b32 v10, v{16+r} offset:{row*128}")
    a("s_waitcnt lgkmcnt(0)")
    T = 64
    for r in range(8): a(f"ds_read_b32 v{T+r}, v13 offset:{r*128}")
    a(f"ds_read_b32 v{T+8}, v13 offset:{8*128}"); a(f"ds_read_b32 v{T+9}, v13 offset:{16*128}")
    a(f"ds_read_b32 v{T+10}, v13 offset:{17*128}"); a(f"ds_read_b32 v{T+11}, v13 offset:{18*128}")
    a(f"ds_read_b32 v{T+12}, v13 offset:{8*128+4}"); a(f"ds_read_b32 v{T+13}, v14 offset:{9*128}")
    a(f"ds_read_b32 v{T+14}, v14 offset:{19*128}")
    a("s_waitcnt lgkmcnt(4)")
    a(f"ds_read_b32 v{T+15}, v14 offset:{9*128+4}"); a(f"ds_read_b32 v{T+16}, v14 offset:{11*128}")
    a(f"ds_read_b32 v{T+17}, v14 offset:{11*128+4}"); a(f"ds_read_b32 v{T+18}, v14 offset:{13*128}")
    a(f"ds_read_b32 v{T+19}, v14 offset:{13*128+4}")
    def mix(d, lo, hi): a(f"v_bfi_b32 v{d}, s23, v{lo}, v{hi}")
    O = 88
    a("v_cmp_gt_u32 vcc, 32, v2")
    a("v_and_b32 v15, 1, v2"); a("v_cmp_eq_u32 s[24:25], 1, v15")
    a("s_waitcnt lgkmcnt(0)")
    for i in range(4): mix(O+i, T+2*i, T+2*i+1)
    a(f"v_mov_b32 v{O+4}, v{T+8}"); mix(O+5, T+9, T+10); a(f"v_mov_b32 v{O+6}, v{T+10}"); mix(O+7, T+11, T+12)
    for i in range(4): a(f"v_cndmask_b32 v{O+i}, v{O+4+i}, v{O+i}, vcc")
    a(f"v_mov_b32 v{O+8}, v{T+13}"); mix(O+9, T+13, T+14); a(f"v_mov_b32 v{O+10}, v{T+14}"); a(f"v_mov_b32 v{O+11}, v{T+15}")
    for k in range(2):
        s0, s1 = T+16+2*k, T+17+2*k
        d = O + 12 + 4*k
        a(f"v_mov_b32 v{d}, v{s0}"); a(f"v_mov_b32 v{d+1}, v{s0}"); mix(d+2, s0, s1)
        a(f"v_cndmask_b32 v{d+2}, v{d+2}, v{s1}, s[24:25]"); a(f"v_mov_b32 v{d+3}, v{s1}")
    a(f"ds_write_b128 v11, v[{O}:{O+3}]")
    a(f"ds_write_b128 v11, v[{O+8}:{O+11}] offset:1024")
    a(f"ds_write_b128 v11, v[{O+12}:{O+15}] offset:2048")
    a(f"ds_write_b128 v11, v[{O+16}:{O+19}] offset:3072")
    def sentinel_stores():
        srd_off(a, 56, 64, 65, WS_OT, D*XROW)
        a("v_lshrrev_b32 v3, 3, v2"); a(f"v_mul_u32_u24 v3, {XROW}, v3"); a("v_and_b32 v4, 7, v2"); a("v_lshl_add_u32 v3, v4, 4, v3")
        a(f"s_mul_i32 s22, s19, {80*XROW}"); a("s_lshl_b32 s23, s20, 7"); a("s_add_u32 s22, s22, s23"); a("v_add_u32 v3, s22, v3")
        for i in range(4): a(f"v_mov_b32 v{8+i}, -1")
        for i in range(10):
            a(f"s_mov_b32 s22, {8*XROW*i}")
            a(f"buffer_store_dwordx4 v[8:11], v3, s[56:59], s22 offen {cfg.st_ot}")
    if cfg.sentinel and cfg.sent_mode == "w6":
        a("s_cmp_eq_u32 s3, 6"); a("s_cbranch_scc0 L_PRE_B2")
        srd_off(a, 56, 64, 65, WS_OT, D*XROW)
        a("v_lshrrev_b32 v3, 3, v2"); a(f"v_mul_u32_u24 v3, {XROW}, v3"); a("v_and_b32 v4, 7, v2"); a("v_lshl_add_u32 v3, v4, 4, v3")
        a(f"s_mul_i32 s22, s19, {80*XROW}"); a("s_lshl_b32 s23, s20, 7"); a("s_add_u32 s22, s22, s23"); a("v_add_u32 v3, s22, v3")
        for i in range(4): a(f"v_mov_b32 v{8+i}, -1")
        for i in range(10):
            a(f"s_mov_b32 s22, {8*XROW*i}")
            a(f"buffer_store_dwordx4 v[8:11], v3, s[56:59], s22 offen {cfg.st_ot}")
    a("s_branch L_PRE_B2")
    a("L_T:")
    if cfg.prio: a("s_setprio 3")
    a("s_cmp_eq_u32 s3, 4"); a("s_cbranch_scc0 L_T1")
    a("s_cmp_eq_u32 s2, 0"); a("s_cbranch_scc0 L_T1")
    srd(a, 40, 12, 13, 256)
    a("s_memrealtime s[22:23]"); a("s_waitcnt lgkmcnt(0)")
    a("s_or_b32 s22, s22, 1"); a("s_or_b32 s23, s23, 0x80000000")
    a("v_mov_b32 v8, s22"); a("v_mov_b32 v9, s23"); a("v_mov_b32 v10, 0")
    a("s_mov_b64 exec, 1")
    a(f"buffer_store_dwordx2 v[8:9], v10, s[40:43], 0 offen {cfg.st_n}")
    a("s_mov_b64 exec, -1")
    a("L_T1:")
    srd(a, 24, 4, 5, S*D*2); srd(a, 28, 6, 7, S*D*2); srd(a, 32, 8, 9, S*D*2)
    a("v_mul_u32_u24 v3, 205, v2"); a("v_lshrrev_b32 v3, 11, v3")
    a("v_mul_u32_u24 v4, 10, v3"); a("v_sub_u32 v4, v2, v4")
    a("v_mul_u32_u24 v3, 1280, v3"); a("v_lshl_add_u32 v3, v4, 4, v3")
    a("s_mul_i32 s21, s20, 81920"); a("s_mul_i32 s22, s19, 160"); a("s_add_u32 s21, s21, s22")
    a("v_add_u32 v3, s21, v3"); a("v_subrev_u32 v4, 3840, v3"); a("v_add_u32 v5, 1280, v3")
    a("s_mov_b32 exec_hi, 0xff")
    def dma_i(ireg):
        a(f"s_mul_i32 s22, {ireg}, 640"); a(f"s_lshr_b32 s23, {ireg}, 1"); a("s_lshl_b32 s23, s23, 4")
        a("s_add_u32 s22, s22, s23"); a(f"s_mul_i32 s14, {ireg}, 5120"); a("s_sub_u32 s23, s14, 5120")
    a("s_cmp_eq_u32 s3, 0"); a("s_cbranch_scc0 L_DMA")
    a(f"s_mov_b32 m0, {L_ST + ST_K}"); a("s_nop 0")
    a(f"buffer_load_dwordx4 v4, s[28:31], 0 offen {nt} lds")
    a("L_DMA:")
    a("s_mov_b32 s15, s3")
    a("L_DMA_LOOP:")
    dma_i("s15")
    a("s_cmp_eq_u32 s15, 0"); a("s_cbranch_scc1 L_DMA_VQ")
    a(f"s_add_u32 m0, s22, {L_ST + ST_K}"); a("s_nop 0")
    a(f"buffer_load_dwordx4 v5, s[28:31], s23 offen {nt} lds")
    a("s_cmp_eq_u32 s15, 16"); a("s_cbranch_scc1 L_DMA_DONE")
    a("L_DMA_VQ:")
    a(f"s_add_u32 m0, s22, {L_ST + ST_V}"); a("s_nop 0")
    a(f"buffer_load_dwordx4 v3, s[32:35], s14 offen {nt} lds")
    a(f"s_add_u32 m0, s22, {L_ST + ST_Q}"); a("s_nop 0")
    a(f"buffer_load_dwordx4 v3, s[24:27], s14 offen {nt} lds")
    a("s_add_u32 s15, s15, 5"); a("s_cmp_le_u32 s15, 16"); a("s_cbranch_scc1 L_DMA_LOOP")
    a("L_DMA_DONE:")
    a("s_mov_b64 exec, -1")
    srd(a, 36, 10, 11, D*8)
    srd(a, 40, 46, 47, D*2)
    a("v_lshrrev_b32 v11, 3, v0"); a("v_and_b32 v13, 7, v0")
    a("s_mul_i32 s23, s19, 640"); a("v_lshl_add_u32 v12, v11, 4, s23")
    a("buffer_load_dwordx4 v[16:19], v12, s[36:39], 0 offen")
    def dscalar(dst, base, ch):
        a(f"s_lshl_b32 s22, {ch}, 1"); a("s_andn2_b32 s22, s22, 3")
        a(f"s_load_dword s{dst}, s[{base}:{base+1}], s22")
    a("s_and_b32 s23, s3, 3"); a("s_lshl_b32 s23, s23, 1"); a("s_lshl_b32 s14, s2, 3"); a("s_add_u32 s23, s23, s14")
    a("v_lshrrev_b32 v12, 5, v2"); a("v_add_u32 v12, s23, v12")
    a("v_and_b32 v14, 31, v2"); a("v_lshlrev_b32 v14, 4, v14")
    a("v_mul_u32_u24 v15, 1280, v12"); a("v_add_u32 v15, v15, v14")
    a("v_add_u32 v20, 1024, v15"); a("v_cmp_gt_u32 vcc, 256, v14"); a("v_mov_b32 v21, -1"); a("v_cndmask_b32 v20, v21, v20, vcc")
    a("v_mul_u32_u24 v21, 1296, v13"); a("v_lshl_add_u32 v21, v11, 2, v21"); a(f"v_add_u32 v21, {L_ST}, v21")
    a("s_mul_i32 s23, s19, 80"); a("v_lshl_add_u32 v22, v11, 1, s23")
    a(f"s_movk_i32 s14, {2*XROW}"); a("v_mul_lo_u32 v22, v22, s14")
    a("s_lshl_b32 s15, s20, 7"); a("s_sub_u32 s15, 4080, s15")
    a("v_lshlrev_b32 v23, 4, v13"); a("v_sub_u32 v23, s15, v23"); a("v_add_u32 v22, v22, v23")
    srd_off(a, 44, 64, 65, WS_X, 1280*XROW)
    nsent = 0
    if cfg.sentinel and cfg.sent_mode == "t":
        nsent = 2
        srd_off(a, 56, 64, 65, WS_OT, D*XROW)
        a("v_lshrrev_b32 v3, 3, v2"); a(f"v_mul_u32_u24 v3, {XROW}, v3"); a("v_and_b32 v4, 7, v2"); a("v_lshl_add_u32 v3, v4, 4, v3")
        a(f"s_mul_i32 s22, s19, {80*XROW}"); a("s_lshl_b32 s23, s20, 7"); a("s_add_u32 s22, s22, s23"); a("v_add_u32 v3, s22, v3")
        for i in range(4): a(f"v_mov_b32 v{8+i}, -1")
        a(f"s_mul_i32 s22, s3, {16*XROW}"); a(f"s_add_u32 s23, s22, {8*XROW}")
        if cfg.sent_early:
            a(f"buffer_store_dwordx4 v[8:11], v3, s[56:59], s22 offen {cfg.st_ot}")
            a(f"buffer_store_dwordx4 v[8:11], v3, s[56:59], s23 offen {cfg.st_ot}")
    a("s_cmp_eq_u32 s3, 4"); a("s_cbranch_scc1 L_W4")
    stamp(a, cfg, 1)
    a("s_waitcnt vmcnt(0)")
    a("buffer_load_dwordx4 v[24:27], v15, s[24:27], 0 offen")
    a("buffer_load_dwordx4 v[28:31], v15, s[24:27], 0 offen offset:512")
    a("buffer_load_dwordx4 v[32:35], v20, s[24:27], 0 offen")
    a("buffer_load_dwordx4 v[36:39], v14, s[40:43], 0 offen")
    a("buffer_load_dwordx4 v[40:43], v14, s[40:43], 0 offen offset:512")
    a("buffer_load_dwordx4 v[44:47], v14, s[40:43], 0 offen offset:1024")
    a("s_branch L_TS0")
    a("L_W4:")
    srd(a, 40, 12, 13, 256)
    a("v_mov_b32 v26, 0")
    a(f"buffer_load_dwordx2 v[24:25], v26, s[40:43], 0 offen {cfg.ld_n}")
    stamp(a, cfg, 1)
    a("s_waitcnt vmcnt(0)")
    a(f"s_mov_b32 s21, {cfg.spin_max}")
    a("L_NONCE_CHK:")
    a("v_readfirstlane_b32 s66, v24"); a("v_readfirstlane_b32 s67, v25")
    a("s_cmp_eq_u32 s66, 0"); a("s_cselect_b32 s14, 0, s67"); a("s_cmp_lg_u32 s14, 0")
    a("s_cbranch_scc1 L_NONCE_OK")
    a("s_sub_u32 s21, s21, 1"); a("s_cmp_eq_u32 s21, 0"); a("s_cbranch_scc1 L_NONCE_OK")
    a(f"buffer_load_dwordx2 v[24:25], v26, s[40:43], 0 offen {cfg.ld_n}")
    a("s_waitcnt vmcnt(0)")
    a("s_branch L_NONCE_CHK")
    a("L_NONCE_OK:")
    a(f"v_mov_b32 v4, {L_CNT}")
    a("s_mov_b64 exec, 1")
    a("ds_write_b64 v4, v[24:25] offset:8")
    a("s_mov_b64 exec, -1")
    a("L_TS0:")
    a(f"v_mov_b32 v4, {L_CNT}"); a("v_mov_b32 v5, 1")
    a("s_mov_b64 exec, 1")
    a("ds_add_u32 v4, v5")
    a("L_TSYNC:")
    a("ds_read_b32 v5, v4"); a("s_waitcnt lgkmcnt(0)")
    a("v_cmp_gt_u32 vcc, 5, v5"); a("s_cbranch_vccnz L_TSYNC")
    a("s_mov_b64 exec, -1")
    stamp(a, cfg, 2)
    if cfg.sentinel and not cfg.sent_early and cfg.sent_mode == "t":
        a(f"buffer_store_dwordx4 v[8:11], v3, s[56:59], s22 offen {cfg.st_ot}")
        a(f"buffer_store_dwordx4 v[8:11], v3, s[56:59], s23 offen {cfg.st_ot}")
    KR, VR, QR = 48, 60, 68
    for r in range(11): a(f"ds_read_b32 v{KR+r}, v21 offset:{ST_K + r*160 + (r >> 3)*16}")
    for r in range(8): a(f"ds_read_b32 v{VR+r}, v21 offset:{ST_V + r*160}")
    for r in range(8): a(f"ds_read_b32 v{QR+r}, v21 offset:{ST_Q + r*160}")
    W = 80
    a(f"v_lshlrev_b32 v{W+0}, 16, v16");  a(f"v_lshlrev_b32 v{W+1}, 16, v18")
    a(f"v_and_b32 v{W+2}, 0xffff0000, v16"); a(f"v_and_b32 v{W+3}, 0xffff0000, v18")
    a(f"v_lshlrev_b32 v{W+4}, 16, v17");  a(f"v_lshlrev_b32 v{W+5}, 16, v19")
    a(f"v_and_b32 v{W+6}, 0xffff0000, v17"); a(f"v_and_b32 v{W+7}, 0xffff0000, v19")
    K2, V2, KV = 88, 110, 128
    a("s_mov_b32 s14, 0x05040100"); a("s_mov_b32 s15, 0x07060302")
    a("s_waitcnt lgkmcnt(0)")
    O2 = 144
    for e in range(2):
        for i in range(4): a(f"v_perm_b32 v{O2+8*e+4+i}, v{QR+6-2*i}, v{QR+7-2*i}, s{14+e}")
    st = cfg.st_x
    a(f"s_movk_i32 s22, {XROW}"); a(f"s_movk_i32 s23, {3*XROW}")
    a(f"buffer_store_dwordx4 v[{O2+4}:{O2+7}], v22, s[44:47], s22 offen {st}")
    a(f"buffer_store_dwordx4 v[{O2+12}:{O2+15}], v22, s[44:47], s23 offen {st}")
    for r in range(11):
        a(f"v_lshlrev_b32 v{K2+2*r}, 16, v{KR+r}"); a(f"v_and_b32 v{K2+2*r+1}, 0xffff0000, v{KR+r}")
    for r in range(8):
        a(f"v_lshlrev_b32 v{V2+2*r}, 16, v{VR+r}"); a(f"v_and_b32 v{V2+2*r+1}, 0xffff0000, v{VR+r}")
    def pk(op, d, *srcs): a(f"{op} v[{d}:{d+1}], " + ", ".join(f"v[{s_}:{s_+1}]" for s_ in srcs))
    for r in range(8): pk("v_pk_mul_f32", KV+2*r, K2+2*(r+0), W+6)
    for r in range(8): pk("v_pk_fma_f32", KV+2*r, K2+2*(r+1), W+4, KV+2*r)
    for r in range(8): pk("v_pk_fma_f32", KV+2*r, K2+2*(r+2), W+2, KV+2*r)
    for r in range(8): pk("v_pk_fma_f32", KV+2*r, K2+2*(r+3), W+0, KV+2*r)
    for r in range(8): pk("v_pk_mul_f32", KV+2*r, KV+2*r, V2+2*r)
    for e in range(2):
        for i in range(4): a(f"v_cvt_pk_bf16_f32 v{O2+8*e+i}, v{KV+2*(7-2*i)+e}, v{KV+2*(6-2*i)+e}")
    a(f"s_movk_i32 s22, {2*XROW}")
    a(f"buffer_store_dwordx4 v[{O2}:{O2+3}], v22, s[44:47], 0 offen {st}")
    a(f"buffer_store_dwordx4 v[{O2+8}:{O2+11}], v22, s[44:47], s22 offen {st}")
    stamp(a, cfg, 3)
    a("s_and_b32 s14, s3, 1"); a("s_cmp_eq_u32 s14, 0"); a("s_cbranch_scc0 L_NOSSM")
    a("s_lshr_b32 s22, s3, 1"); a("s_add_u32 s14, s16, s22"); a("s_cmp_eq_u32 s3, 4"); a("s_cselect_b32 s14, s17, s14")
    a("s_lshl_b32 s23, s14, 12")
    srd_off(a, 56, 48, 49, "s23", 4096)
    a("v_lshlrev_b32 v3, 4, v2")
    a(f"s_mul_i32 s14, s3, {KARR}")
    for q in range(4):
        a(f"s_add_u32 m0, s14, {L_K + 480 + 1024*q}"); a(f"s_movk_i32 s23, {1024*q}")
        a(f"buffer_load_dwordx4 v3, s[56:59], s23 offen {nt} lds")
    a("s_waitcnt vmcnt(4)")
    a("s_branch L_XACK0")
    a("L_NOSSM:")
    a("s_waitcnt vmcnt(0)")
    a("L_XACK0:")
    a("s_cmp_eq_u32 s3, 4"); a("s_cbranch_scc1 L_W4D")
    srd_off(a, 36, 64, 65, WS_G, 16384)
    stamp(a, cfg, 13)
    a(f"v_mov_b32 v4, {L_CNT}"); a("v_mov_b32 v5, 1")
    a("s_mov_b64 exec, 1")
    a("ds_add_u32 v4, v5 offset:4")
    a("s_mov_b64 exec, -1")
    a("v_mov_b32 v4, 0"); a("s_mov_b32 s14, 0x3f803f80")
    for c in range(3):
        for i in range(4):
            xq = 24 + 4*c + i; wq = 36 + 4*c + i; t = 48 + 4*((4*c+i) % 2)
            a(f"v_lshlrev_b32 v{t}, 16, v{xq}"); a(f"v_and_b32 v{t+1}, 0xffff0000, v{xq}")
            a(f"v_lshlrev_b32 v{t+2}, 16, v{wq}"); a(f"v_and_b32 v{t+3}, 0xffff0000, v{wq}")
            a(f"v_pk_mul_f32 v[{t}:{t+1}], v[{t}:{t+1}], v[{t+2}:{t+3}]")
            a(f"v_cvt_pk_bf16_f32 v{t}, v{t}, v{t+1}")
            a(f"v_dot2_f32_bf16 v4, v{t}, s14, v4")
    for sh in (1, 2, 4, 8):
        a(f"v_add_f32_dpp v4, v4, v4 row_shr:{sh} row_mask:0xf bank_mask:0xf bound_ctrl:0")
    a("v_add_f32_dpp v4, v4, v4 row_bcast:15 row_mask:0xa bank_mask:0xf")
    a("v_cvt_pk_bf16_f32 v4, v4, v4"); a("v_lshlrev_b32 v4, 16, v4")
    a("v_mul_f32 v5, 0xbfb8aa3b, v4"); a("v_exp_f32 v5, v5"); a("v_add_f32 v5, 1.0, v5"); a("v_rcp_f32 v5, v5")
    a("v_cvt_pk_bf16_f32 v5, v5, v5"); a("v_lshlrev_b32 v5, 16, v5")
    a("v_sub_f32 v6, 1.0, v5"); a("v_cvt_pk_bf16_f32 v6, v5, v6")
    a(f"v_mov_b32 v9, {L_CNT}"); a("ds_read_b32 v7, v9 offset:8")
    a("v_lshlrev_b32 v9, 3, v12"); a("v_and_b32 v8, 31, v2"); a("v_cmp_eq_u32 vcc, 31, v8")
    a("s_waitcnt lgkmcnt(0)")
    a("s_and_saveexec_b64 s[22:23], vcc")
    a(f"buffer_store_dwordx2 v[6:7], v9, s[36:39], 0 offen {cfg.st_g}")
    a("s_mov_b64 exec, -1")
    a("s_branch L_PRE_B2")
    a("L_W4D:")
    stamp(a, cfg, 13)
    a(f"v_mov_b32 v4, {L_CNT}")
    a("s_mov_b64 exec, 1")
    a("L_TSYNC2:")
    a("ds_read_b32 v5, v4 offset:4"); a("s_waitcnt lgkmcnt(0)")
    a("v_cmp_gt_u32 vcc, 4, v5"); a("s_cbranch_vccnz L_TSYNC2")
    a("s_mov_b64 exec, -1")
    stamp(a, cfg, 5)
    srd(a, 60, 64, 65, 0x1000000)
    mb_send(a, cfg, WS_MB1, 32, "grp")
    mb_poll(a, cfg, "A", WS_MB1, 32, 8)
    a("L_PRE_B2:")
    if cfg.prio: a("s_setprio 0")
    stamp(a, cfg, 4)
    for n_, (base, ch) in enumerate(((50, "s16"), (50, None), (50, "s17"), (52, "s16"), (52, None), (52, "s17"))):
        if ch is None: a("s_add_u32 s14, s16, 1"); ch = "s14"
        a(f"s_lshl_b32 s22, {ch}, 1"); a("s_and_b32 s22, s22, 0xfffffffc")
        a(f"s_load_dword s{8+n_}, s[{base}:{base+1}], s22")
    srd(a, 60, 64, 65, 0x1000000)
    a("v_and_b32 v2, 63, v0")
    a("s_lshr_b32 s21, s3, 1"); a("s_add_u32 s22, s16, s21"); a("s_cmp_ge_u32 s3, 4"); a("s_cselect_b32 s22, s17, s22")
    a("s_and_b32 s23, s3, 1")
    a("s_lshl_b32 s14, s22, 1"); a("s_add_u32 s14, s14, s23"); a(f"s_mul_i32 s14, s14, {XROW}")
    srd_off(a, 24, 64, 65, "s14", 4096)
    a(f"s_mul_i32 s34, s3, {XARR}"); a(f"s_mul_i32 s35, s3, {KARR}"); a(f"s_add_u32 s35, s35, {L_K}")
    a("v_lshlrev_b32 v3, 4, v2"); a("v_add_u32 v4, 4, v3")
    a("v_and_b32 v8, 15, v2"); a("v_lshrrev_b32 v9, 4, v2")
    a("v_sub_u32 v10, 3, v8"); a("v_and_b32 v10, 3, v10")
    a("v_lshlrev_b32 v11, 3, v9"); a("v_sub_u32 v11, v11, v8"); a("v_add_u32 v11, 2031, v11"); a("v_sub_u32 v11, v11, v10")
    a("v_lshlrev_b32 v11, 1, v11"); a(f"v_mul_u32_u24 v12, {XCP}, v10"); a("v_add_u32 v11, v11, v12"); a("v_subrev_u32 v11, 4032, v11")
    a("v_lshlrev_b32 v12, 5, v8"); a("v_lshl_add_u32 v12, v9, 4, v12")
    VA, VB, VA2, VB2, VY, VX = 13, 14, 15, 16, 17, 18
    a(f"v_add_u32 v{VA}, s34, v11"); a(f"v_add_u32 v{VB}, s35, v12")
    a("s_add_u32 s36, s23, 4"); a(f"s_mul_i32 s37, s36, {XARR}"); a(f"s_mul_i32 s38, s36, {KARR}"); a(f"s_add_u32 s38, s38, {L_K}")
    a("s_lshr_b32 s39, s3, 1"); a("s_sub_u32 s39, 1, s39"); a("s_lshl_b32 s39, s39, 8")
    a("s_add_u32 s40, s37, s39"); a("s_add_u32 s41, s38, s39")
    a(f"v_add_u32 v{VA2}, s40, v11"); a(f"v_add_u32 v{VB2}, s41, v12")
    a(f"v_lshlrev_b32 v{VY}, 5, v8"); a(f"v_lshl_add_u32 v{VY}, v9, 3, v{VY}")
    a(f"v_add_u32 v19, s35, v{VY}")
    a("v_lshrrev_b32 v5, 1, v2"); a(f"v_mul_u32_u24 v5, {XCP}, v5"); a("v_and_b32 v6, 1, v2")
    a("v_lshl_add_u32 v5, v6, 4, v5"); a("v_add_u32 v5, s34, v5")
    a(f"v_add_u32 v{VX}, s34, v3")
    for i in range(4): a(f"v_mov_b32 v{8+i}, 0")
    stamp(a, cfg, 6)
    a("s_and_b32 s14, s3, 5"); a("s_cmp_eq_u32 s14, 4"); a("s_cbranch_scc1 L_B3W")
    a("s_waitcnt vmcnt(0)")
    a("L_B3W:")
    a("s_waitcnt lgkmcnt(0)")
    a("s_barrier")
    stamp(a, cfg, 7)
    ld = cfg.ld_x
    W = 64
    def xload():
        for q in range(4):
            a(f"buffer_load_dwordx4 v[{W+8*q}:{W+8*q+3}], v3, s[24:27], 0 offen offset:{1024*q} {ld}")
            a(f"buffer_load_dwordx4 v[{W+8*q+4}:{W+8*q+7}], v3, s[24:27], 0 offen offset:{1024*q+16} {ld}")
        for cp, vreg in ((0, 3), (2, 4)):
            for q in range(4):
                a(f"s_add_u32 m0, s34, {cp*XCP + 1024*q}"); a(f"s_movk_i32 s36, {1024*q}")
                a(f"buffer_load_dwordx4 v{vreg}, s[24:27], s36 offen {ld} lds")
        a("s_mov_b64 exec, 0xff")
        a("ds_write_b128 v5, v[8:11] offset:4096")
        a("s_mov_b64 exec, -1")
        a("s_waitcnt vmcnt(8)")
        stamp(a, cfg, 8)
        for q in range(4):
            w = W + 8*q
            for j in range(4): a(f"v_alignbit_b32 v{96+j}, v{w+j+1}, v{w+j}, 16")
            for j in range(4): a(f"v_alignbit_b32 v{100+j}, v{w+j+2}, v{w+j+1}, 16")
            if q: pass
            a(f"ds_write_b128 v{VX}, v[96:99] offset:{1*XCP + 1024*q}")
            a(f"ds_write_b128 v{VX}, v[100:103] offset:{3*XCP + 1024*q}")
            W2 = None
        a("s_waitcnt vmcnt(0) lgkmcnt(0)")
    a("s_cmp_ge_u32 s3, 4"); a("s_cbranch_scc1 L_HELP")
    xload()
    stamp(a, cfg, 9)
    a("s_barrier")
    sets = [(20, 52), (84, 116)]
    ACC0, ACC2 = 148, 180
    pairs = [(aa, cc) for aa in range(8) for cc in range(8 - aa)]
    offA = lambda i, b, h: 512*(7-i) + 64*(7-b) + 8*h
    offB = lambda c, b: 512*c + 64*(7-b)
    offA2 = lambda i, b, h: 512*(7-i) + 64*(3-b) + 8*h
    offB2 = lambda c, b: 512*c + 64*(3-b)
    for l in op_loads(pairs, 0, *sets[0], VA, VB, offA, offB): a(l)
    a(f"v_mov_b32 v6, {L_CNT - 4}")
    for b in range(7):
        fill = op_loads(pairs, b+1, *sets[(b+1) & 1], VA, VB, offA, offB)
        if b == 6:
            a("L_C1:")
            a("ds_read_b32 v7, v6"); a("s_waitcnt lgkmcnt(0)")
            a("v_cmp_gt_u32 vcc, 2, v7"); a("s_cbranch_vccnz L_C1")
        mfma_iter(a, pairs, lambda aa, cc: ACC0 + 4*(aa+cc), *sets[b & 1], fill, b == 0, cfg.frac)
    a("s_cmp_eq_u32 s18, 0"); a("s_cbranch_scc0 L_C2_E1")
    ywr = []
    for p in range(8):
        tt = (4, 6)[p & 1]
        ywr += [f"v_cvt_pk_bf16_f32 v{tt}, v{ACC0+4*p}, v{ACC0+4*p+1}", f"v_cvt_pk_bf16_f32 v{tt+1}, v{ACC0+4*p+2}, v{ACC0+4*p+3}",
                f"ds_write_b64 v19, v[{tt}:{tt+1}] offset:{512*p}"]
    for e in range(2):
        if e == 1: a("L_C2_E1:")
        ps = PSET[e]
        prs = [(aa, cc) for aa in range(8) for cc in range(8 - aa) if aa + cc in ps]
        a("s_waitcnt lgkmcnt(0)")
        pre = op_loads(prs, 0, *sets[0], VA2, VB2, offA2, offB2)
        last = {aa + cc: idx for idx, (aa, cc) in enumerate(pairs)}
        ins = {i: [] for i in range(len(pairs))}
        for n_, l in enumerate(pre): ins[min(len(pairs)-1, n_ + 1)].append(l)
        for p_ in range(5):
            c0_, c1_, w_ = ywr[3*p_:3*p_+3]
            ins[min(35, last[p_] + 5)] += [c0_, c1_]; ins[min(35, last[p_] + 7)].append(w_)
        A0, B0 = sets[1]
        for idx, (aa, cc) in enumerate(pairs):
            d = ACC0 + 4*(aa+cc)
            a(f"v_mfma_f32_16x16x32_bf16 v[{d}:{d+3}], v[{A0+4*aa}:{A0+4*aa+3}], v[{B0+4*cc}:{B0+4*cc+3}], v[{d}:{d+3}]")
            for l in ins[idx]: a(l)
        stamp(a, cfg, 10)
        for b in range(4):
            fill = op_loads(prs, b+1, *sets[(b+1) & 1], VA2, VB2, offA2, offB2) if b < 3 else []
            if b == 0: fill = fill[:6] + ywr[15:17] + fill[6:9] + ywr[17:20] + fill[9:12] + ywr[20:23] + fill[12:15] + ywr[23:24] + fill[15:]
            if b == 1:
                a("s_waitcnt lgkmcnt(0)"); a("s_barrier")
            mfma_iter(a, prs, lambda aa, cc: ACC2 + 4*ps.index(aa+cc), *sets[b & 1], fill, b == 0, 0.95)
        if e == 0: a("s_branch L_C2_DONE")
    a("L_C2_DONE:")
    stamp(a, cfg, 11)
    def dscal_fix():
        a("s_waitcnt lgkmcnt(0)")
        for n_, ch in enumerate(("s16", None, "s17", "s16", None, "s17")):
            if ch is None: a("s_add_u32 s14, s16, 1"); ch = "s14"
            a(f"s_and_b32 s22, {ch}, 1"); a("s_lshl_b32 s22, s22, 4")
            a(f"s_lshr_b32 s{8+n_}, s{8+n_}, s22"); a(f"s_lshl_b32 s{8+n_}, s{8+n_}, 16")
    a("s_and_b32 s36, s3, 1"); a("s_lshl_b32 s39, s36, 2"); a("s_add_u32 s36, s36, 2"); a(f"s_mul_i32 s36, s36, {XARR}"); a(f"s_add_u32 s36, s36, {XCP}")
    a("v_add_u32 v4, s36, v3")
    a("s_lshl_b32 s37, s18, 9")
    a(f"v_add_u32 v5, s38, v{VY}")
    a("v_add_u32 v6, s37, v5"); a("v_subrev_u32 v7, s37, v5")
    a(f"s_add_u32 s39, s39, {L_CNT - 16}"); a("v_mov_b32 v8, s39"); a("v_mov_b32 v9, 1")
    def lds_sync(tag, vaddr, off, target):
        a("s_waitcnt lgkmcnt(0)")
        a("s_mov_b64 exec, 1")
        a(f"ds_add_u32 v{vaddr}, v9 offset:{off}")
        a(f"L_SY_{tag}:")
        a(f"ds_read_b32 v10, v{vaddr} offset:{off}"); a("s_waitcnt lgkmcnt(0)")
        a(f"v_cmp_gt_u32 vcc, {target}, v10"); a(f"s_cbranch_vccnz L_SY_{tag}")
        a("s_mov_b64 exec, -1")
    a("s_cmp_lt_u32 s3, 2"); a("s_cbranch_scc0 L_RED_HI")
    for (lbl, keep, give) in (("lo", (0, 1), (2, 3)), ("hi", (2, 3), (0, 1))):
        if lbl == "hi": a("L_RED_HI:")
        a("s_nop 4")
        for ti in give: a(f"ds_write_b128 v4, v[{ACC2+4*ti}:{ACC2+4*ti+3}] offset:{1024*ti}")
        lds_sync("R" + lbl, 8, 0, 2)
        for n_, ti in enumerate(keep): a(f"ds_read_b128 v[{20+4*n_}:{23+4*n_}], v4 offset:{1024*ti}")
        a("s_waitcnt lgkmcnt(0)")
        for n_, ti in enumerate(keep):
            for r in range(0, 4, 2):
                a(f"v_pk_add_f32 v[{20+4*n_+r}:{21+4*n_+r}], v[{20+4*n_+r}:{21+4*n_+r}], v[{ACC2+4*ti+r}:{ACC2+4*ti+r+1}]")
            a(f"v_cvt_pk_bf16_f32 v{28+2*n_}, v{20+4*n_}, v{21+4*n_}"); a(f"v_cvt_pk_bf16_f32 v{29+2*n_}, v{22+4*n_}, v{23+4*n_}")
        for n_, ti in enumerate(keep):
            if ti & 1: a(f"ds_write_b64 v7, v[{28+2*n_}:{29+2*n_}] offset:{1024*ti + 512}")
            else: a(f"ds_write_b64 v6, v[{28+2*n_}:{29+2*n_}] offset:{1024*ti}")
        if lbl == "lo": a("s_branch L_RED_DONE")
    a("L_RED_DONE:")
    a(f"v_mov_b32 v8, {L_CNT - 16}")
    lds_sync("Y2", 8, 8, 4)
    stamp(a, cfg, 12)
    dscal_fix()
    srd_off(a, 28, 64, 65, WS_OT, D*XROW)
    a("v_lshrrev_b32 v1, 6, v0"); a("v_and_b32 v2, 1, v1"); a("v_xor_b32 v2, s18, v2"); a("v_lshl_add_u32 v1, v1, 1, v2")
    a("v_lshlrev_b32 v1, 8, v1"); a("v_and_b32 v2, 63, v0"); a("v_lshl_add_u32 v1, v2, 2, v1")
    a("v_lshlrev_b32 v7, 1, v1")
    a(f"v_add_u32 v8, {L_K + 4*KARR}, v7"); a(f"v_sub_u32 v9, {4*XARR + 4088}, v7")
    a("v_lshlrev_b32 v10, 2, v1"); a(f"v_add_u32 v10, {L_G}, v10")
    a("ds_read_b64 v[20:21], v8"); a(f"ds_read_b64 v[22:23], v8 offset:{KARR}")
    a("ds_read_b64 v[24:25], v9"); a(f"ds_read_b64 v[26:27], v9 offset:{XARR}")
    a("ds_read_b128 v[28:31], v10"); a("ds_read_b128 v[32:35], v10 offset:8192")
    a(f"s_mul_i32 s47, s17, {XROW}"); a("v_add_u32 v7, s47, v7")
    a("v_mov_b32 v12, s10"); a("v_mov_b32 v13, s10"); a("v_mov_b32 v14, s13"); a("v_mov_b32 v15, s13")
    a("s_waitcnt lgkmcnt(0)")
    for i in range(2):
        t = 52 + 8*i
        a(f"v_lshlrev_b32 v{t}, 16, v{20+i}"); a(f"v_and_b32 v{t+1}, 0xffff0000, v{20+i}")
        a(f"v_lshlrev_b32 v{t+2}, 16, v{22+i}"); a(f"v_and_b32 v{t+3}, 0xffff0000, v{22+i}")
        a(f"v_and_b32 v{t+4}, 0xffff0000, v{24+1-i}"); a(f"v_lshlrev_b32 v{t+5}, 16, v{24+1-i}")
        a(f"v_and_b32 v{t+6}, 0xffff0000, v{26+1-i}"); a(f"v_lshlrev_b32 v{t+7}, 16, v{26+1-i}")
    for i in range(2):
        t = 52 + 8*i
        a(f"v_pk_fma_f32 v[{t}:{t+1}], v[{t+4}:{t+5}], v[12:13], v[{t}:{t+1}]")
        a(f"v_pk_fma_f32 v[{t+2}:{t+3}], v[{t+6}:{t+7}], v[14:15], v[{t+2}:{t+3}]")
    for i in range(2):
        t = 52 + 8*i
        a(f"v_pk_mul_f32 v[{t}:{t+1}], v[{t}:{t+1}], v[{t+6}:{t+7}]")
        a(f"v_pk_mul_f32 v[{t}:{t+1}], v[{t}:{t+1}], v[{28+2*i}:{29+2*i}]")
        a(f"v_pk_fma_f32 v[{t}:{t+1}], v[{t+2}:{t+3}], v[{32+2*i}:{33+2*i}], v[{t}:{t+1}]")
        a(f"v_cvt_pk_bf16_f32 v{68+i}, v{t}, v{t+1}")
    if cfg.sentinel:
        for i in range(2): a(f"v_min_u32 v{68+i}, 0xfffffffe, v{68+i}")
    a(f"buffer_store_dwordx2 v[68:69], v7, s[28:31], 0 offen {cfg.st_ot}")
    a("s_branch L_FINAL")
    def epi_oct(tagc):
        a("s_lshl_b32 s43, s42, 1")
        a(f"s_mul_i32 s45, s43, {XARR}"); a(f"s_mul_i32 s46, s43, {KARR}"); a(f"s_add_u32 s46, s46, {L_K}")
        a("v_lshlrev_b32 v7, 1, v1"); a("v_add_u32 v8, s46, v7")
        a("v_sub_u32 v9, 4080, v7"); a("v_add_u32 v9, s45, v9")
        a("v_lshlrev_b32 v10, 2, v1"); a(f"v_add_u32 v10, {L_G}, v10")
        a("ds_read_b128 v[20:23], v8"); a(f"ds_read_b128 v[24:27], v8 offset:{KARR}")
        a("ds_read_b128 v[28:31], v9"); a(f"ds_read_b128 v[32:35], v9 offset:{XARR}")
        a("ds_read_b128 v[36:39], v10"); a("ds_read_b128 v[40:43], v10 offset:16")
        a("ds_read_b128 v[44:47], v10 offset:8192"); a("ds_read_b128 v[48:51], v10 offset:8208")
        a("s_add_u32 s47, s16, s42"); a(f"s_mul_i32 s47, s47, {XROW}"); a("v_add_u32 v7, s47, v7")
        a("s_cmp_eq_u32 s42, 0"); a("s_cselect_b32 s44, s8, s9"); a("s_cselect_b32 s45, s11, s12")
        a("v_mov_b32 v12, s44"); a("v_mov_b32 v13, s44"); a("v_mov_b32 v14, s45"); a("v_mov_b32 v15, s45")
        a("s_waitcnt lgkmcnt(0)")
        for i in range(4):
            t = 52 + 8*(i & 1)
            a(f"v_lshlrev_b32 v{t}, 16, v{20+i}"); a(f"v_and_b32 v{t+1}, 0xffff0000, v{20+i}")
            a(f"v_lshlrev_b32 v{t+2}, 16, v{24+i}"); a(f"v_and_b32 v{t+3}, 0xffff0000, v{24+i}")
            a(f"v_and_b32 v{t+4}, 0xffff0000, v{28+3-i}"); a(f"v_lshlrev_b32 v{t+5}, 16, v{28+3-i}")
            a(f"v_and_b32 v{t+6}, 0xffff0000, v{32+3-i}"); a(f"v_lshlrev_b32 v{t+7}, 16, v{32+3-i}")
            a(f"v_pk_fma_f32 v[{t}:{t+1}], v[{t+4}:{t+5}], v[12:13], v[{t}:{t+1}]")
            a(f"v_pk_fma_f32 v[{t+2}:{t+3}], v[{t+6}:{t+7}], v[14:15], v[{t+2}:{t+3}]")
            a(f"v_pk_mul_f32 v[{t}:{t+1}], v[{t}:{t+1}], v[{t+6}:{t+7}]")
            a(f"v_pk_mul_f32 v[{t}:{t+1}], v[{t}:{t+1}], v[{36+2*i}:{37+2*i}]")
            a(f"v_pk_fma_f32 v[{t}:{t+1}], v[{t+2}:{t+3}], v[{44+2*i}:{45+2*i}], v[{t}:{t+1}]")
            a(f"v_cvt_pk_bf16_f32 v{68+i}, v{t}, v{t+1}")
        if cfg.sentinel:
            for i in range(4): a(f"v_min_u32 v{68+i}, 0xfffffffe, v{68+i}")
        a(f"buffer_store_dwordx4 v[68:71], v7, s[28:31], 0 offen {cfg.st_ot}")
    a("L_HELP:")
    a("s_barrier")
    a("s_cmp_ge_u32 s3, 6"); a("s_cbranch_scc1 L_H67")
    xload()
    a(f"v_mov_b32 v4, {L_CNT - 4}"); a("v_mov_b32 v5, 1")
    a("s_mov_b64 exec, 1"); a("ds_add_u32 v4, v5"); a("s_mov_b64 exec, -1")
    a("s_branch L_HELP2")
    a("L_H67:")
    if cfg.sentinel and cfg.sent_mode in ("w6", "w6b"):
        a("s_cmp_eq_u32 s3, 6"); a("s_cbranch_scc0 L_H7")
        if cfg.sent_mode == "w6b": sentinel_stores()
        a(f"v_mov_b32 v4, {L_CNT}"); a("ds_read_b64 v[6:7], v4 offset:8")
        a("s_waitcnt vmcnt(0) lgkmcnt(0)")
        a("v_readfirstlane_b32 s66, v6"); a("v_readfirstlane_b32 s67, v7")
        mb_send(a, cfg, WS_MB3, 32, "grp")
        mb_poll(a, cfg, "S", WS_MB3, 32, 8)
        a("s_branch L_HELP2")
        a("L_H7:")
    onew = cfg.sentinel and cfg.sent_mode in ("w6", "w6b")
    nq = 16 if onew else 8
    a(f"v_mov_b32 v4, {L_CNT}"); a("ds_read_b32 v5, v4 offset:8")
    srd_off(a, 24, 64, 65, WS_G, 16384)
    if onew: a("s_mov_b32 s36, 0")
    else: a("s_sub_u32 s36, s3, 6"); a("s_lshl_b32 s36, s36, 13")
    a("v_lshlrev_b32 v3, 4, v2"); a("v_add_u32 v6, s36, v3")
    for k_ in range(1, nq // 4): a(f"v_add_u32 v{9+k_}, {4096*k_}, v6")
    a(f"s_mov_b32 s21, {cfg.spin_max}")
    a("L_G_POLL:")
    for q in range(nq):
        a(f"buffer_load_dwordx4 v[{20+4*q}:{23+4*q}], v{6 if q < 4 else 9 + (q >> 2)}, s[24:27], 0 offen offset:{1024*(q & 3)} {cfg.ld_g}")
    a("s_waitcnt vmcnt(0) lgkmcnt(0)")
    a("v_xor_b32 v7, v21, v5")
    for q in range(nq):
        for h in (1, 3):
            if q == 0 and h == 1: continue
            a(f"v_xor_b32 v8, v{20+4*q+h}, v5"); a("v_or_b32 v7, v7, v8")
    a("v_cmp_ne_u32 vcc, 0, v7")
    a("s_cbranch_vccz L_G_OK")
    a("s_sub_u32 s21, s21, 1"); a("s_cmp_eq_u32 s21, 0"); a("s_cbranch_scc0 L_G_POLL")
    a("L_G_OK:")
    a("s_lshr_b32 s36, s36, 1")
    a("v_lshlrev_b32 v9, 3, v2"); a("v_add_u32 v9, s36, v9"); a(f"v_add_u32 v9, {L_G}, v9")
    for q in range(nq):
        r = 20 + 4*q
        a(f"v_lshlrev_b32 v{r+1}, 16, v{r+2}"); a(f"v_and_b32 v{r+3}, 0xffff0000, v{r+2}")
        a(f"v_and_b32 v{r+2}, 0xffff0000, v{r}"); a(f"v_lshlrev_b32 v{r}, 16, v{r}")
    for q in range(nq):
        r = 20 + 4*q
        a(f"ds_write_b64 v9, v[{r}:{r+1}] offset:{512*q}")
        a(f"ds_write_b64 v9, v[{r+2}:{r+3}] offset:{8192 + 512*q}")
    a("L_HELP2:")
    dscal_fix()
    srd_off(a, 28, 64, 65, WS_OT, D*XROW)
    a("s_barrier")
    a("v_and_b32 v1, 255, v0"); a("v_lshlrev_b32 v1, 3, v1")
    a("s_mov_b32 s42, 0")
    a("L_EPI_LOOP:")
    epi_oct("h")
    a("s_add_u32 s42, s42, 1"); a("s_cmp_lt_u32 s42, 2"); a("s_cbranch_scc1 L_EPI_LOOP")
    stamp(a, cfg, 10)
    a("L_FINAL:")
    a("v_and_b32 v2, 63, v0")
    a("v_lshrrev_b32 v3, 3, v2"); a(f"v_mul_u32_u24 v3, {XROW}, v3"); a("v_and_b32 v4, 7, v2"); a("v_lshl_add_u32 v3, v4, 4, v3")
    a(f"s_mul_i32 s22, s19, {80*XROW}"); a("s_lshl_b32 s23, s20, 7"); a("s_add_u32 s22, s22, s23"); a("v_add_u32 v3, s22, v3")
    srd(a, 12, 54, 55, S*D*2)
    a("v_mul_u32_u24 v5, 205, v0"); a("v_lshrrev_b32 v5, 11, v5"); a("v_mul_u32_u24 v6, 10, v5"); a("v_sub_u32 v6, v0, v6")
    a("v_mul_u32_u24 v7, 1056, v6"); a("v_lshl_add_u32 v7, v5, 3, v7")
    a("s_lshl_b32 s22, s20, 6"); a("v_lshl_add_u32 v8, v5, 2, s22"); a("v_mul_u32_u24 v8, 1280, v8")
    a("s_mul_i32 s23, s19, 160"); a("v_lshl_add_u32 v9, v6, 4, s23"); a("v_add_u32 v8, v8, v9")
    if not cfg.sentinel:
        a("s_waitcnt vmcnt(0)")
        a("s_barrier")
        a("s_cmp_eq_u32 s3, 7"); a("s_cbranch_scc0 L_D2")
        mb_send(a, cfg, WS_MB2, 32, "grp")
        mb_poll(a, cfg, "B", WS_MB2, 32, 8)
        a("L_D2:")
        a("s_barrier")
        stamp(a, cfg, 14)
        for r in range(2):
            if r == 1: a("s_cmp_ge_u32 s3, 2"); a("s_cbranch_scc1 L_P3_LD")
            a(f"s_add_u32 s22, s3, {8*r}"); a(f"s_mul_i32 s23, s22, {8*XROW}"); a("s_mul_i32 s22, s22, 1056"); a("s_mov_b32 m0, s22"); a("s_nop 0")
            a(f"buffer_load_dwordx4 v3, s[28:31], s23 offen {cfg.ld_ot} lds")
        a("L_P3_LD:")
        a("s_waitcnt vmcnt(0)")
    else:
        a("s_barrier")
        a("v_lshrrev_b32 v10, 3, v2"); a("v_and_b32 v11, 7, v2")
        a(f"s_mul_i32 s22, s19, {80*XROW}"); a("s_lshl_b32 s23, s20, 7"); a("s_add_u32 s22, s22, s23")
        a("s_cmp_lt_u32 s3, 2"); a("s_cbranch_scc0 L_OT_B")
        a("s_lshl_b32 s23, s3, 3"); a("v_add_u32 v10, s23, v10"); a("v_mul_u32_u24 v10, 5, v10"); a("v_add_u32 v10, 2, v10")
        a("v_mov_b32 v12, v10")
        a("s_branch L_OT_C")
        a("L_OT_B:")
        a("s_sub_u32 s23, s3, 2"); a("s_lshl_b32 s23, s23, 3"); a("v_add_u32 v10, s23, v10")
        a("s_cmp_lt_u32 s3, 4"); a("s_cselect_b32 s23, 48, 0"); a("v_add_u32 v12, s23, v10")
        for r in (10, 12):
            a(f"v_lshrrev_b32 v13, 2, v{r}"); a(f"v_and_b32 v14, 3, v{r}"); a("v_lshrrev_b32 v15, 1, v14")
            a("v_add_u32 v14, v14, v15"); a(f"v_mad_u32_u24 v{r}, v13, 5, v14")
        a("L_OT_C:")
        a(f"s_movk_i32 s23, {XROW}")
        for r, d_ in ((10, 4), (12, 5)):
            a(f"v_mul_lo_u32 v{d_}, v{r}, s23"); a(f"v_lshl_add_u32 v{d_}, v11, 4, v{d_}"); a(f"v_add_u32 v{d_}, s22, v{d_}")
            a(f"v_lshrrev_b32 v13, 3, v{r}"); a(f"v_and_b32 v14, 7, v{r}"); a("v_mul_u32_u24 v13, 1056, v13")
            a("v_lshl_add_u32 v13, v14, 7, v13"); a(f"v_lshl_add_u32 v{r}, v11, 4, v13")
        a(f"s_mov_b32 s21, {cfg.spin_max}")
        ld = lambda r, ad: a(f"buffer_load_dwordx4 v[{r}:{r+3}], v{ad}, s[28:31], 0 offen {cfg.ld_ot}")
        a("s_cmp_lt_u32 s3, 2"); a("s_cbranch_scc0 L_OT_POLL2")
        ld(48, 4); a(f"s_sleep {cfg.psleep}"); ld(52, 4); a(f"s_sleep {cfg.psleep}"); ld(56, 4)
        a("L_OT_POLL1:")
        for r in (48, 52, 56):
            a("s_waitcnt vmcnt(2)")
            a(f"v_max_u32 v28, v{r}, v{r+1}"); a(f"v_max3_u32 v28, v28, v{r+2}, v{r+3}")
            a("v_cmp_eq_u32 vcc, -1, v28")
            a(f"s_cbranch_vccz L_OT_OK{r}")
            ld(r, 4)
        a("s_sub_u32 s21, s21, 1"); a("s_cmp_eq_u32 s21, 0"); a("s_cbranch_scc0 L_OT_POLL1")
        for r in (48, 52, 56):
            a(f"L_OT_OK{r}:")
            a(f"ds_write_b128 v10, v[{r}:{r+3}]")
            a("s_branch L_OT_W")
        a("L_OT_POLL2:")
        ld(16, 4); ld(20, 5)
        a("s_waitcnt vmcnt(0)")
        a("v_max_u32 v28, v16, v17"); a("v_max3_u32 v28, v28, v18, v19")
        a("v_max3_u32 v28, v28, v20, v21"); a("v_max3_u32 v28, v28, v22, v23")
        a("v_cmp_eq_u32 vcc, -1, v28")
        a("s_cbranch_vccz L_OT_OK2")
        a("s_sub_u32 s21, s21, 1"); a("s_cmp_eq_u32 s21, 0"); a("s_cbranch_scc0 L_OT_POLL2")
        a("L_OT_OK2:")
        a("ds_write_b128 v10, v[16:19]"); a("ds_write_b128 v12, v[20:23]")
        a("L_OT_W:")
        stamp(a, cfg, 14)
        a("s_waitcnt lgkmcnt(0)")
    a("s_barrier")
    a("v_cmp_gt_u32 vcc, 160, v0")
    a("s_and_saveexec_b64 s[22:23], vcc")
    a("s_cbranch_execz L_FINISH")
    for i in range(8): a(f"ds_read_b64 v[{16+2*i}:{17+2*i}], v7 offset:{128*i}")
    a("s_mov_b32 s24, 0x05040100"); a("s_mov_b32 s25, 0x07060302")
    a("s_waitcnt lgkmcnt(0)")
    for r in range(4):
        for c in range(4):
            a(f"v_perm_b32 v{32+4*r+c}, v{16+2*(2*c+1)+(r>>1)}, v{16+2*(2*c)+(r>>1)}, s{24+(r&1)}")
        a(f"buffer_store_dwordx4 v[{32+4*r}:{35+4*r}], v8, s[12:15], 0 offen offset:{1280*r} {cfg.st_out}")
    a("L_FINISH:")
    if cfg.stamps:
        stamp(a, cfg, 15)
        stamp_flush(a, cfg)
    a("L_END:")
    a("s_endpgm")
    body = a.finish()
    kd = f""".section .rodata,"a"
.p2align 6
.amdhsa_kernel {KNAME}
  .amdhsa_next_free_vgpr 200
  .amdhsa_next_free_sgpr 102
  .amdhsa_accum_offset 200
  .amdhsa_group_segment_fixed_size 0
  .amdhsa_kernarg_size 136
  .amdhsa_user_sgpr_count 2
  .amdhsa_user_sgpr_kernarg_segment_ptr 1
  .amdhsa_system_sgpr_workgroup_id_x 1
  .amdhsa_float_denorm_mode_32 3
.end_amdhsa_kernel
"""
    header = open(__file__.replace("gen5.py", "header.txt")).read()
    return header + f"; @launch grid=(256,1,1) block=(512,1,1) lds={LDS_TOTAL}\n" + '.amdgcn_target "amdgcn-amd-amdhsa--gfx950"\n' + body + kd

if __name__ == "__main__":
    cfg = Cfg()
    for kv in sys.argv[2:]:
        k, v = kv.split("=", 1)
        setattr(cfg, k, (v == "True") if v in ("True", "False") else (int(v) if v.lstrip("-").isdigit() else (float(v) if k == "frac" else v)))
    open(sys.argv[1], "w").write(gen(cfg))
```

```python
import sys, struct
from asmlib import Asm

S, D = 2048, 640
XROW = 4224
WS_X, WS_G, WS_OT, WS_TS = 0, 0x7B0000, 0x800000, 0xC00000
WS_MB1, WS_MBG, WS_MB2, WS_MB3 = 0xD00000, 0xD10000, 0xD20000, 0xD30000
NAME = "gated_mix__ssm_conv_h3__ssm_conv_s4d__prompt"
KNAME = NAME + "_kernel"
XCP = 4160; XARR = 4*XCP; L_K = 6*XARR; KARR = 4608; L_G = L_K + 6*KARR
LDS_TOTAL = 163840
L_ST = L_G
ST_Q, ST_V, ST_K = 0, 10368, 20736
SLOT = 53*256
L_CNT = LDS_TOTAL - 16
PSET = ([0, 3, 4, 7], [1, 2, 5, 6])
SENT = 0xFFFFFFFF

class Cfg:
    nt_in = "nt"
    st_g = "sc1"; ld_g = "sc1"; st_n = "sc1"; ld_n = "sc1"
    st_x = "sc1"; ld_x = "sc1"; st_ot = "sc1"; ld_ot = "sc1"; st_out = "sc1"; st_flag = "sc1"; ld_flag = "sc1"
    stamps = False; clk = "s_memrealtime"
    spin_max = 100000
    sleep = 0
    sentinel = True
    psleep = 8
    map = "contig"
    prio = True
    sent_early = False
    sent_mode = "w6b"
    frac = 0.75

def hexf(x): return "0x%08x" % struct.unpack("<I", struct.pack("<f", float(x)))[0]

NST = 16
def stamp(a, cfg, i):
    if cfg.stamps: a(f"{cfg.clk} s[{70+2*i}:{71+2*i}]")
def stamp_flush(a, cfg):
    if not cfg.stamps: return
    a("s_waitcnt lgkmcnt(0)")
    a(f"s_add_u32 s4, s64, {WS_TS}"); a("s_addc_u32 s5, s65, 0")
    a("s_lshl_b32 s6, s2, 3"); a("s_add_u32 s6, s6, s3"); a("s_lshl_b32 s6, s6, 7")
    a("s_mov_b64 exec, 1")
    a("v_mov_b32 v4, s6")
    for i in range(NST):
        a(f"v_mov_b32 v6, s{70+2*i}"); a(f"v_mov_b32 v7, s{71+2*i}")
        a(f"global_store_dwordx2 v4, v[6:7], s[4:5] offset:{8*i}")
        a("s_nop 1")

def srd(a, s, lo, hi, size):
    a(f"s_mov_b32 s{s}, s{lo}"); a(f"s_and_b32 s{s+1}, s{hi}, 0xffff")
    a(f"s_mov_b32 s{s+2}, {size}"); a(f"s_mov_b32 s{s+3}, 0x00020000")
def srd_off(a, s, lo, hi, off, size):
    a(f"s_add_u32 s{s}, s{lo}, {off}"); a(f"s_addc_u32 s{s+1}, s{hi}, 0"); a(f"s_and_b32 s{s+1}, s{s+1}, 0xffff")
    a(f"s_mov_b32 s{s+2}, {size}"); a(f"s_mov_b32 s{s+3}, 0x00020000")
def cmul(a, d, z, w, t=2):
    a(f"v_pk_mul_f32 v[{t}:{t+1}], v[{z}:{z+1}], v[{w}:{w+1}] op_sel:[0,0] op_sel_hi:[1,0]")
    a(f"v_pk_fma_f32 v[{d}:{d+1}], v[{z}:{z+1}], v[{w}:{w+1}], v[{t}:{t+1}] op_sel:[1,1,0] op_sel_hi:[0,1,1] neg_lo:[1,0,0]")

def mb_send(a, cfg, region, nlanes, mode):
    a("v_and_b32 v4, 63, v0")
    if mode == "grp":
        a("v_lshl_add_u32 v4, v4, 3, s19"); a("v_lshlrev_b32 v4, 8, v4"); a("s_lshl_b32 s21, s20, 3")
    else:
        a("s_lshl_b32 s21, s20, 3"); a("v_add_u32 v4, s21, v4"); a("v_lshlrev_b32 v4, 7, v4"); a("s_lshl_b32 s21, s19, 3")
    a(f"s_add_u32 s21, s21, {region}"); a("v_add_u32 v4, s21, v4")
    a("v_mov_b32 v6, s66"); a("v_mov_b32 v7, s67")
    a(f"s_mov_b64 exec, {hex((1 << nlanes) - 1)}")
    a(f"buffer_store_dwordx2 v[6:7], v4, s[60:63], 0 offen {cfg.st_flag}")
    a("s_mov_b64 exec, -1")
def mb_poll(a, cfg, tag, region, nlanes, shift):
    a("v_and_b32 v4, 63, v0"); a("v_lshlrev_b32 v4, 3, v4")
    a("s_lshl_b32 s21, s20, 3"); a("s_add_u32 s21, s21, s19")
    a(f"s_lshl_b32 s21, s21, {shift}"); a(f"s_add_u32 s21, s21, {region}"); a("v_add_u32 v4, s21, v4")
    a(f"s_mov_b64 exec, {hex((1 << nlanes) - 1)}")
    a(f"s_mov_b32 s21, {cfg.spin_max}")
    ld = lambda r: a(f"buffer_load_dwordx2 v[{r}:{r+1}], v4, s[60:63], 0 offen {cfg.ld_flag}")
    ld(100); a(f"s_sleep {cfg.psleep}"); ld(102); a(f"s_sleep {cfg.psleep}"); ld(104)
    a(f"POLL_{tag}:")
    for r in (100, 102, 104):
        a("s_waitcnt vmcnt(2)")
        a(f"v_cmp_ne_u32 vcc, s66, v{r}"); a(f"v_cmp_ne_u32 s[22:23], s67, v{r+1}"); a("s_or_b64 vcc, vcc, s[22:23]")
        a(f"s_cbranch_vccz POLL_{tag}_OK")
        ld(r)
    a("s_sub_u32 s21, s21, 1"); a("s_cmp_eq_u32 s21, 0"); a(f"s_cbranch_scc0 POLL_{tag}")
    a(f"POLL_{tag}_OK:")
    a("s_mov_b64 exec, -1")

def op_loads(pairs, b, A0, B0, VA, VB, offA, offB):
    L = []; seen = []
    for (aa, cc) in pairs:
        if ("A", aa) not in seen: seen.append(("A", aa))
        if ("B", cc) not in seen: seen.append(("B", cc))
    for kind, i in seen:
        if kind == "A":
            L.append(f"ds_read_b64 v[{A0+4*i}:{A0+4*i+1}], v{VA} offset:{offA(i, b, 0)}")
            L.append(f"ds_read_b64 v[{A0+4*i+2}:{A0+4*i+3}], v{VA} offset:{offA(i, b, 1)}")
        else:
            L.append(f"ds_read_b128 v[{B0+4*i}:{B0+4*i+3}], v{VB} offset:{offB(i, b)}")
    return L

def mfma_iter(a, pairs, acc_of, A0, B0, fill, first, frac):
    a("s_waitcnt lgkmcnt(0)")
    k = 0; seen = set()
    for idx, (aa, cc) in enumerate(pairs):
        d = acc_of(aa, cc)
        c = "0" if (first and d not in seen) else f"v[{d}:{d+3}]"
        seen.add(d)
        a(f"v_mfma_f32_16x16x32_bf16 v[{d}:{d+3}], v[{A0+4*aa}:{A0+4*aa+3}], v[{B0+4*cc}:{B0+4*cc+3}], {c}")
        want = -(-len(fill) * (idx + 1) // max(1, int(len(pairs) * frac)))
        while k < min(len(fill), want): a(fill[k]); k += 1
    while k < len(fill): a(fill[k]); k += 1

def gen(cfg):
    a = Asm()
    a.lines += [".text", f".globl {KNAME}", ".p2align 8", f".type {KNAME},@function", f"{KNAME}:"]
    nt = cfg.nt_in
    a("s_cmp_ge_u32 s2, 256")
    a("s_cbranch_scc1 L_END")
    a("s_load_dwordx8 s[36:43], s[0:1], 56")
    a("s_load_dwordx2 s[44:45], s[0:1], 88")
    a("s_load_dwordx4 s[4:7], s[0:1], 0")
    a("s_load_dwordx4 s[8:11], s[0:1], 16")
    a("s_load_dwordx2 s[12:13], s[0:1], 120")
    a("s_load_dwordx2 s[64:65], s[0:1], 128")
    a("s_load_dwordx2 s[46:47], s[0:1], 104")
    a("s_load_dwordx4 s[48:51], s[0:1], 32")
    a("s_load_dwordx2 s[52:53], s[0:1], 96")
    a("s_load_dwordx2 s[54:55], s[0:1], 112")
    a("v_lshrrev_b32 v1, 6, v0")
    a("v_and_b32 v2, 63, v0")
    a("v_readfirstlane_b32 s3, v1")
    a("v_mov_b32 v3, 0"); a(f"v_mov_b32 v4, {L_CNT}")
    a("ds_write_b32 v4, v3")
    a("ds_write_b32 v4, v3 offset:4")
    a(f"v_mov_b32 v5, {L_CNT - 16}")
    a("ds_write_b32 v5, v3"); a("ds_write_b32 v5, v3 offset:4"); a("ds_write_b32 v5, v3 offset:8"); a("ds_write_b32 v5, v3 offset:12")
    for i in range(NST): stamp(a, cfg, i)
    if cfg.map == "contig":
        a("s_lshr_b32 s19, s2, 5"); a("s_and_b32 s20, s2, 31")
    else:
        a("s_and_b32 s19, s2, 7"); a("s_lshr_b32 s20, s2, 3")
    a("s_mul_i32 s17, s19, 80"); a("s_lshr_b32 s21, s20, 1"); a("s_mul_i32 s21, s21, 5"); a("s_add_u32 s17, s17, s21")
    a("s_and_b32 s18, s20, 1"); a("s_mul_i32 s21, s18, 3"); a("s_add_u32 s16, s17, s21"); a("s_add_u32 s17, s17, 2")
    a("s_waitcnt lgkmcnt(0)")
    a("s_barrier")
    a("s_cmp_lt_u32 s3, 5")
    a("s_cbranch_scc1 L_T")
    a("s_sub_u32 s22, s3, 5")
    a("s_add_u32 s14, s16, s22"); a("s_cmp_eq_u32 s22, 2"); a("s_cselect_b32 s14, s17, s14")
    P = 152
    a("s_mul_i32 s23, s14, 384"); a("v_lshl_add_u32 v6, v2, 1, s23")
    a("s_lshl_b32 s23, s14, 1"); a("v_mov_b32 v7, s23")
    srd(a, 56, 44, 45, D*2)
    a(f"buffer_load_ushort v{P+12}, v7, s[56:59], 0 offen")
    for i in range(4):
        srd(a, 24 + 4*i, 36 + 2*i, 37 + 2*i, D*192*2)
        for st_ in range(3):
            a(f"buffer_load_ushort v{P+4*st_+i}, v6, s[{24+4*i}:{27+4*i}], 0 offen offset:{128*st_}")
    a(f"s_mul_i32 s15, s22, {2*KARR}"); a(f"s_add_u32 s15, s15, {L_K}")
    a(f"s_mul_i32 s21, s22, {SLOT}")
    AV = 16
    a("v_lshlrev_b32 v7, 2, v2"); a("v_add_u32 v7, s21, v7")
    for c in range(16): a(f"v_xor_b32 v{AV+c}, {c << 4}, v7")
    RX, RY = 32, 40
    a("v_and_b32 v8, 31, v2"); a("v_lshrrev_b32 v9, 5, v2"); a("v_min_u32 v10, 20, v8")
    for (R, rowreg, rowoff) in ((RX, 10, 32), (RY, 8, 0)):
        a(f"v_and_b32 v11, 15, v{rowreg}"); a("v_xor_b32 v11, v11, v9"); a("v_lshlrev_b32 v11, 4, v11")
        a(f"v_lshl_add_u32 v11, v{rowreg}, 8, v11")
        if rowoff: a(f"v_add_u32 v11, {rowoff*256}, v11")
        a("v_add_u32 v11, s21, v11")
        for i in range(8): a(f"v_xor_b32 v{R+i}, {32*i}, v11")
    ACC = 48
    for i in range(4): a(f"v_mov_b32 v{8+i}, 0")
    a("v_lshlrev_b32 v3, 4, v2"); a("v_add_u32 v6, s15, v3")
    a("s_mov_b64 exec, 0x3fffffff")
    a("ds_write_b128 v6, v[8:11]"); a(f"ds_write_b128 v6, v[8:11] offset:{KARR}")
    a("s_mov_b64 exec, -1")
    for i in range(16): a(f"v_mov_b32 v{ACC+i}, 0")
    stamp(a, cfg, 1)
    a("s_waitcnt vmcnt(0)")
    stamp(a, cfg, 2)
    a(f"v_lshlrev_b32 v6, 16, v{P+12}"); a("v_mul_f32 v6, 0x3fb8aa3b, v6"); a("v_exp_f32 v6, v6")
    a("v_cvt_pk_bf16_f32 v6, v6, v6"); a("v_lshlrev_b32 v6, 16, v6"); a("v_add_f32 v7, v6, v6")
    E1, E2, E4, E8, E256, E128, Z, Z2, C = 64, 66, 68, 70, 72, 74, 76, 78, 80
    Q1, Q2, Q3 = 82, 84, 86
    OA, OB = 88, 120
    class Em:
        def __init__(s): s.t = a
    def capture(fn):
        L = Asm(); fn(L); return L.lines
    def cexp(b, dst, h):
        if h == 1:
            b("v_exp_f32 v8, v14"); b("v_fract_f32 v9, v15")
        else:
            b(f"v_mul_f32 v8, {hexf(h)}, v14"); b(f"v_mul_f32 v9, {hexf(h)}, v15")
            b("v_exp_f32 v8, v8"); b("v_fract_f32 v9, v9")
        b(f"v_cos_f32 v{dst}, v9"); b(f"v_sin_f32 v{dst+1}, v9")
        b(f"v_mul_f32 v{dst}, v8, v{dst}"); b(f"v_mul_f32 v{dst+1}, v8, v{dst+1}")
    def setup(b):
        b(f"v_lshlrev_b32 v8, 16, v{P}"); b("v_mul_f32 v8, 0x3fb8aa3b, v8"); b("v_exp_f32 v8, v8")
        b(f"v_lshlrev_b32 v15, 16, v{P+1}"); b("v_mul_f32 v15, v15, v6"); b("v_mul_f32 v15, 0.15915494, v15")
        b("v_cvt_pk_bf16_f32 v8, v8, v8"); b("v_lshlrev_b32 v8, 16, v8")
        b("v_mul_f32 v14, v8, v6"); b("v_mul_f32 v14, 0xbfb8aa3b, v14")
        b(f"v_lshlrev_b32 v{C}, 16, v{P+2}"); b(f"v_lshlrev_b32 v{C+1}, 16, v{P+3}")
        b(f"v_mul_f32 v{C}, v{C}, v7"); b(f"v_mul_f32 v{C+1}, v{C+1}, v7")
        cexp(b, E1, 1); cexp(b, E8, 8); cexp(b, E256, 256); cexp(b, E128, 128)
        cmul(b, E2, E1, E1); cmul(b, E4, E2, E2)
        cmul(b, Q1, C, E256); cmul(b, Q2, Q1, E256); cmul(b, Q3, Q2, E256)
        for i in range(8): b(f"v_mov_b32 v{P+i}, v{P+4+i}")
    pend = []; rot = [0]
    def flush(keep=0):
        while len(pend) > keep: a(pend.pop(0))
    def store_pair(rowA, za, rowB, zb, neg):
        n = "-" if neg else ""
        t = (8, 10, 12)[rot[0] % 3]; rot[0] += 1
        a(f"v_cvt_pk_bf16_f32 v{t}, v{za}, {n}v{za+1}")
        if rowB is None:
            w = f"ds_write_b32 v{AV + (rowA & 15)}, v{t} offset:{rowA*256}"
        else:
            assert (rowA & 15) == (rowB & 15)
            a(f"v_cvt_pk_bf16_f32 v{t+1}, v{zb}, {n}v{zb+1}")
            w = f"ds_write2st64_b32 v{AV + (rowA & 15)}, v{t}, v{t+1} offset0:{rowA} offset1:{rowB}"
        flush(1); pend.append(w)
    def chains():
        a(f"v_mov_b32 v{Z}, 1.0"); a(f"v_mov_b32 v{Z+1}, 0")
        store_pair(0, Z, 16, E128, False)
        cmul(a, Z2, E128, E8)
        store_pair(1, E8, 17, Z2, False)
        cmul(a, Z, E8, E8); cmul(a, Z2, Z2, E8, 4)
        store_pair(2, Z, 18, Z2, False)
        for lam in range(3, 16):
            cmul(a, Z, Z, E8); cmul(a, Z2, Z2, E8, 4)
            store_pair(lam, Z, lam + 16, Z2, False)
        cmul(a, Z, Q1, E2)
        store_pair(32+0, C, 32+16, Z, True)
        cmul(a, Z2, C, E1); cmul(a, Z, Z, E2, 4)
        store_pair(32+1, Z2, 32+17, Z, True)
        cmul(a, Z2, Z2, E1); cmul(a, Z, Z, E2, 4)
        store_pair(32+2, Z2, 32+18, Z, True)
        cmul(a, Z2, Z2, E1); cmul(a, Z, Q2, E4, 4)
        store_pair(32+3, Z2, 32+19, Z, True)
        cmul(a, Z2, Z2, E1); cmul(a, Z, Q3, E4, 4)
        store_pair(32+4, Z2, 32+20, Z, True)
        cmul(a, Z, Q3, E256, 4)
        store_pair(32+8, Q1, None, None, True)
        cmul(a, Z2, Z2, E1); store_pair(32+5, Z2, None, None, True)
        store_pair(32+11, Z, None, None, True)
        cmul(a, Z2, Z2, E1); cmul(a, Z, Z, E256, 4); store_pair(32+6, Z2, None, None, True)
        store_pair(32+12, Z, None, None, True)
        cmul(a, Z2, Z2, E1); cmul(a, Z, Z, E256, 4); store_pair(32+7, Z2, None, None, True)
        store_pair(32+13, Z, None, None, True)
        cmul(a, Z, Z, E256, 4); store_pair(32+9, Q2, None, None, True)
        store_pair(32+14, Z, None, None, True)
        cmul(a, Z, Z, E256, 4); store_pair(32+10, Q3, None, None, True)
        store_pair(32+15, Z, None, None, True)
        flush()
    setup(a)
    a("s_mov_b32 s23, 3")
    a("L_GEN:")
    chains()
    a("s_waitcnt lgkmcnt(0)")
    for i in range(8):
        a(f"ds_read_b128 v[{OA+4*i}:{OA+4*i+3}], v{RX+i}")
        a(f"ds_read_b128 v[{OB+4*i}:{OB+4*i+3}], v{RY+i}")
    su = capture(setup); per = -(-len(su) // 8); k = 0
    for i in range(8):
        for l in su[k:k+per]: a(l)
        k += per
        a(f"s_waitcnt lgkmcnt({14-2*i})")
        a(f"v_mfma_f32_32x32x16_bf16 v[{ACC}:{ACC+15}], v[{OA+4*i}:{OA+4*i+3}], v[{OB+4*i}:{OB+4*i+3}], v[{ACC}:{ACC+15}]")
    a("s_sub_u32 s23, s23, 1")
    if cfg.stamps:
        a("s_cmp_eq_u32 s23, 2"); a("s_cbranch_scc0 L_GS1"); stamp(a, cfg, 9); a("L_GS1:")
        a("s_cmp_eq_u32 s23, 1"); a("s_cbranch_scc0 L_GS2"); stamp(a, cfg, 11); a("L_GS2:")
    a("s_cmp_lg_u32 s23, 0")
    a("s_cbranch_scc1 L_GEN")
    stamp(a, cfg, 3)
    a("v_and_b32 v2, 63, v0")
    a("v_and_b32 v8, 31, v2"); a("v_lshrrev_b32 v9, 5, v2")
    a("v_lshlrev_b32 v10, 2, v8"); a("v_lshl_add_u32 v10, v9, 9, v10"); a("v_add_u32 v10, s21, v10")
    a(f"s_add_u32 s22, s15, {KARR + 480}")
    a("v_lshlrev_b32 v11, 4, v2"); a("v_add_u32 v11, s22, v11")
    a("s_mov_b32 s23, 0x0000ffff")
    a("v_lshlrev_b32 v13, 2, v8"); a("v_add_u32 v13, s21, v13")
    a("v_lshlrev_b32 v14, 2, v2"); a("v_add_u32 v14, s21, v14")
    for r in range(12):
        a(f"v_cvt_pk_bf16_f32 v{16+r}, v{ACC+r}, v{ACC+r}")
    for r in range(12):
        row = 8*(r >> 2) + (r & 3)
        a(f"ds_write_b32 v10, v{16+r} offset:{row*128}")
    a("s_waitcnt lgkmcnt(0)")
    T = 64
    for r in range(8): a(f"ds_read_b32 v{T+r}, v13 offset:{r*128}")
    a(f"ds_read_b32 v{T+8}, v13 offset:{8*128}"); a(f"ds_read_b32 v{T+9}, v13 offset:{16*128}")
    a(f"ds_read_b32 v{T+10}, v13 offset:{17*128}"); a(f"ds_read_b32 v{T+11}, v13 offset:{18*128}")
    a(f"ds_read_b32 v{T+12}, v13 offset:{8*128+4}"); a(f"ds_read_b32 v{T+13}, v14 offset:{9*128}")
    a(f"ds_read_b32 v{T+14}, v14 offset:{19*128}")
    a("s_waitcnt lgkmcnt(4)")
    a(f"ds_read_b32 v{T+15}, v14 offset:{9*128+4}"); a(f"ds_read_b32 v{T+16}, v14 offset:{11*128}")
    a(f"ds_read_b32 v{T+17}, v14 offset:{11*128+4}"); a(f"ds_read_b32 v{T+18}, v14 offset:{13*128}")
    a(f"ds_read_b32 v{T+19}, v14 offset:{13*128+4}")
    def mix(d, lo, hi): a(f"v_bfi_b32 v{d}, s23, v{lo}, v{hi}")
    O = 88
    a("v_cmp_gt_u32 vcc, 32, v2")
    a("v_and_b32 v15, 1, v2"); a("v_cmp_eq_u32 s[24:25], 1, v15")
    a("s_waitcnt lgkmcnt(0)")
    for i in range(4): mix(O+i, T+2*i, T+2*i+1)
    a(f"v_mov_b32 v{O+4}, v{T+8}"); mix(O+5, T+9, T+10); a(f"v_mov_b32 v{O+6}, v{T+10}"); mix(O+7, T+11, T+12)
    for i in range(4): a(f"v_cndmask_b32 v{O+i}, v{O+4+i}, v{O+i}, vcc")
    a(f"v_mov_b32 v{O+8}, v{T+13}"); mix(O+9, T+13, T+14); a(f"v_mov_b32 v{O+10}, v{T+14}"); a(f"v_mov_b32 v{O+11}, v{T+15}")
    for k in range(2):
        s0, s1 = T+16+2*k, T+17+2*k
        d = O + 12 + 4*k
        a(f"v_mov_b32 v{d}, v{s0}"); a(f"v_mov_b32 v{d+1}, v{s0}"); mix(d+2, s0, s1)
        a(f"v_cndmask_b32 v{d+2}, v{d+2}, v{s1}, s[24:25]"); a(f"v_mov_b32 v{d+3}, v{s1}")
    a(f"ds_write_b128 v11, v[{O}:{O+3}]")
    a(f"ds_write_b128 v11, v[{O+8}:{O+11}] offset:1024")
    a(f"ds_write_b128 v11, v[{O+12}:{O+15}] offset:2048")
    a(f"ds_write_b128 v11, v[{O+16}:{O+19}] offset:3072")
    def sentinel_stores():
        srd_off(a, 56, 64, 65, WS_OT, D*XROW)
        a("v_lshrrev_b32 v3, 3, v2"); a(f"v_mul_u32_u24 v3, {XROW}, v3"); a("v_and_b32 v4, 7, v2"); a("v_lshl_add_u32 v3, v4, 4, v3")
        a(f"s_mul_i32 s22, s19, {80*XROW}"); a("s_lshl_b32 s23, s20, 7"); a("s_add_u32 s22, s22, s23"); a("v_add_u32 v3, s22, v3")
        for i in range(4): a(f"v_mov_b32 v{8+i}, -1")
        for i in range(10):
            a(f"s_mov_b32 s22, {8*XROW*i}")
            a(f"buffer_store_dwordx4 v[8:11], v3, s[56:59], s22 offen {cfg.st_ot}")
    if cfg.sentinel and cfg.sent_mode == "w6":
        a("s_cmp_eq_u32 s3, 6"); a("s_cbranch_scc0 L_PRE_B2")
        srd_off(a, 56, 64, 65, WS_OT, D*XROW)
        a("v_lshrrev_b32 v3, 3, v2"); a(f"v_mul_u32_u24 v3, {XROW}, v3"); a("v_and_b32 v4, 7, v2"); a("v_lshl_add_u32 v3, v4, 4, v3")
        a(f"s_mul_i32 s22, s19, {80*XROW}"); a("s_lshl_b32 s23, s20, 7"); a("s_add_u32 s22, s22, s23"); a("v_add_u32 v3, s22, v3")
        for i in range(4): a(f"v_mov_b32 v{8+i}, -1")
        for i in range(10):
            a(f"s_mov_b32 s22, {8*XROW*i}")
            a(f"buffer_store_dwordx4 v[8:11], v3, s[56:59], s22 offen {cfg.st_ot}")
    a("s_branch L_PRE_B2")
    a("L_T:")
    if cfg.prio: a("s_setprio 3")
    a("s_cmp_eq_u32 s3, 4"); a("s_cbranch_scc0 L_T1")
    a("s_cmp_eq_u32 s2, 0"); a("s_cbranch_scc0 L_T1")
    srd(a, 40, 12, 13, 256)
    a("s_memrealtime s[22:23]"); a("s_waitcnt lgkmcnt(0)")
    a("s_or_b32 s22, s22, 1"); a("s_or_b32 s23, s23, 0x80000000")
    a("v_mov_b32 v8, s22"); a("v_mov_b32 v9, s23"); a("v_mov_b32 v10, 0")
    a("s_mov_b64 exec, 1")
    a(f"buffer_store_dwordx2 v[8:9], v10, s[40:43], 0 offen {cfg.st_n}")
    a("s_mov_b64 exec, -1")
    a("L_T1:")
    srd(a, 24, 4, 5, S*D*2); srd(a, 28, 6, 7, S*D*2); srd(a, 32, 8, 9, S*D*2)
    a("v_mul_u32_u24 v3, 205, v2"); a("v_lshrrev_b32 v3, 11, v3")
    a("v_mul_u32_u24 v4, 10, v3"); a("v_sub_u32 v4, v2, v4")
    a("v_mul_u32_u24 v3, 1280, v3"); a("v_lshl_add_u32 v3, v4, 4, v3")
    a("s_mul_i32 s21, s20, 81920"); a("s_mul_i32 s22, s19, 160"); a("s_add_u32 s21, s21, s22")
    a("v_add_u32 v3, s21, v3"); a("v_subrev_u32 v4, 3840, v3"); a("v_add_u32 v5, 1280, v3")
    a("s_mov_b32 exec_hi, 0xff")
    def dma_i(ireg):
        a(f"s_mul_i32 s22, {ireg}, 640"); a(f"s_lshr_b32 s23, {ireg}, 1"); a("s_lshl_b32 s23, s23, 4")
        a("s_add_u32 s22, s22, s23"); a(f"s_mul_i32 s14, {ireg}, 5120"); a("s_sub_u32 s23, s14, 5120")
    a("s_cmp_eq_u32 s3, 0"); a("s_cbranch_scc0 L_DMA")
    a(f"s_mov_b32 m0, {L_ST + ST_K}"); a("s_nop 0")
    a(f"buffer_load_dwordx4 v4, s[28:31], 0 offen {nt} lds")
    a("L_DMA:")
    a("s_mov_b32 s15, s3")
    a("L_DMA_LOOP:")
    dma_i("s15")
    a("s_cmp_eq_u32 s15, 0"); a("s_cbranch_scc1 L_DMA_VQ")
    a(f"s_add_u32 m0, s22, {L_ST + ST_K}"); a("s_nop 0")
    a(f"buffer_load_dwordx4 v5, s[28:31], s23 offen {nt} lds")
    a("s_cmp_eq_u32 s15, 16"); a("s_cbranch_scc1 L_DMA_DONE")
    a("L_DMA_VQ:")
    a(f"s_add_u32 m0, s22, {L_ST + ST_V}"); a("s_nop 0")
    a(f"buffer_load_dwordx4 v3, s[32:35], s14 offen {nt} lds")
    a(f"s_add_u32 m0, s22, {L_ST + ST_Q}"); a("s_nop 0")
    a(f"buffer_load_dwordx4 v3, s[24:27], s14 offen {nt} lds")
    a("s_add_u32 s15, s15, 5"); a("s_cmp_le_u32 s15, 16"); a("s_cbranch_scc1 L_DMA_LOOP")
    a("L_DMA_DONE:")
    a("s_mov_b64 exec, -1")
    srd(a, 36, 10, 11, D*8)
    srd(a, 40, 46, 47, D*2)
    a("v_lshrrev_b32 v11, 3, v0"); a("v_and_b32 v13, 7, v0")
    a("s_mul_i32 s23, s19, 640"); a("v_lshl_add_u32 v12, v11, 4, s23")
    a("buffer_load_dwordx4 v[16:19], v12, s[36:39], 0 offen")
    def dscalar(dst, base, ch):
        a(f"s_lshl_b32 s22, {ch}, 1"); a("s_andn2_b32 s22, s22, 3")
        a(f"s_load_dword s{dst}, s[{base}:{base+1}], s22")
    a("s_and_b32 s23, s3, 3"); a("s_lshl_b32 s23, s23, 1"); a("s_lshl_b32 s14, s20, 6"); a("s_add_u32 s23, s23, s14")
    a("s_lshl_b32 s14, s19, 3"); a("s_add_u32 s23, s23, s14")
    a("v_lshrrev_b32 v12, 5, v2"); a("v_add_u32 v12, s23, v12")
    a("v_and_b32 v14, 31, v2"); a("v_lshlrev_b32 v14, 4, v14")
    a("v_mul_u32_u24 v15, 1280, v12"); a("v_add_u32 v15, v15, v14")
    a("v_add_u32 v20, 1024, v15"); a("v_cmp_gt_u32 vcc, 256, v14"); a("v_mov_b32 v21, -1"); a("v_cndmask_b32 v20, v21, v20, vcc")
    a("v_mul_u32_u24 v21, 1296, v13"); a("v_lshl_add_u32 v21, v11, 2, v21"); a(f"v_add_u32 v21, {L_ST}, v21")
    a("s_mul_i32 s23, s19, 80"); a("v_lshl_add_u32 v22, v11, 1, s23")
    a(f"s_movk_i32 s14, {2*XROW}"); a("v_mul_lo_u32 v22, v22, s14")
    a("s_lshl_b32 s15, s20, 7"); a("s_sub_u32 s15, 4080, s15")
    a("v_lshlrev_b32 v23, 4, v13"); a("v_sub_u32 v23, s15, v23"); a("v_add_u32 v22, v22, v23")
    srd_off(a, 44, 64, 65, WS_X, 1280*XROW)
    nsent = 0
    if cfg.sentinel and cfg.sent_mode == "t":
        nsent = 2
        srd_off(a, 56, 64, 65, WS_OT, D*XROW)
        a("v_lshrrev_b32 v3, 3, v2"); a(f"v_mul_u32_u24 v3, {XROW}, v3"); a("v_and_b32 v4, 7, v2"); a("v_lshl_add_u32 v3, v4, 4, v3")
        a(f"s_mul_i32 s22, s19, {80*XROW}"); a("s_lshl_b32 s23, s20, 7"); a("s_add_u32 s22, s22, s23"); a("v_add_u32 v3, s22, v3")
        for i in range(4): a(f"v_mov_b32 v{8+i}, -1")
        a(f"s_mul_i32 s22, s3, {16*XROW}"); a(f"s_add_u32 s23, s22, {8*XROW}")
        if cfg.sent_early:
            a(f"buffer_store_dwordx4 v[8:11], v3, s[56:59], s22 offen {cfg.st_ot}")
            a(f"buffer_store_dwordx4 v[8:11], v3, s[56:59], s23 offen {cfg.st_ot}")
    a("s_cmp_eq_u32 s3, 4"); a("s_cbranch_scc1 L_W4")
    stamp(a, cfg, 1)
    a("s_waitcnt vmcnt(0)")
    a("buffer_load_dwordx4 v[24:27], v15, s[24:27], 0 offen")
    a("buffer_load_dwordx4 v[28:31], v15, s[24:27], 0 offen offset:512")
    a("buffer_load_dwordx4 v[32:35], v20, s[24:27], 0 offen")
    a("buffer_load_dwordx4 v[36:39], v14, s[40:43], 0 offen")
    a("buffer_load_dwordx4 v[40:43], v14, s[40:43], 0 offen offset:512")
    a("buffer_load_dwordx4 v[44:47], v14, s[40:43], 0 offen offset:1024")
    a("s_branch L_TS0")
    a("L_W4:")
    srd(a, 40, 12, 13, 256)
    a("v_mov_b32 v26, 0")
    a(f"buffer_load_dwordx2 v[24:25], v26, s[40:43], 0 offen {cfg.ld_n}")
    stamp(a, cfg, 1)
    a("s_waitcnt vmcnt(0)")
    a(f"s_mov_b32 s21, {cfg.spin_max}")
    a("L_NONCE_CHK:")
    a("v_readfirstlane_b32 s66, v24"); a("v_readfirstlane_b32 s67, v25")
    a("s_cmp_eq_u32 s66, 0"); a("s_cselect_b32 s14, 0, s67"); a("s_cmp_lg_u32 s14, 0")
    a("s_cbranch_scc1 L_NONCE_OK")
    a("s_sub_u32 s21, s21, 1"); a("s_cmp_eq_u32 s21, 0"); a("s_cbranch_scc1 L_NONCE_OK")
    a(f"buffer_load_dwordx2 v[24:25], v26, s[40:43], 0 offen {cfg.ld_n}")
    a("s_waitcnt vmcnt(0)")
    a("s_branch L_NONCE_CHK")
    a("L_NONCE_OK:")
    a(f"v_mov_b32 v4, {L_CNT}")
    a("s_mov_b64 exec, 1")
    a("ds_write_b64 v4, v[24:25] offset:8")
    a("s_mov_b64 exec, -1")
    a("L_TS0:")
    a(f"v_mov_b32 v4, {L_CNT}"); a("v_mov_b32 v5, 1")
    a("s_mov_b64 exec, 1")
    a("ds_add_u32 v4, v5")
    a("L_TSYNC:")
    a("ds_read_b32 v5, v4"); a("s_waitcnt lgkmcnt(0)")
    a("v_cmp_gt_u32 vcc, 5, v5"); a("s_cbranch_vccnz L_TSYNC")
    a("s_mov_b64 exec, -1")
    stamp(a, cfg, 2)
    if cfg.sentinel and not cfg.sent_early and cfg.sent_mode == "t":
        a(f"buffer_store_dwordx4 v[8:11], v3, s[56:59], s22 offen {cfg.st_ot}")
        a(f"buffer_store_dwordx4 v[8:11], v3, s[56:59], s23 offen {cfg.st_ot}")
    KR, VR, QR = 48, 60, 68
    for r in range(11): a(f"ds_read_b32 v{KR+r}, v21 offset:{ST_K + r*160 + (r >> 3)*16}")
    for r in range(8): a(f"ds_read_b32 v{VR+r}, v21 offset:{ST_V + r*160}")
    for r in range(8): a(f"ds_read_b32 v{QR+r}, v21 offset:{ST_Q + r*160}")
    W = 80
    a(f"v_lshlrev_b32 v{W+0}, 16, v16");  a(f"v_lshlrev_b32 v{W+1}, 16, v18")
    a(f"v_and_b32 v{W+2}, 0xffff0000, v16"); a(f"v_and_b32 v{W+3}, 0xffff0000, v18")
    a(f"v_lshlrev_b32 v{W+4}, 16, v17");  a(f"v_lshlrev_b32 v{W+5}, 16, v19")
    a(f"v_and_b32 v{W+6}, 0xffff0000, v17"); a(f"v_and_b32 v{W+7}, 0xffff0000, v19")
    K2, V2, KV = 88, 110, 128
    a("s_mov_b32 s14, 0x05040100"); a("s_mov_b32 s15, 0x07060302")
    a("s_waitcnt lgkmcnt(0)")
    O2 = 144
    for e in range(2):
        for i in range(4): a(f"v_perm_b32 v{O2+8*e+4+i}, v{QR+6-2*i}, v{QR+7-2*i}, s{14+e}")
    st = cfg.st_x
    a(f"s_movk_i32 s22, {XROW}"); a(f"s_movk_i32 s23, {3*XROW}")
    a(f"buffer_store_dwordx4 v[{O2+4}:{O2+7}], v22, s[44:47], s22 offen {st}")
    a(f"buffer_store_dwordx4 v[{O2+12}:{O2+15}], v22, s[44:47], s23 offen {st}")
    for r in range(11):
        a(f"v_lshlrev_b32 v{K2+2*r}, 16, v{KR+r}"); a(f"v_and_b32 v{K2+2*r+1}, 0xffff0000, v{KR+r}")
    for r in range(8):
        a(f"v_lshlrev_b32 v{V2+2*r}, 16, v{VR+r}"); a(f"v_and_b32 v{V2+2*r+1}, 0xffff0000, v{VR+r}")
    def pk(op, d, *srcs): a(f"{op} v[{d}:{d+1}], " + ", ".join(f"v[{s_}:{s_+1}]" for s_ in srcs))
    for r in range(8): pk("v_pk_mul_f32", KV+2*r, K2+2*(r+0), W+6)
    for r in range(8): pk("v_pk_fma_f32", KV+2*r, K2+2*(r+1), W+4, KV+2*r)
    for r in range(8): pk("v_pk_fma_f32", KV+2*r, K2+2*(r+2), W+2, KV+2*r)
    for r in range(8): pk("v_pk_fma_f32", KV+2*r, K2+2*(r+3), W+0, KV+2*r)
    for r in range(8): pk("v_pk_mul_f32", KV+2*r, KV+2*r, V2+2*r)
    for e in range(2):
        for i in range(4): a(f"v_cvt_pk_bf16_f32 v{O2+8*e+i}, v{KV+2*(7-2*i)+e}, v{KV+2*(6-2*i)+e}")
    a(f"s_movk_i32 s22, {2*XROW}")
    a(f"buffer_store_dwordx4 v[{O2}:{O2+3}], v22, s[44:47], 0 offen {st}")
    a(f"buffer_store_dwordx4 v[{O2+8}:{O2+11}], v22, s[44:47], s22 offen {st}")
    stamp(a, cfg, 3)
    a("s_and_b32 s14, s3, 1"); a("s_cmp_eq_u32 s14, 0"); a("s_cbranch_scc0 L_NOSSM")
    a("s_lshr_b32 s22, s3, 1"); a("s_add_u32 s14, s16, s22"); a("s_cmp_eq_u32 s3, 4"); a("s_cselect_b32 s14, s17, s14")
    a("s_lshl_b32 s23, s14, 12")
    srd_off(a, 56, 48, 49, "s23", 4096)
    a("v_lshlrev_b32 v3, 4, v2")
    a(f"s_mul_i32 s14, s3, {KARR}")
    for q in range(4):
        a(f"s_add_u32 m0, s14, {L_K + 480 + 1024*q}"); a(f"s_movk_i32 s23, {1024*q}")
        a(f"buffer_load_dwordx4 v3, s[56:59], s23 offen {nt} lds")
    a("s_waitcnt vmcnt(4)")
    a("s_branch L_XACK0")
    a("L_NOSSM:")
    a("s_waitcnt vmcnt(0)")
    a("L_XACK0:")
    a("s_cmp_eq_u32 s3, 4"); a("s_cbranch_scc1 L_W4D")
    srd_off(a, 36, 64, 65, WS_G, 16384)
    stamp(a, cfg, 13)
    a(f"v_mov_b32 v4, {L_CNT}"); a("v_mov_b32 v5, 1")
    a("s_mov_b64 exec, 1")
    a("ds_add_u32 v4, v5 offset:4")
    a("s_mov_b64 exec, -1")
    a("v_mov_b32 v4, 0"); a("s_mov_b32 s14, 0x3f803f80")
    for c in range(3):
        for i in range(4):
            xq = 24 + 4*c + i; wq = 36 + 4*c + i; t = 48 + 4*((4*c+i) % 2)
            a(f"v_lshlrev_b32 v{t}, 16, v{xq}"); a(f"v_and_b32 v{t+1}, 0xffff0000, v{xq}")
            a(f"v_lshlrev_b32 v{t+2}, 16, v{wq}"); a(f"v_and_b32 v{t+3}, 0xffff0000, v{wq}")
            a(f"v_pk_mul_f32 v[{t}:{t+1}], v[{t}:{t+1}], v[{t+2}:{t+3}]")
            a(f"v_cvt_pk_bf16_f32 v{t}, v{t}, v{t+1}")
            a(f"v_dot2_f32_bf16 v4, v{t}, s14, v4")
    for sh in (1, 2, 4, 8):
        a(f"v_add_f32_dpp v4, v4, v4 row_shr:{sh} row_mask:0xf bank_mask:0xf bound_ctrl:0")
    a("v_add_f32_dpp v4, v4, v4 row_bcast:15 row_mask:0xa bank_mask:0xf")
    a("v_cvt_pk_bf16_f32 v4, v4, v4"); a("v_lshlrev_b32 v4, 16, v4")
    a("v_mul_f32 v5, 0xbfb8aa3b, v4"); a("v_exp_f32 v5, v5"); a("v_add_f32 v5, 1.0, v5"); a("v_rcp_f32 v5, v5")
    a("v_cvt_pk_bf16_f32 v5, v5, v5"); a("v_lshlrev_b32 v5, 16, v5")
    a("v_sub_f32 v6, 1.0, v5"); a("v_cvt_pk_bf16_f32 v6, v5, v6")
    a(f"v_mov_b32 v9, {L_CNT}"); a("ds_read_b32 v7, v9 offset:8")
    a("v_lshlrev_b32 v9, 3, v12"); a("v_and_b32 v8, 31, v2"); a("v_cmp_eq_u32 vcc, 31, v8")
    a("s_waitcnt lgkmcnt(0)")
    a("s_and_saveexec_b64 s[22:23], vcc")
    a(f"buffer_store_dwordx2 v[6:7], v9, s[36:39], 0 offen {cfg.st_g}")
    a("s_mov_b64 exec, -1")
    a("s_branch L_PRE_B2")
    a("L_W4D:")
    stamp(a, cfg, 13)
    a(f"v_mov_b32 v4, {L_CNT}")
    a("s_mov_b64 exec, 1")
    a("L_TSYNC2:")
    a("ds_read_b32 v5, v4 offset:4"); a("s_waitcnt lgkmcnt(0)")
    a("v_cmp_gt_u32 vcc, 4, v5"); a("s_cbranch_vccnz L_TSYNC2")
    a("s_mov_b64 exec, -1")
    stamp(a, cfg, 5)
    srd(a, 60, 64, 65, 0x1000000)
    mb_send(a, cfg, WS_MB1, 32, "grp")
    mb_poll(a, cfg, "A", WS_MB1, 32, 8)
    a("L_PRE_B2:")
    if cfg.prio: a("s_setprio 0")
    stamp(a, cfg, 4)
    for n_, (base, ch) in enumerate(((50, "s16"), (50, None), (50, "s17"), (52, "s16"), (52, None), (52, "s17"))):
        if ch is None: a("s_add_u32 s14, s16, 1"); ch = "s14"
        a(f"s_lshl_b32 s22, {ch}, 1"); a("s_and_b32 s22, s22, 0xfffffffc")
        a(f"s_load_dword s{8+n_}, s[{base}:{base+1}], s22")
    srd(a, 60, 64, 65, 0x1000000)
    a("v_and_b32 v2, 63, v0")
    a("s_lshr_b32 s21, s3, 1"); a("s_add_u32 s22, s16, s21"); a("s_cmp_ge_u32 s3, 4"); a("s_cselect_b32 s22, s17, s22")
    a("s_and_b32 s23, s3, 1")
    a("s_lshl_b32 s14, s22, 1"); a("s_add_u32 s14, s14, s23"); a(f"s_mul_i32 s14, s14, {XROW}")
    srd_off(a, 24, 64, 65, "s14", 4096)
    a(f"s_mul_i32 s34, s3, {XARR}"); a(f"s_mul_i32 s35, s3, {KARR}"); a(f"s_add_u32 s35, s35, {L_K}")
    a("v_lshlrev_b32 v3, 4, v2"); a("v_add_u32 v4, 4, v3")
    a("v_and_b32 v8, 15, v2"); a("v_lshrrev_b32 v9, 4, v2")
    a("v_sub_u32 v10, 3, v8"); a("v_and_b32 v10, 3, v10")
    a("v_lshlrev_b32 v11, 3, v9"); a("v_sub_u32 v11, v11, v8"); a("v_add_u32 v11, 2031, v11"); a("v_sub_u32 v11, v11, v10")
    a("v_lshlrev_b32 v11, 1, v11"); a(f"v_mul_u32_u24 v12, {XCP}, v10"); a("v_add_u32 v11, v11, v12"); a("v_subrev_u32 v11, 4032, v11")
    a("v_lshlrev_b32 v12, 5, v8"); a("v_lshl_add_u32 v12, v9, 4, v12")
    VA, VB, VA2, VB2, VY, VX = 13, 14, 15, 16, 17, 18
    a(f"v_add_u32 v{VA}, s34, v11"); a(f"v_add_u32 v{VB}, s35, v12")
    a("s_add_u32 s36, s23, 4"); a(f"s_mul_i32 s37, s36, {XARR}"); a(f"s_mul_i32 s38, s36, {KARR}"); a(f"s_add_u32 s38, s38, {L_K}")
    a("s_lshr_b32 s39, s3, 1"); a("s_sub_u32 s39, 1, s39"); a("s_lshl_b32 s39, s39, 8")
    a("s_add_u32 s40, s37, s39"); a("s_add_u32 s41, s38, s39")
    a(f"v_add_u32 v{VA2}, s40, v11"); a(f"v_add_u32 v{VB2}, s41, v12")
    a(f"v_lshlrev_b32 v{VY}, 5, v8"); a(f"v_lshl_add_u32 v{VY}, v9, 3, v{VY}")
    a(f"v_add_u32 v19, s35, v{VY}")
    a("v_lshrrev_b32 v5, 1, v2"); a(f"v_mul_u32_u24 v5, {XCP}, v5"); a("v_and_b32 v6, 1, v2")
    a("v_lshl_add_u32 v5, v6, 4, v5"); a("v_add_u32 v5, s34, v5")
    a(f"v_add_u32 v{VX}, s34, v3")
    for i in range(4): a(f"v_mov_b32 v{8+i}, 0")
    stamp(a, cfg, 6)
    a("s_and_b32 s14, s3, 5"); a("s_cmp_eq_u32 s14, 4"); a("s_cbranch_scc1 L_B3W")
    a("s_waitcnt vmcnt(0)")
    a("L_B3W:")
    a("s_waitcnt lgkmcnt(0)")
    a("s_barrier")
    stamp(a, cfg, 7)
    ld = cfg.ld_x
    W = 64
    def xload():
        for q in range(4):
            a(f"buffer_load_dwordx4 v[{W+8*q}:{W+8*q+3}], v3, s[24:27], 0 offen offset:{1024*q} {ld}")
            a(f"buffer_load_dwordx4 v[{W+8*q+4}:{W+8*q+7}], v3, s[24:27], 0 offen offset:{1024*q+16} {ld}")
        for cp, vreg in ((0, 3), (2, 4)):
            for q in range(4):
                a(f"s_add_u32 m0, s34, {cp*XCP + 1024*q}"); a(f"s_movk_i32 s36, {1024*q}")
                a(f"buffer_load_dwordx4 v{vreg}, s[24:27], s36 offen {ld} lds")
        a("s_mov_b64 exec, 0xff")
        a("ds_write_b128 v5, v[8:11] offset:4096")
        a("s_mov_b64 exec, -1")
        a("s_waitcnt vmcnt(8)")
        stamp(a, cfg, 8)
        for q in range(4):
            w = W + 8*q
            for j in range(4): a(f"v_alignbit_b32 v{96+j}, v{w+j+1}, v{w+j}, 16")
            for j in range(4): a(f"v_alignbit_b32 v{100+j}, v{w+j+2}, v{w+j+1}, 16")
            if q: pass
            a(f"ds_write_b128 v{VX}, v[96:99] offset:{1*XCP + 1024*q}")
            a(f"ds_write_b128 v{VX}, v[100:103] offset:{3*XCP + 1024*q}")
            W2 = None
        a("s_waitcnt vmcnt(0) lgkmcnt(0)")
    a("s_cmp_ge_u32 s3, 4"); a("s_cbranch_scc1 L_HELP")
    xload()
    stamp(a, cfg, 9)
    a("s_barrier")
    sets = [(20, 52), (84, 116)]
    ACC0, ACC2 = 148, 180
    pairs = [(aa, cc) for aa in range(8) for cc in range(8 - aa)]
    offA = lambda i, b, h: 512*(7-i) + 64*(7-b) + 8*h
    offB = lambda c, b: 512*c + 64*(7-b)
    offA2 = lambda i, b, h: 512*(7-i) + 64*(3-b) + 8*h
    offB2 = lambda c, b: 512*c + 64*(3-b)
    for l in op_loads(pairs, 0, *sets[0], VA, VB, offA, offB): a(l)
    a(f"v_mov_b32 v6, {L_CNT - 4}")
    for b in range(7):
        fill = op_loads(pairs, b+1, *sets[(b+1) & 1], VA, VB, offA, offB)
        if b == 6:
            a("L_C1:")
            a("ds_read_b32 v7, v6"); a("s_waitcnt lgkmcnt(0)")
            a("v_cmp_gt_u32 vcc, 2, v7"); a("s_cbranch_vccnz L_C1")
        mfma_iter(a, pairs, lambda aa, cc: ACC0 + 4*(aa+cc), *sets[b & 1], fill, b == 0, cfg.frac)
    a("s_cmp_eq_u32 s18, 0"); a("s_cbranch_scc0 L_C2_E1")
    ywr = []
    for p in range(8):
        tt = (4, 6)[p & 1]
        ywr += [f"v_cvt_pk_bf16_f32 v{tt}, v{ACC0+4*p}, v{ACC0+4*p+1}", f"v_cvt_pk_bf16_f32 v{tt+1}, v{ACC0+4*p+2}, v{ACC0+4*p+3}",
                f"ds_write_b64 v19, v[{tt}:{tt+1}] offset:{512*p}"]
    for e in range(2):
        if e == 1: a("L_C2_E1:")
        ps = PSET[e]
        prs = [(aa, cc) for aa in range(8) for cc in range(8 - aa) if aa + cc in ps]
        a("s_waitcnt lgkmcnt(0)")
        pre = op_loads(prs, 0, *sets[0], VA2, VB2, offA2, offB2)
        last = {aa + cc: idx for idx, (aa, cc) in enumerate(pairs)}
        ins = {i: [] for i in range(len(pairs))}
        for n_, l in enumerate(pre): ins[min(len(pairs)-1, n_ + 1)].append(l)
        for p_ in range(5):
            c0_, c1_, w_ = ywr[3*p_:3*p_+3]
            ins[min(35, last[p_] + 5)] += [c0_, c1_]; ins[min(35, last[p_] + 7)].append(w_)
        A0, B0 = sets[1]
        for idx, (aa, cc) in enumerate(pairs):
            d = ACC0 + 4*(aa+cc)
            a(f"v_mfma_f32_16x16x32_bf16 v[{d}:{d+3}], v[{A0+4*aa}:{A0+4*aa+3}], v[{B0+4*cc}:{B0+4*cc+3}], v[{d}:{d+3}]")
            for l in ins[idx]: a(l)
        stamp(a, cfg, 10)
        for b in range(4):
            fill = op_loads(prs, b+1, *sets[(b+1) & 1], VA2, VB2, offA2, offB2) if b < 3 else []
            if b == 0: fill = fill[:6] + ywr[15:17] + fill[6:9] + ywr[17:20] + fill[9:12] + ywr[20:23] + fill[12:15] + ywr[23:24] + fill[15:]
            if b == 1:
                a("s_waitcnt lgkmcnt(0)"); a("s_barrier")
            mfma_iter(a, prs, lambda aa, cc: ACC2 + 4*ps.index(aa+cc), *sets[b & 1], fill, b == 0, 0.95)
        if e == 0: a("s_branch L_C2_DONE")
    a("L_C2_DONE:")
    stamp(a, cfg, 11)
    def dscal_fix():
        a("s_waitcnt lgkmcnt(0)")
        for n_, ch in enumerate(("s16", None, "s17", "s16", None, "s17")):
            if ch is None: a("s_add_u32 s14, s16, 1"); ch = "s14"
            a(f"s_and_b32 s22, {ch}, 1"); a("s_lshl_b32 s22, s22, 4")
            a(f"s_lshr_b32 s{8+n_}, s{8+n_}, s22"); a(f"s_lshl_b32 s{8+n_}, s{8+n_}, 16")
    a("s_and_b32 s36, s3, 1"); a("s_lshl_b32 s39, s36, 2"); a("s_add_u32 s36, s36, 2"); a(f"s_mul_i32 s36, s36, {XARR}"); a(f"s_add_u32 s36, s36, {XCP}")
    a("v_add_u32 v4, s36, v3")
    a("s_lshl_b32 s37, s18, 9")
    a(f"v_add_u32 v5, s38, v{VY}")
    a("v_add_u32 v6, s37, v5"); a("v_subrev_u32 v7, s37, v5")
    a(f"s_add_u32 s39, s39, {L_CNT - 16}"); a("v_mov_b32 v8, s39"); a("v_mov_b32 v9, 1")
    def lds_sync(tag, vaddr, off, target):
        a("s_waitcnt lgkmcnt(0)")
        a("s_mov_b64 exec, 1")
        a(f"ds_add_u32 v{vaddr}, v9 offset:{off}")
        a(f"L_SY_{tag}:")
        a(f"ds_read_b32 v10, v{vaddr} offset:{off}"); a("s_waitcnt lgkmcnt(0)")
        a(f"v_cmp_gt_u32 vcc, {target}, v10"); a(f"s_cbranch_vccnz L_SY_{tag}")
        a("s_mov_b64 exec, -1")
    a("s_cmp_lt_u32 s3, 2"); a("s_cbranch_scc0 L_RED_HI")
    for (lbl, keep, give) in (("lo", (0, 1), (2, 3)), ("hi", (2, 3), (0, 1))):
        if lbl == "hi": a("L_RED_HI:")
        a("s_nop 4")
        for ti in give: a(f"ds_write_b128 v4, v[{ACC2+4*ti}:{ACC2+4*ti+3}] offset:{1024*ti}")
        lds_sync("R" + lbl, 8, 0, 2)
        for n_, ti in enumerate(keep): a(f"ds_read_b128 v[{20+4*n_}:{23+4*n_}], v4 offset:{1024*ti}")
        a("s_waitcnt lgkmcnt(0)")
        for n_, ti in enumerate(keep):
            for r in range(0, 4, 2):
                a(f"v_pk_add_f32 v[{20+4*n_+r}:{21+4*n_+r}], v[{20+4*n_+r}:{21+4*n_+r}], v[{ACC2+4*ti+r}:{ACC2+4*ti+r+1}]")
            a(f"v_cvt_pk_bf16_f32 v{28+2*n_}, v{20+4*n_}, v{21+4*n_}"); a(f"v_cvt_pk_bf16_f32 v{29+2*n_}, v{22+4*n_}, v{23+4*n_}")
        for n_, ti in enumerate(keep):
            if ti & 1: a(f"ds_write_b64 v7, v[{28+2*n_}:{29+2*n_}] offset:{1024*ti + 512}")
            else: a(f"ds_write_b64 v6, v[{28+2*n_}:{29+2*n_}] offset:{1024*ti}")
        if lbl == "lo": a("s_branch L_RED_DONE")
    a("L_RED_DONE:")
    a(f"v_mov_b32 v8, {L_CNT - 16}")
    lds_sync("Y2", 8, 8, 4)
    stamp(a, cfg, 12)
    dscal_fix()
    srd_off(a, 28, 64, 65, WS_OT, D*XROW)
    a("v_lshrrev_b32 v1, 6, v0"); a("v_and_b32 v2, 1, v1"); a("v_xor_b32 v2, s18, v2"); a("v_lshl_add_u32 v1, v1, 1, v2")
    a("v_lshlrev_b32 v1, 8, v1"); a("v_and_b32 v2, 63, v0"); a("v_lshl_add_u32 v1, v2, 2, v1")
    a("v_lshlrev_b32 v7, 1, v1")
    a(f"v_add_u32 v8, {L_K + 4*KARR}, v7"); a(f"v_sub_u32 v9, {4*XARR + 4088}, v7")
    a("v_lshlrev_b32 v10, 2, v1"); a(f"v_add_u32 v10, {L_G}, v10")
    a("ds_read_b64 v[20:21], v8"); a(f"ds_read_b64 v[22:23], v8 offset:{KARR}")
    a("ds_read_b64 v[24:25], v9"); a(f"ds_read_b64 v[26:27], v9 offset:{XARR}")
    a("ds_read_b128 v[28:31], v10"); a("ds_read_b128 v[32:35], v10 offset:8192")
    a(f"s_mul_i32 s47, s17, {XROW}"); a("v_add_u32 v7, s47, v7")
    a("v_mov_b32 v12, s10"); a("v_mov_b32 v13, s10"); a("v_mov_b32 v14, s13"); a("v_mov_b32 v15, s13")
    a("s_waitcnt lgkmcnt(0)")
    for i in range(2):
        t = 52 + 8*i
        a(f"v_lshlrev_b32 v{t}, 16, v{20+i}"); a(f"v_and_b32 v{t+1}, 0xffff0000, v{20+i}")
        a(f"v_lshlrev_b32 v{t+2}, 16, v{22+i}"); a(f"v_and_b32 v{t+3}, 0xffff0000, v{22+i}")
        a(f"v_and_b32 v{t+4}, 0xffff0000, v{24+1-i}"); a(f"v_lshlrev_b32 v{t+5}, 16, v{24+1-i}")
        a(f"v_and_b32 v{t+6}, 0xffff0000, v{26+1-i}"); a(f"v_lshlrev_b32 v{t+7}, 16, v{26+1-i}")
    for i in range(2):
        t = 52 + 8*i
        a(f"v_pk_fma_f32 v[{t}:{t+1}], v[{t+4}:{t+5}], v[12:13], v[{t}:{t+1}]")
        a(f"v_pk_fma_f32 v[{t+2}:{t+3}], v[{t+6}:{t+7}], v[14:15], v[{t+2}:{t+3}]")
    for i in range(2):
        t = 52 + 8*i
        a(f"v_pk_mul_f32 v[{t}:{t+1}], v[{t}:{t+1}], v[{t+6}:{t+7}]")
        a(f"v_pk_mul_f32 v[{t}:{t+1}], v[{t}:{t+1}], v[{28+2*i}:{29+2*i}]")
        a(f"v_pk_fma_f32 v[{t}:{t+1}], v[{t+2}:{t+3}], v[{32+2*i}:{33+2*i}], v[{t}:{t+1}]")
        a(f"v_cvt_pk_bf16_f32 v{68+i}, v{t}, v{t+1}")
    if cfg.sentinel:
        for i in range(2): a(f"v_min_u32 v{68+i}, 0xfffffffe, v{68+i}")
    a(f"buffer_store_dwordx2 v[68:69], v7, s[28:31], 0 offen {cfg.st_ot}")
    a("s_branch L_FINAL")
    def epi_oct(tagc):
        a("s_lshl_b32 s43, s42, 1")
        a(f"s_mul_i32 s45, s43, {XARR}"); a(f"s_mul_i32 s46, s43, {KARR}"); a(f"s_add_u32 s46, s46, {L_K}")
        a("v_lshlrev_b32 v7, 1, v1"); a("v_add_u32 v8, s46, v7")
        a("v_sub_u32 v9, 4080, v7"); a("v_add_u32 v9, s45, v9")
        a("v_lshlrev_b32 v10, 2, v1"); a(f"v_add_u32 v10, {L_G}, v10")
        a("ds_read_b128 v[20:23], v8"); a(f"ds_read_b128 v[24:27], v8 offset:{KARR}")
        a("ds_read_b128 v[28:31], v9"); a(f"ds_read_b128 v[32:35], v9 offset:{XARR}")
        a("ds_read_b128 v[36:39], v10"); a("ds_read_b128 v[40:43], v10 offset:16")
        a("ds_read_b128 v[44:47], v10 offset:8192"); a("ds_read_b128 v[48:51], v10 offset:8208")
        a("s_add_u32 s47, s16, s42"); a(f"s_mul_i32 s47, s47, {XROW}"); a("v_add_u32 v7, s47, v7")
        a("s_cmp_eq_u32 s42, 0"); a("s_cselect_b32 s44, s8, s9"); a("s_cselect_b32 s45, s11, s12")
        a("v_mov_b32 v12, s44"); a("v_mov_b32 v13, s44"); a("v_mov_b32 v14, s45"); a("v_mov_b32 v15, s45")
        a("s_waitcnt lgkmcnt(0)")
        for i in range(4):
            t = 52 + 8*(i & 1)
            a(f"v_lshlrev_b32 v{t}, 16, v{20+i}"); a(f"v_and_b32 v{t+1}, 0xffff0000, v{20+i}")
            a(f"v_lshlrev_b32 v{t+2}, 16, v{24+i}"); a(f"v_and_b32 v{t+3}, 0xffff0000, v{24+i}")
            a(f"v_and_b32 v{t+4}, 0xffff0000, v{28+3-i}"); a(f"v_lshlrev_b32 v{t+5}, 16, v{28+3-i}")
            a(f"v_and_b32 v{t+6}, 0xffff0000, v{32+3-i}"); a(f"v_lshlrev_b32 v{t+7}, 16, v{32+3-i}")
            a(f"v_pk_fma_f32 v[{t}:{t+1}], v[{t+4}:{t+5}], v[12:13], v[{t}:{t+1}]")
            a(f"v_pk_fma_f32 v[{t+2}:{t+3}], v[{t+6}:{t+7}], v[14:15], v[{t+2}:{t+3}]")
            a(f"v_pk_mul_f32 v[{t}:{t+1}], v[{t}:{t+1}], v[{t+6}:{t+7}]")
            a(f"v_pk_mul_f32 v[{t}:{t+1}], v[{t}:{t+1}], v[{36+2*i}:{37+2*i}]")
            a(f"v_pk_fma_f32 v[{t}:{t+1}], v[{t+2}:{t+3}], v[{44+2*i}:{45+2*i}], v[{t}:{t+1}]")
            a(f"v_cvt_pk_bf16_f32 v{68+i}, v{t}, v{t+1}")
        if cfg.sentinel:
            for i in range(4): a(f"v_min_u32 v{68+i}, 0xfffffffe, v{68+i}")
        a(f"buffer_store_dwordx4 v[68:71], v7, s[28:31], 0 offen {cfg.st_ot}")
    a("L_HELP:")
    a("s_barrier")
    a("s_cmp_ge_u32 s3, 6"); a("s_cbranch_scc1 L_H67")
    xload()
    a(f"v_mov_b32 v4, {L_CNT - 4}"); a("v_mov_b32 v5, 1")
    a("s_mov_b64 exec, 1"); a("ds_add_u32 v4, v5"); a("s_mov_b64 exec, -1")
    a("s_branch L_HELP2")
    a("L_H67:")
    if cfg.sentinel and cfg.sent_mode in ("w6", "w6b"):
        a("s_cmp_eq_u32 s3, 6"); a("s_cbranch_scc0 L_H7")
        if cfg.sent_mode == "w6b": sentinel_stores()
        a(f"v_mov_b32 v4, {L_CNT}"); a("ds_read_b64 v[6:7], v4 offset:8")
        a("s_waitcnt vmcnt(0) lgkmcnt(0)")
        a("v_readfirstlane_b32 s66, v6"); a("v_readfirstlane_b32 s67, v7")
        mb_send(a, cfg, WS_MB3, 32, "grp")
        mb_poll(a, cfg, "S", WS_MB3, 32, 8)
        a("s_branch L_HELP2")
        a("L_H7:")
    onew = cfg.sentinel and cfg.sent_mode in ("w6", "w6b")
    nq = 16 if onew else 8
    a(f"v_mov_b32 v4, {L_CNT}"); a("ds_read_b32 v5, v4 offset:8")
    srd_off(a, 24, 64, 65, WS_G, 16384)
    if onew: a("s_mov_b32 s36, 0")
    else: a("s_sub_u32 s36, s3, 6"); a("s_lshl_b32 s36, s36, 13")
    a("v_lshlrev_b32 v3, 4, v2"); a("v_add_u32 v6, s36, v3")
    for k_ in range(1, nq // 4): a(f"v_add_u32 v{9+k_}, {4096*k_}, v6")
    a(f"s_mov_b32 s21, {cfg.spin_max}")
    a("L_G_POLL:")
    for q in range(nq):
        a(f"buffer_load_dwordx4 v[{20+4*q}:{23+4*q}], v{6 if q < 4 else 9 + (q >> 2)}, s[24:27], 0 offen offset:{1024*(q & 3)} {cfg.ld_g}")
    a("s_waitcnt vmcnt(0) lgkmcnt(0)")
    a("v_xor_b32 v7, v21, v5")
    for q in range(nq):
        for h in (1, 3):
            if q == 0 and h == 1: continue
            a(f"v_xor_b32 v8, v{20+4*q+h}, v5"); a("v_or_b32 v7, v7, v8")
    a("v_cmp_ne_u32 vcc, 0, v7")
    a("s_cbranch_vccz L_G_OK")
    a("s_sub_u32 s21, s21, 1"); a("s_cmp_eq_u32 s21, 0"); a("s_cbranch_scc0 L_G_POLL")
    a("L_G_OK:")
    a("s_lshr_b32 s36, s36, 1")
    a("v_lshlrev_b32 v9, 3, v2"); a("v_add_u32 v9, s36, v9"); a(f"v_add_u32 v9, {L_G}, v9")
    for q in range(nq):
        r = 20 + 4*q
        a(f"v_lshlrev_b32 v{r+1}, 16, v{r+2}"); a(f"v_and_b32 v{r+3}, 0xffff0000, v{r+2}")
        a(f"v_and_b32 v{r+2}, 0xffff0000, v{r}"); a(f"v_lshlrev_b32 v{r}, 16, v{r}")
    for q in range(nq):
        r = 20 + 4*q
        a(f"ds_write_b64 v9, v[{r}:{r+1}] offset:{512*q}")
        a(f"ds_write_b64 v9, v[{r+2}:{r+3}] offset:{8192 + 512*q}")
    a("L_HELP2:")
    dscal_fix()
    srd_off(a, 28, 64, 65, WS_OT, D*XROW)
    a("s_barrier")
    a("v_and_b32 v1, 255, v0"); a("v_lshlrev_b32 v1, 3, v1")
    a("s_mov_b32 s42, 0")
    a("L_EPI_LOOP:")
    epi_oct("h")
    a("s_add_u32 s42, s42, 1"); a("s_cmp_lt_u32 s42, 2"); a("s_cbranch_scc1 L_EPI_LOOP")
    stamp(a, cfg, 10)
    a("L_FINAL:")
    a("v_and_b32 v2, 63, v0")
    a("v_lshrrev_b32 v3, 3, v2"); a(f"v_mul_u32_u24 v3, {XROW}, v3"); a("v_and_b32 v4, 7, v2"); a("v_lshl_add_u32 v3, v4, 4, v3")
    a(f"s_mul_i32 s22, s19, {80*XROW}"); a("s_lshl_b32 s23, s20, 7"); a("s_add_u32 s22, s22, s23"); a("v_add_u32 v3, s22, v3")
    srd(a, 12, 54, 55, S*D*2)
    a("v_mul_u32_u24 v5, 205, v0"); a("v_lshrrev_b32 v5, 11, v5"); a("v_mul_u32_u24 v6, 10, v5"); a("v_sub_u32 v6, v0, v6")
    a("v_mul_u32_u24 v7, 1056, v6"); a("v_lshl_add_u32 v7, v5, 3, v7")
    a("s_lshl_b32 s22, s20, 6"); a("v_lshl_add_u32 v8, v5, 2, s22"); a("v_mul_u32_u24 v8, 1280, v8")
    a("s_mul_i32 s23, s19, 160"); a("v_lshl_add_u32 v9, v6, 4, s23"); a("v_add_u32 v8, v8, v9")
    if not cfg.sentinel:
        a("s_waitcnt vmcnt(0)")
        a("s_barrier")
        a("s_cmp_eq_u32 s3, 7"); a("s_cbranch_scc0 L_D2")
        mb_send(a, cfg, WS_MB2, 32, "grp")
        mb_poll(a, cfg, "B", WS_MB2, 32, 8)
        a("L_D2:")
        a("s_barrier")
        stamp(a, cfg, 14)
        for r in range(2):
            if r == 1: a("s_cmp_ge_u32 s3, 2"); a("s_cbranch_scc1 L_P3_LD")
            a(f"s_add_u32 s22, s3, {8*r}"); a(f"s_mul_i32 s23, s22, {8*XROW}"); a("s_mul_i32 s22, s22, 1056"); a("s_mov_b32 m0, s22"); a("s_nop 0")
            a(f"buffer_load_dwordx4 v3, s[28:31], s23 offen {cfg.ld_ot} lds")
        a("L_P3_LD:")
        a("s_waitcnt vmcnt(0)")
    else:
        a("s_barrier")
        a("v_lshrrev_b32 v10, 3, v2"); a("v_and_b32 v11, 7, v2")
        a(f"s_mul_i32 s22, s19, {80*XROW}"); a("s_lshl_b32 s23, s20, 7"); a("s_add_u32 s22, s22, s23")
        a("s_cmp_lt_u32 s3, 2"); a("s_cbranch_scc0 L_OT_B")
        a("s_lshl_b32 s23, s3, 3"); a("v_add_u32 v10, s23, v10"); a("v_mul_u32_u24 v10, 5, v10"); a("v_add_u32 v10, 2, v10")
        a("v_mov_b32 v12, v10")
        a("s_branch L_OT_C")
        a("L_OT_B:")
        a("s_sub_u32 s23, s3, 2"); a("s_lshl_b32 s23, s23, 3"); a("v_add_u32 v10, s23, v10")
        a("s_cmp_lt_u32 s3, 4"); a("s_cselect_b32 s23, 48, 0"); a("v_add_u32 v12, s23, v10")
        for r in (10, 12):
            a(f"v_lshrrev_b32 v13, 2, v{r}"); a(f"v_and_b32 v14, 3, v{r}"); a("v_lshrrev_b32 v15, 1, v14")
            a("v_add_u32 v14, v14, v15"); a(f"v_mad_u32_u24 v{r}, v13, 5, v14")
        a("L_OT_C:")
        a(f"s_movk_i32 s23, {XROW}")
        for r, d_ in ((10, 4), (12, 5)):
            a(f"v_mul_lo_u32 v{d_}, v{r}, s23"); a(f"v_lshl_add_u32 v{d_}, v11, 4, v{d_}"); a(f"v_add_u32 v{d_}, s22, v{d_}")
            a(f"v_lshrrev_b32 v13, 3, v{r}"); a(f"v_and_b32 v14, 7, v{r}"); a("v_mul_u32_u24 v13, 1056, v13")
            a("v_lshl_add_u32 v13, v14, 7, v13"); a(f"v_lshl_add_u32 v{r}, v11, 4, v13")
        a(f"s_mov_b32 s21, {cfg.spin_max}")
        ld = lambda r, ad: a(f"buffer_load_dwordx4 v[{r}:{r+3}], v{ad}, s[28:31], 0 offen {cfg.ld_ot}")
        a("s_cmp_lt_u32 s3, 2"); a("s_cbranch_scc0 L_OT_POLL2")
        ld(48, 4); a(f"s_sleep {cfg.psleep}"); ld(52, 4); a(f"s_sleep {cfg.psleep}"); ld(56, 4)
        a("L_OT_POLL1:")
        for r in (48, 52, 56):
            a("s_waitcnt vmcnt(2)")
            a(f"v_max_u32 v28, v{r}, v{r+1}"); a(f"v_max3_u32 v28, v28, v{r+2}, v{r+3}")
            a("v_cmp_eq_u32 vcc, -1, v28")
            a(f"s_cbranch_vccz L_OT_OK{r}")
            ld(r, 4)
        a("s_sub_u32 s21, s21, 1"); a("s_cmp_eq_u32 s21, 0"); a("s_cbranch_scc0 L_OT_POLL1")
        for r in (48, 52, 56):
            a(f"L_OT_OK{r}:")
            a(f"ds_write_b128 v10, v[{r}:{r+3}]")
            a("s_branch L_OT_W")
        a("L_OT_POLL2:")
        ld(16, 4); ld(20, 5)
        a("s_waitcnt vmcnt(0)")
        a("v_max_u32 v28, v16, v17"); a("v_max3_u32 v28, v28, v18, v19")
        a("v_max3_u32 v28, v28, v20, v21"); a("v_max3_u32 v28, v28, v22, v23")
        a("v_cmp_eq_u32 vcc, -1, v28")
        a("s_cbranch_vccz L_OT_OK2")
        a("s_sub_u32 s21, s21, 1"); a("s_cmp_eq_u32 s21, 0"); a("s_cbranch_scc0 L_OT_POLL2")
        a("L_OT_OK2:")
        a("ds_write_b128 v10, v[16:19]"); a("ds_write_b128 v12, v[20:23]")
        a("L_OT_W:")
        stamp(a, cfg, 14)
        a("s_waitcnt lgkmcnt(0)")
    a("s_barrier")
    a("v_cmp_gt_u32 vcc, 160, v0")
    a("s_and_saveexec_b64 s[22:23], vcc")
    a("s_cbranch_execz L_FINISH")
    for i in range(8): a(f"ds_read_b64 v[{16+2*i}:{17+2*i}], v7 offset:{128*i}")
    a("s_mov_b32 s24, 0x05040100"); a("s_mov_b32 s25, 0x07060302")
    a("s_waitcnt lgkmcnt(0)")
    for r in range(4):
        for c in range(4):
            a(f"v_perm_b32 v{32+4*r+c}, v{16+2*(2*c+1)+(r>>1)}, v{16+2*(2*c)+(r>>1)}, s{24+(r&1)}")
        a(f"buffer_store_dwordx4 v[{32+4*r}:{35+4*r}], v8, s[12:15], 0 offen offset:{1280*r} {cfg.st_out}")
    a("L_FINISH:")
    if cfg.stamps:
        stamp(a, cfg, 15)
        stamp_flush(a, cfg)
    a("L_END:")
    a("s_endpgm")
    body = a.finish()
    kd = f""".section .rodata,"a"
.p2align 6
.amdhsa_kernel {KNAME}
  .amdhsa_next_free_vgpr 200
  .amdhsa_next_free_sgpr 102
  .amdhsa_accum_offset 200
  .amdhsa_group_segment_fixed_size 0
  .amdhsa_kernarg_size 136
  .amdhsa_user_sgpr_count 2
  .amdhsa_user_sgpr_kernarg_segment_ptr 1
  .amdhsa_system_sgpr_workgroup_id_x 1
  .amdhsa_float_denorm_mode_32 3
.end_amdhsa_kernel
"""
    header = open(__file__.replace("gen5.py", "header.txt")).read()
    return header + f"; @launch grid=(256,1,1) block=(512,1,1) lds={LDS_TOTAL}\n" + '.amdgcn_target "amdgcn-amd-amdhsa--gfx950"\n' + body + kd

if __name__ == "__main__":
    cfg = Cfg()
    for kv in sys.argv[2:]:
        k, v = kv.split("=", 1)
        setattr(cfg, k, (v == "True") if v in ("True", "False") else (int(v) if v.lstrip("-").isdigit() else (float(v) if k == "frac" else v)))
    open(sys.argv[1], "w").write(gen(cfg))
```

```python
import sys, struct
from asmlib import Asm

S, D = 2048, 640
XROW = 4224
WS_X, WS_G, WS_OT, WS_TS = 0, 0x7B0000, 0x800000, 0xC00000
WS_MB1, WS_MBG, WS_MB2, WS_MB3 = 0xD00000, 0xD10000, 0xD20000, 0xD30000
NAME = "gated_mix__ssm_conv_h3__ssm_conv_s4d__prompt"
KNAME = NAME + "_kernel"
XCP = 4160; XARR = 4*XCP; L_K = 6*XARR; KARR = 4608; L_G = L_K + 6*KARR
LDS_TOTAL = 163840
L_ST = L_G
ST_Q, ST_V, ST_K = 0, 10368, 20736
SLOT = 53*256
L_CNT = LDS_TOTAL - 16
PSET = ([0, 3, 4, 7], [1, 2, 5, 6])
SENT = 0xFFFFFFFF

class Cfg:
    nt_in = "nt"
    st_g = "sc1"; ld_g = "sc1"; st_n = "sc1"; ld_n = "sc1"
    st_x = "sc1"; ld_x = "sc1"; st_ot = "sc1"; ld_ot = "sc1"; st_out = "sc1"; st_flag = "sc1"; ld_flag = "sc1"
    stamps = False; clk = "s_memrealtime"
    spin_max = 100000
    sleep = 0
    sentinel = True
    psleep = 8
    gate_after = True
    x1 = True
    map = "contig"
    prio = True
    sent_early = False
    sent_mode = "w6b"
    frac = 0.75

def hexf(x): return "0x%08x" % struct.unpack("<I", struct.pack("<f", float(x)))[0]

NST = 16
def stamp(a, cfg, i):
    if cfg.stamps: a(f"{cfg.clk} s[{70+2*i}:{71+2*i}]")
def stamp_flush(a, cfg):
    if not cfg.stamps: return
    a("s_waitcnt lgkmcnt(0)")
    a(f"s_add_u32 s4, s64, {WS_TS}"); a("s_addc_u32 s5, s65, 0")
    a("s_lshl_b32 s6, s2, 3"); a("s_add_u32 s6, s6, s3"); a("s_lshl_b32 s6, s6, 7")
    a("s_mov_b64 exec, 1")
    a("v_mov_b32 v4, s6")
    for i in range(NST):
        a(f"v_mov_b32 v6, s{70+2*i}"); a(f"v_mov_b32 v7, s{71+2*i}")
        a(f"global_store_dwordx2 v4, v[6:7], s[4:5] offset:{8*i}")
        a("s_nop 1")

def srd(a, s, lo, hi, size):
    a(f"s_mov_b32 s{s}, s{lo}"); a(f"s_and_b32 s{s+1}, s{hi}, 0xffff")
    a(f"s_mov_b32 s{s+2}, {size}"); a(f"s_mov_b32 s{s+3}, 0x00020000")
def srd_off(a, s, lo, hi, off, size):
    a(f"s_add_u32 s{s}, s{lo}, {off}"); a(f"s_addc_u32 s{s+1}, s{hi}, 0"); a(f"s_and_b32 s{s+1}, s{s+1}, 0xffff")
    a(f"s_mov_b32 s{s+2}, {size}"); a(f"s_mov_b32 s{s+3}, 0x00020000")
def cmul(a, d, z, w, t=2):
    a(f"v_pk_mul_f32 v[{t}:{t+1}], v[{z}:{z+1}], v[{w}:{w+1}] op_sel:[0,0] op_sel_hi:[1,0]")
    a(f"v_pk_fma_f32 v[{d}:{d+1}], v[{z}:{z+1}], v[{w}:{w+1}], v[{t}:{t+1}] op_sel:[1,1,0] op_sel_hi:[0,1,1] neg_lo:[1,0,0]")

def mb_send(a, cfg, region, nlanes, mode):
    a("v_and_b32 v4, 63, v0")
    if mode == "grp":
        a("v_lshl_add_u32 v4, v4, 3, s19"); a("v_lshlrev_b32 v4, 8, v4"); a("s_lshl_b32 s21, s20, 3")
    else:
        a("s_lshl_b32 s21, s20, 3"); a("v_add_u32 v4, s21, v4"); a("v_lshlrev_b32 v4, 7, v4"); a("s_lshl_b32 s21, s19, 3")
    a(f"s_add_u32 s21, s21, {region}"); a("v_add_u32 v4, s21, v4")
    a("v_mov_b32 v6, s66"); a("v_mov_b32 v7, s67")
    a(f"s_mov_b64 exec, {hex((1 << nlanes) - 1)}")
    a(f"buffer_store_dwordx2 v[6:7], v4, s[60:63], 0 offen {cfg.st_flag}")
    a("s_mov_b64 exec, -1")
def mb_poll(a, cfg, tag, region, nlanes, shift):
    a("v_and_b32 v4, 63, v0"); a("v_lshlrev_b32 v4, 3, v4")
    a("s_lshl_b32 s21, s20, 3"); a("s_add_u32 s21, s21, s19")
    a(f"s_lshl_b32 s21, s21, {shift}"); a(f"s_add_u32 s21, s21, {region}"); a("v_add_u32 v4, s21, v4")
    a(f"s_mov_b64 exec, {hex((1 << nlanes) - 1)}")
    a(f"s_mov_b32 s21, {cfg.spin_max}")
    ld = lambda r: a(f"buffer_load_dwordx2 v[{r}:{r+1}], v4, s[60:63], 0 offen {cfg.ld_flag}")
    ld(100); a(f"s_sleep {cfg.psleep}"); ld(102); a(f"s_sleep {cfg.psleep}"); ld(104)
    a(f"POLL_{tag}:")
    for r in (100, 102, 104):
        a("s_waitcnt vmcnt(2)")
        a(f"v_cmp_ne_u32 vcc, s66, v{r}"); a(f"v_cmp_ne_u32 s[22:23], s67, v{r+1}"); a("s_or_b64 vcc, vcc, s[22:23]")
        a(f"s_cbranch_vccz POLL_{tag}_OK")
        ld(r)
    a("s_sub_u32 s21, s21, 1"); a("s_cmp_eq_u32 s21, 0"); a(f"s_cbranch_scc0 POLL_{tag}")
    a(f"POLL_{tag}_OK:")
    a("s_mov_b64 exec, -1")

def op_loads(pairs, b, A0, B0, VA, VB, offA, offB):
    L = []; seen = []
    for (aa, cc) in pairs:
        if ("A", aa) not in seen: seen.append(("A", aa))
        if ("B", cc) not in seen: seen.append(("B", cc))
    for kind, i in seen:
        if kind == "A":
            L.append(f"ds_read_b64 v[{A0+4*i}:{A0+4*i+1}], v{VA} offset:{offA(i, b, 0)}")
            L.append(f"ds_read_b64 v[{A0+4*i+2}:{A0+4*i+3}], v{VA} offset:{offA(i, b, 1)}")
        else:
            L.append(f"ds_read_b128 v[{B0+4*i}:{B0+4*i+3}], v{VB} offset:{offB(i, b)}")
    return L

def mfma_iter(a, pairs, acc_of, A0, B0, fill, first, frac):
    a("s_waitcnt lgkmcnt(0)")
    k = 0; seen = set()
    for idx, (aa, cc) in enumerate(pairs):
        d = acc_of(aa, cc)
        c = "0" if (first and d not in seen) else f"v[{d}:{d+3}]"
        seen.add(d)
        a(f"v_mfma_f32_16x16x32_bf16 v[{d}:{d+3}], v[{A0+4*aa}:{A0+4*aa+3}], v[{B0+4*cc}:{B0+4*cc+3}], {c}")
        want = -(-len(fill) * (idx + 1) // max(1, int(len(pairs) * frac)))
        while k < min(len(fill), want): a(fill[k]); k += 1
    while k < len(fill): a(fill[k]); k += 1

def gen(cfg):
    a = Asm()
    a.lines += [".text", f".globl {KNAME}", ".p2align 8", f".type {KNAME},@function", f"{KNAME}:"]
    nt = cfg.nt_in
    a("s_cmp_ge_u32 s2, 256")
    a("s_cbranch_scc1 L_END")
    a("s_load_dwordx8 s[36:43], s[0:1], 56")
    a("s_load_dwordx2 s[44:45], s[0:1], 88")
    a("s_load_dwordx4 s[4:7], s[0:1], 0")
    a("s_load_dwordx4 s[8:11], s[0:1], 16")
    a("s_load_dwordx2 s[12:13], s[0:1], 120")
    a("s_load_dwordx2 s[64:65], s[0:1], 128")
    a("s_load_dwordx2 s[46:47], s[0:1], 104")
    a("s_load_dwordx4 s[48:51], s[0:1], 32")
    a("s_load_dwordx2 s[52:53], s[0:1], 96")
    a("s_load_dwordx2 s[54:55], s[0:1], 112")
    a("v_lshrrev_b32 v1, 6, v0")
    a("v_and_b32 v2, 63, v0")
    a("v_readfirstlane_b32 s3, v1")
    a("v_mov_b32 v3, 0"); a(f"v_mov_b32 v4, {L_CNT}")
    a("ds_write_b32 v4, v3")
    a("ds_write_b32 v4, v3 offset:4")
    a(f"v_mov_b32 v5, {L_CNT - 16}")
    a("ds_write_b32 v5, v3"); a("ds_write_b32 v5, v3 offset:4"); a("ds_write_b32 v5, v3 offset:8"); a("ds_write_b32 v5, v3 offset:12")
    for i in range(NST): stamp(a, cfg, i)
    if cfg.map == "contig":
        a("s_lshr_b32 s19, s2, 5"); a("s_and_b32 s20, s2, 31")
    else:
        a("s_and_b32 s19, s2, 7"); a("s_lshr_b32 s20, s2, 3")
    a("s_mul_i32 s17, s19, 80"); a("s_lshr_b32 s21, s20, 1"); a("s_mul_i32 s21, s21, 5"); a("s_add_u32 s17, s17, s21")
    a("s_and_b32 s18, s20, 1"); a("s_mul_i32 s21, s18, 3"); a("s_add_u32 s16, s17, s21"); a("s_add_u32 s17, s17, 2")
    a("s_waitcnt lgkmcnt(0)")
    a("s_barrier")
    a("s_cmp_ge_u32 s3, 5")
    a("s_cbranch_scc1 L_K")
    if cfg.prio: a("s_setprio 3")
    a("s_cmp_eq_u32 s3, 4"); a("s_cbranch_scc0 L_T1")
    a("s_cmp_eq_u32 s2, 0"); a("s_cbranch_scc0 L_T1")
    srd(a, 40, 12, 13, 256)
    a("s_memrealtime s[22:23]"); a("s_waitcnt lgkmcnt(0)")
    a("s_or_b32 s22, s22, 1"); a("s_or_b32 s23, s23, 0x80000000")
    a("v_mov_b32 v8, s22"); a("v_mov_b32 v9, s23"); a("v_mov_b32 v10, 0")
    a("s_mov_b64 exec, 1")
    a(f"buffer_store_dwordx2 v[8:9], v10, s[40:43], 0 offen {cfg.st_n}")
    a("s_mov_b64 exec, -1")
    a("L_T1:")
    srd(a, 24, 4, 5, S*D*2); srd(a, 28, 6, 7, S*D*2); srd(a, 32, 8, 9, S*D*2)
    a("v_mul_u32_u24 v3, 205, v2"); a("v_lshrrev_b32 v3, 11, v3")
    a("v_mul_u32_u24 v4, 10, v3"); a("v_sub_u32 v4, v2, v4")
    a("v_mul_u32_u24 v3, 1280, v3"); a("v_lshl_add_u32 v3, v4, 4, v3")
    a("s_mul_i32 s21, s20, 81920"); a("s_mul_i32 s22, s19, 160"); a("s_add_u32 s21, s21, s22")
    a("v_add_u32 v3, s21, v3"); a("v_subrev_u32 v4, 3840, v3"); a("v_add_u32 v5, 1280, v3")
    a("s_mov_b32 exec_hi, 0xff")
    def dma_i(ireg):
        a(f"s_mul_i32 s22, {ireg}, 640"); a(f"s_lshr_b32 s23, {ireg}, 1"); a("s_lshl_b32 s23, s23, 4")
        a("s_add_u32 s22, s22, s23"); a(f"s_mul_i32 s14, {ireg}, 5120"); a("s_sub_u32 s23, s14, 5120")
    a("s_cmp_eq_u32 s3, 0"); a("s_cbranch_scc0 L_DMA")
    a(f"s_mov_b32 m0, {L_ST + ST_K}"); a("s_nop 0")
    a(f"buffer_load_dwordx4 v4, s[28:31], 0 offen {nt} lds")
    a("L_DMA:")
    a("s_mov_b32 s15, s3")
    a("L_DMA_LOOP:")
    dma_i("s15")
    a("s_cmp_eq_u32 s15, 0"); a("s_cbranch_scc1 L_DMA_VQ")
    a(f"s_add_u32 m0, s22, {L_ST + ST_K}"); a("s_nop 0")
    a(f"buffer_load_dwordx4 v5, s[28:31], s23 offen {nt} lds")
    a("s_cmp_eq_u32 s15, 16"); a("s_cbranch_scc1 L_DMA_DONE")
    a("L_DMA_VQ:")
    a(f"s_add_u32 m0, s22, {L_ST + ST_V}"); a("s_nop 0")
    a(f"buffer_load_dwordx4 v3, s[32:35], s14 offen {nt} lds")
    a(f"s_add_u32 m0, s22, {L_ST + ST_Q}"); a("s_nop 0")
    a(f"buffer_load_dwordx4 v3, s[24:27], s14 offen {nt} lds")
    a("s_add_u32 s15, s15, 5"); a("s_cmp_le_u32 s15, 16"); a("s_cbranch_scc1 L_DMA_LOOP")
    a("L_DMA_DONE:")
    a("s_mov_b64 exec, -1")
    srd(a, 36, 10, 11, D*8)
    srd(a, 40, 46, 47, D*2)
    a("v_lshrrev_b32 v11, 3, v0"); a("v_and_b32 v13, 7, v0")
    a("s_mul_i32 s23, s19, 640"); a("v_lshl_add_u32 v12, v11, 4, s23")
    a("buffer_load_dwordx4 v[16:19], v12, s[36:39], 0 offen")
    def dscalar(dst, base, ch):
        a(f"s_lshl_b32 s22, {ch}, 1"); a("s_andn2_b32 s22, s22, 3")
        a(f"s_load_dword s{dst}, s[{base}:{base+1}], s22")
    a("s_and_b32 s23, s3, 3"); a("s_lshl_b32 s23, s23, 1"); a("s_lshl_b32 s14, s20, 6"); a("s_add_u32 s23, s23, s14")
    a("s_lshl_b32 s14, s19, 3"); a("s_add_u32 s23, s23, s14")
    a("v_lshrrev_b32 v12, 5, v2"); a("v_add_u32 v12, s23, v12")
    a("v_and_b32 v14, 31, v2"); a("v_lshlrev_b32 v14, 4, v14")
    a("v_mul_u32_u24 v15, 1280, v12"); a("v_add_u32 v15, v15, v14")
    a("v_add_u32 v20, 1024, v15"); a("v_cmp_gt_u32 vcc, 256, v14"); a("v_mov_b32 v21, -1"); a("v_cndmask_b32 v20, v21, v20, vcc")
    a("v_mul_u32_u24 v21, 1296, v13"); a("v_lshl_add_u32 v21, v11, 2, v21"); a(f"v_add_u32 v21, {L_ST}, v21")
    a("s_mul_i32 s23, s19, 80"); a("v_lshl_add_u32 v22, v11, 1, s23")
    a(f"s_movk_i32 s14, {2*XROW}"); a("v_mul_lo_u32 v22, v22, s14")
    a("s_lshl_b32 s15, s20, 7"); a("s_sub_u32 s15, 4080, s15")
    a("v_lshlrev_b32 v23, 4, v13"); a("v_sub_u32 v23, s15, v23"); a("v_add_u32 v22, v22, v23")
    srd_off(a, 44, 64, 65, WS_X, 1280*XROW)
    def gate_loads():
        a("buffer_load_dwordx4 v[24:27], v15, s[24:27], 0 offen")
        a("buffer_load_dwordx4 v[28:31], v15, s[24:27], 0 offen offset:512")
        a("buffer_load_dwordx4 v[32:35], v20, s[24:27], 0 offen")
        a("buffer_load_dwordx4 v[36:39], v14, s[40:43], 0 offen")
        a("buffer_load_dwordx4 v[40:43], v14, s[40:43], 0 offen offset:512")
        a("buffer_load_dwordx4 v[44:47], v14, s[40:43], 0 offen offset:1024")
    nsent = 0
    if cfg.sentinel and cfg.sent_mode == "t":
        nsent = 2
        srd_off(a, 56, 64, 65, WS_OT, D*XROW)
        a("v_lshrrev_b32 v3, 3, v2"); a(f"v_mul_u32_u24 v3, {XROW}, v3"); a("v_and_b32 v4, 7, v2"); a("v_lshl_add_u32 v3, v4, 4, v3")
        a(f"s_mul_i32 s22, s19, {80*XROW}"); a("s_lshl_b32 s23, s20, 7"); a("s_add_u32 s22, s22, s23"); a("v_add_u32 v3, s22, v3")
        for i in range(4): a(f"v_mov_b32 v{8+i}, -1")
        a(f"s_mul_i32 s22, s3, {16*XROW}"); a(f"s_add_u32 s23, s22, {8*XROW}")
        if cfg.sent_early:
            a(f"buffer_store_dwordx4 v[8:11], v3, s[56:59], s22 offen {cfg.st_ot}")
            a(f"buffer_store_dwordx4 v[8:11], v3, s[56:59], s23 offen {cfg.st_ot}")
    a("s_cmp_eq_u32 s3, 4"); a("s_cbranch_scc1 L_W4")
    stamp(a, cfg, 1)
    a("s_waitcnt vmcnt(0)")
    if not cfg.gate_after: gate_loads()
    a("s_branch L_TS0")
    a("L_W4:")
    srd(a, 40, 12, 13, 256)
    a("v_mov_b32 v26, 0")
    a(f"buffer_load_dwordx2 v[24:25], v26, s[40:43], 0 offen {cfg.ld_n}")
    stamp(a, cfg, 1)
    a("s_waitcnt vmcnt(0)")
    a(f"s_mov_b32 s21, {cfg.spin_max}")
    a("L_NONCE_CHK:")
    a("v_readfirstlane_b32 s66, v24"); a("v_readfirstlane_b32 s67, v25")
    a("s_cmp_eq_u32 s66, 0"); a("s_cselect_b32 s14, 0, s67"); a("s_cmp_lg_u32 s14, 0")
    a("s_cbranch_scc1 L_NONCE_OK")
    a("s_sub_u32 s21, s21, 1"); a("s_cmp_eq_u32 s21, 0"); a("s_cbranch_scc1 L_NONCE_OK")
    a(f"buffer_load_dwordx2 v[24:25], v26, s[40:43], 0 offen {cfg.ld_n}")
    a("s_waitcnt vmcnt(0)")
    a("s_branch L_NONCE_CHK")
    a("L_NONCE_OK:")
    a(f"v_mov_b32 v4, {L_CNT}")
    a("s_mov_b64 exec, 1")
    a("ds_write_b64 v4, v[24:25] offset:8")
    a("s_mov_b64 exec, -1")
    a("L_TS0:")
    a(f"v_mov_b32 v4, {L_CNT}"); a("v_mov_b32 v5, 1")
    a("s_mov_b64 exec, 1")
    a("ds_add_u32 v4, v5")
    a("L_TSYNC:")
    a("ds_read_b32 v5, v4"); a("s_waitcnt lgkmcnt(0)")
    a("v_cmp_gt_u32 vcc, 5, v5"); a("s_cbranch_vccnz L_TSYNC")
    a("s_mov_b64 exec, -1")
    stamp(a, cfg, 2)
    if cfg.sentinel and not cfg.sent_early and cfg.sent_mode == "t":
        a(f"buffer_store_dwordx4 v[8:11], v3, s[56:59], s22 offen {cfg.st_ot}")
        a(f"buffer_store_dwordx4 v[8:11], v3, s[56:59], s23 offen {cfg.st_ot}")
    KR, VR, QR = 48, 60, 68
    for r in range(11): a(f"ds_read_b32 v{KR+r}, v21 offset:{ST_K + r*160 + (r >> 3)*16}")
    for r in range(8): a(f"ds_read_b32 v{VR+r}, v21 offset:{ST_V + r*160}")
    for r in range(8): a(f"ds_read_b32 v{QR+r}, v21 offset:{ST_Q + r*160}")
    W = 80
    a(f"v_lshlrev_b32 v{W+0}, 16, v16");  a(f"v_lshlrev_b32 v{W+1}, 16, v18")
    a(f"v_and_b32 v{W+2}, 0xffff0000, v16"); a(f"v_and_b32 v{W+3}, 0xffff0000, v18")
    a(f"v_lshlrev_b32 v{W+4}, 16, v17");  a(f"v_lshlrev_b32 v{W+5}, 16, v19")
    a(f"v_and_b32 v{W+6}, 0xffff0000, v17"); a(f"v_and_b32 v{W+7}, 0xffff0000, v19")
    K2, V2, KV = 88, 110, 128
    a("s_mov_b32 s14, 0x05040100"); a("s_mov_b32 s15, 0x07060302")
    a("s_waitcnt lgkmcnt(0)")
    O2 = 144
    for e in range(2):
        for i in range(4): a(f"v_perm_b32 v{O2+8*e+4+i}, v{QR+6-2*i}, v{QR+7-2*i}, s{14+e}")
    st = cfg.st_x
    a(f"s_movk_i32 s22, {XROW}"); a(f"s_movk_i32 s23, {3*XROW}")
    a(f"buffer_store_dwordx4 v[{O2+4}:{O2+7}], v22, s[44:47], s22 offen {st}")
    a(f"buffer_store_dwordx4 v[{O2+12}:{O2+15}], v22, s[44:47], s23 offen {st}")
    for r in range(11):
        a(f"v_lshlrev_b32 v{K2+2*r}, 16, v{KR+r}"); a(f"v_and_b32 v{K2+2*r+1}, 0xffff0000, v{KR+r}")
    for r in range(8):
        a(f"v_lshlrev_b32 v{V2+2*r}, 16, v{VR+r}"); a(f"v_and_b32 v{V2+2*r+1}, 0xffff0000, v{VR+r}")
    def pk(op, d, *srcs): a(f"{op} v[{d}:{d+1}], " + ", ".join(f"v[{s_}:{s_+1}]" for s_ in srcs))
    for r in range(8): pk("v_pk_mul_f32", KV+2*r, K2+2*(r+0), W+6)
    for r in range(8): pk("v_pk_fma_f32", KV+2*r, K2+2*(r+1), W+4, KV+2*r)
    for r in range(8): pk("v_pk_fma_f32", KV+2*r, K2+2*(r+2), W+2, KV+2*r)
    for r in range(8): pk("v_pk_fma_f32", KV+2*r, K2+2*(r+3), W+0, KV+2*r)
    for r in range(8): pk("v_pk_mul_f32", KV+2*r, KV+2*r, V2+2*r)
    for e in range(2):
        for i in range(4): a(f"v_cvt_pk_bf16_f32 v{O2+8*e+i}, v{KV+2*(7-2*i)+e}, v{KV+2*(6-2*i)+e}")
    a(f"s_movk_i32 s22, {2*XROW}")
    a(f"buffer_store_dwordx4 v[{O2}:{O2+3}], v22, s[44:47], 0 offen {st}")
    a(f"buffer_store_dwordx4 v[{O2+8}:{O2+11}], v22, s[44:47], s22 offen {st}")
    stamp(a, cfg, 3)
    ng = 6 if cfg.gate_after else 0
    if cfg.gate_after:
        a("s_cmp_eq_u32 s3, 4"); a("s_cbranch_scc1 L_NOGATE")
        gate_loads()
        a("L_NOGATE:")
    a("s_and_b32 s14, s3, 1"); a("s_cmp_eq_u32 s14, 0"); a("s_cbranch_scc0 L_NOSSM")
    a("s_lshr_b32 s22, s3, 1"); a("s_add_u32 s14, s16, s22"); a("s_cmp_eq_u32 s3, 4"); a("s_cselect_b32 s14, s17, s14")
    a("s_lshl_b32 s23, s14, 12")
    srd_off(a, 56, 48, 49, "s23", 4096)
    a("v_lshlrev_b32 v3, 4, v2")
    a(f"s_mul_i32 s14, s3, {KARR}")
    for q in range(4):
        a(f"s_add_u32 m0, s14, {L_K + 480 + 1024*q}"); a(f"s_movk_i32 s23, {1024*q}")
        a(f"buffer_load_dwordx4 v3, s[56:59], s23 offen {nt} lds")
    a("s_cmp_eq_u32 s3, 4"); a("s_cbranch_scc1 L_XA4")
    a(f"s_waitcnt vmcnt({4 + ng})")
    a("s_branch L_XACK0")
    a("L_XA4:")
    a("s_waitcnt vmcnt(4)")
    a("s_branch L_XACK0")
    a("L_NOSSM:")
    a(f"s_waitcnt vmcnt({ng})")
    a("L_XACK0:")
    a("s_cmp_eq_u32 s3, 4"); a("s_cbranch_scc1 L_W4D")
    srd_off(a, 36, 64, 65, WS_G, 16384)
    stamp(a, cfg, 13)
    a(f"v_mov_b32 v4, {L_CNT}"); a("v_mov_b32 v5, 1")
    a("s_mov_b64 exec, 1")
    a("ds_add_u32 v4, v5 offset:4")
    a("s_mov_b64 exec, -1")
    if cfg.gate_after:
        a("s_and_b32 s14, s3, 1"); a("s_cmp_eq_u32 s14, 0"); a("s_cbranch_scc0 L_GW0")
        a("s_waitcnt vmcnt(4)"); a("s_branch L_GW1")
        a("L_GW0:"); a("s_waitcnt vmcnt(0)"); a("L_GW1:")
    a("v_mov_b32 v4, 0"); a("s_mov_b32 s14, 0x3f803f80")
    for c in range(3):
        for i in range(4):
            xq = 24 + 4*c + i; wq = 36 + 4*c + i; t = 48 + 4*((4*c+i) % 2)
            a(f"v_lshlrev_b32 v{t}, 16, v{xq}"); a(f"v_and_b32 v{t+1}, 0xffff0000, v{xq}")
            a(f"v_lshlrev_b32 v{t+2}, 16, v{wq}"); a(f"v_and_b32 v{t+3}, 0xffff0000, v{wq}")
            a(f"v_pk_mul_f32 v[{t}:{t+1}], v[{t}:{t+1}], v[{t+2}:{t+3}]")
            a(f"v_cvt_pk_bf16_f32 v{t}, v{t}, v{t+1}")
            a(f"v_dot2_f32_bf16 v4, v{t}, s14, v4")
    for sh in (1, 2, 4, 8):
        a(f"v_add_f32_dpp v4, v4, v4 row_shr:{sh} row_mask:0xf bank_mask:0xf bound_ctrl:0")
    a("v_add_f32_dpp v4, v4, v4 row_bcast:15 row_mask:0xa bank_mask:0xf")
    a("v_cvt_pk_bf16_f32 v4, v4, v4"); a("v_lshlrev_b32 v4, 16, v4")
    a("v_mul_f32 v5, 0xbfb8aa3b, v4"); a("v_exp_f32 v5, v5"); a("v_add_f32 v5, 1.0, v5"); a("v_rcp_f32 v5, v5")
    a("v_cvt_pk_bf16_f32 v5, v5, v5"); a("v_lshlrev_b32 v5, 16, v5")
    a("v_sub_f32 v6, 1.0, v5"); a("v_cvt_pk_bf16_f32 v6, v5, v6")
    a(f"v_mov_b32 v9, {L_CNT}"); a("ds_read_b32 v7, v9 offset:8")
    a("v_lshlrev_b32 v9, 3, v12"); a("v_and_b32 v8, 31, v2"); a("v_cmp_eq_u32 vcc, 31, v8")
    a("s_waitcnt lgkmcnt(0)")
    a("s_and_saveexec_b64 s[22:23], vcc")
    a(f"buffer_store_dwordx2 v[6:7], v9, s[36:39], 0 offen {cfg.st_g}")
    a("s_mov_b64 exec, -1")
    a("s_branch L_PRE_B2")
    a("L_W4D:")
    stamp(a, cfg, 13)
    a(f"v_mov_b32 v4, {L_CNT}")
    a("s_mov_b64 exec, 1")
    a("L_TSYNC2:")
    a("ds_read_b32 v5, v4 offset:4"); a("s_waitcnt lgkmcnt(0)")
    a("v_cmp_gt_u32 vcc, 4, v5"); a("s_cbranch_vccnz L_TSYNC2")
    a("s_mov_b64 exec, -1")
    stamp(a, cfg, 5)
    srd(a, 60, 64, 65, 0x1000000)
    mb_send(a, cfg, WS_MB1, 32, "grp")
    mb_poll(a, cfg, "A", WS_MB1, 32, 8)
    a("s_branch L_PRE_B2")
    a("L_K:")
    a("s_sub_u32 s22, s3, 5")
    a("s_add_u32 s14, s16, s22"); a("s_cmp_eq_u32 s22, 2"); a("s_cselect_b32 s14, s17, s14")
    P = 152
    a("s_mul_i32 s23, s14, 384"); a("v_lshl_add_u32 v6, v2, 1, s23")
    a("s_lshl_b32 s23, s14, 1"); a("v_mov_b32 v7, s23")
    srd(a, 56, 44, 45, D*2)
    a(f"buffer_load_ushort v{P+12}, v7, s[56:59], 0 offen")
    for i in range(4):
        srd(a, 24 + 4*i, 36 + 2*i, 37 + 2*i, D*192*2)
        for st_ in range(3):
            a(f"buffer_load_ushort v{P+4*st_+i}, v6, s[{24+4*i}:{27+4*i}], 0 offen offset:{128*st_}")
    a(f"s_mul_i32 s15, s22, {2*KARR}"); a(f"s_add_u32 s15, s15, {L_K}")
    a(f"s_mul_i32 s21, s22, {SLOT}")
    AV = 16
    a("v_lshlrev_b32 v7, 2, v2"); a("v_add_u32 v7, s21, v7")
    for c in range(16): a(f"v_xor_b32 v{AV+c}, {c << 4}, v7")
    RX, RY = 32, 40
    a("v_and_b32 v8, 31, v2"); a("v_lshrrev_b32 v9, 5, v2"); a("v_min_u32 v10, 20, v8")
    for (R, rowreg, rowoff) in ((RX, 10, 32), (RY, 8, 0)):
        a(f"v_and_b32 v11, 15, v{rowreg}"); a("v_xor_b32 v11, v11, v9"); a("v_lshlrev_b32 v11, 4, v11")
        a(f"v_lshl_add_u32 v11, v{rowreg}, 8, v11")
        if rowoff: a(f"v_add_u32 v11, {rowoff*256}, v11")
        a("v_add_u32 v11, s21, v11")
        for i in range(8): a(f"v_xor_b32 v{R+i}, {32*i}, v11")
    ACC = 48
    for i in range(4): a(f"v_mov_b32 v{8+i}, 0")
    a("v_lshlrev_b32 v3, 4, v2"); a("v_add_u32 v6, s15, v3")
    a("s_mov_b64 exec, 0x3fffffff")
    a("ds_write_b128 v6, v[8:11]"); a(f"ds_write_b128 v6, v[8:11] offset:{KARR}")
    a("s_mov_b64 exec, -1")
    for i in range(16): a(f"v_mov_b32 v{ACC+i}, 0")
    stamp(a, cfg, 1)
    a("s_waitcnt vmcnt(0)")
    stamp(a, cfg, 2)
    a(f"v_lshlrev_b32 v6, 16, v{P+12}"); a("v_mul_f32 v6, 0x3fb8aa3b, v6"); a("v_exp_f32 v6, v6")
    a("v_cvt_pk_bf16_f32 v6, v6, v6"); a("v_lshlrev_b32 v6, 16, v6"); a("v_add_f32 v7, v6, v6")
    E1, E2, E4, E8, E256, E128, Z, Z2, C = 64, 66, 68, 70, 72, 74, 76, 78, 80
    Q1, Q2, Q3 = 82, 84, 86
    OA, OB = 88, 120
    class Em:
        def __init__(s): s.t = a
    def capture(fn):
        L = Asm(); fn(L); return L.lines
    def cexp(b, dst, h):
        if h == 1:
            b("v_exp_f32 v8, v14"); b("v_fract_f32 v9, v15")
        else:
            b(f"v_mul_f32 v8, {hexf(h)}, v14"); b(f"v_mul_f32 v9, {hexf(h)}, v15")
            b("v_exp_f32 v8, v8"); b("v_fract_f32 v9, v9")
        b(f"v_cos_f32 v{dst}, v9"); b(f"v_sin_f32 v{dst+1}, v9")
        b(f"v_mul_f32 v{dst}, v8, v{dst}"); b(f"v_mul_f32 v{dst+1}, v8, v{dst+1}")
    def setup(b):
        b(f"v_lshlrev_b32 v8, 16, v{P}"); b("v_mul_f32 v8, 0x3fb8aa3b, v8"); b("v_exp_f32 v8, v8")
        b(f"v_lshlrev_b32 v15, 16, v{P+1}"); b("v_mul_f32 v15, v15, v6"); b("v_mul_f32 v15, 0.15915494, v15")
        b("v_cvt_pk_bf16_f32 v8, v8, v8"); b("v_lshlrev_b32 v8, 16, v8")
        b("v_mul_f32 v14, v8, v6"); b("v_mul_f32 v14, 0xbfb8aa3b, v14")
        b(f"v_lshlrev_b32 v{C}, 16, v{P+2}"); b(f"v_lshlrev_b32 v{C+1}, 16, v{P+3}")
        b(f"v_mul_f32 v{C}, v{C}, v7"); b(f"v_mul_f32 v{C+1}, v{C+1}, v7")
        cexp(b, E1, 1); cexp(b, E8, 8); cexp(b, E256, 256); cexp(b, E128, 128)
        cmul(b, E2, E1, E1); cmul(b, E4, E2, E2)
        cmul(b, Q1, C, E256); cmul(b, Q2, Q1, E256); cmul(b, Q3, Q2, E256)
        for i in range(8): b(f"v_mov_b32 v{P+i}, v{P+4+i}")
    pend = []; rot = [0]
    def flush(keep=0):
        while len(pend) > keep: a(pend.pop(0))
    def store_pair(rowA, za, rowB, zb, neg):
        n = "-" if neg else ""
        t = (8, 10, 12)[rot[0] % 3]; rot[0] += 1
        a(f"v_cvt_pk_bf16_f32 v{t}, v{za}, {n}v{za+1}")
        if rowB is None:
            w = f"ds_write_b32 v{AV + (rowA & 15)}, v{t} offset:{rowA*256}"
        else:
            assert (rowA & 15) == (rowB & 15)
            a(f"v_cvt_pk_bf16_f32 v{t+1}, v{zb}, {n}v{zb+1}")
            w = f"ds_write2st64_b32 v{AV + (rowA & 15)}, v{t}, v{t+1} offset0:{rowA} offset1:{rowB}"
        flush(1); pend.append(w)
    def chains():
        a(f"v_mov_b32 v{Z}, 1.0"); a(f"v_mov_b32 v{Z+1}, 0")
        store_pair(0, Z, 16, E128, False)
        cmul(a, Z2, E128, E8)
        store_pair(1, E8, 17, Z2, False)
        cmul(a, Z, E8, E8); cmul(a, Z2, Z2, E8, 4)
        store_pair(2, Z, 18, Z2, False)
        for lam in range(3, 16):
            cmul(a, Z, Z, E8); cmul(a, Z2, Z2, E8, 4)
            store_pair(lam, Z, lam + 16, Z2, False)
        cmul(a, Z, Q1, E2)
        store_pair(32+0, C, 32+16, Z, True)
        cmul(a, Z2, C, E1); cmul(a, Z, Z, E2, 4)
        store_pair(32+1, Z2, 32+17, Z, True)
        cmul(a, Z2, Z2, E1); cmul(a, Z, Z, E2, 4)
        store_pair(32+2, Z2, 32+18, Z, True)
        cmul(a, Z2, Z2, E1); cmul(a, Z, Q2, E4, 4)
        store_pair(32+3, Z2, 32+19, Z, True)
        cmul(a, Z2, Z2, E1); cmul(a, Z, Q3, E4, 4)
        store_pair(32+4, Z2, 32+20, Z, True)
        cmul(a, Z, Q3, E256, 4)
        store_pair(32+8, Q1, None, None, True)
        cmul(a, Z2, Z2, E1); store_pair(32+5, Z2, None, None, True)
        store_pair(32+11, Z, None, None, True)
        cmul(a, Z2, Z2, E1); cmul(a, Z, Z, E256, 4); store_pair(32+6, Z2, None, None, True)
        store_pair(32+12, Z, None, None, True)
        cmul(a, Z2, Z2, E1); cmul(a, Z, Z, E256, 4); store_pair(32+7, Z2, None, None, True)
        store_pair(32+13, Z, None, None, True)
        cmul(a, Z, Z, E256, 4); store_pair(32+9, Q2, None, None, True)
        store_pair(32+14, Z, None, None, True)
        cmul(a, Z, Z, E256, 4); store_pair(32+10, Q3, None, None, True)
        store_pair(32+15, Z, None, None, True)
        flush()
    setup(a)
    a("s_mov_b32 s23, 3")
    a("L_GEN:")
    chains()
    a("s_waitcnt lgkmcnt(0)")
    for i in range(8):
        a(f"ds_read_b128 v[{OA+4*i}:{OA+4*i+3}], v{RX+i}")
        a(f"ds_read_b128 v[{OB+4*i}:{OB+4*i+3}], v{RY+i}")
    su = capture(setup); per = -(-len(su) // 8); k = 0
    for i in range(8):
        for l in su[k:k+per]: a(l)
        k += per
        a(f"s_waitcnt lgkmcnt({14-2*i})")
        a(f"v_mfma_f32_32x32x16_bf16 v[{ACC}:{ACC+15}], v[{OA+4*i}:{OA+4*i+3}], v[{OB+4*i}:{OB+4*i+3}], v[{ACC}:{ACC+15}]")
    a("s_sub_u32 s23, s23, 1")
    if cfg.stamps:
        a("s_cmp_eq_u32 s23, 2"); a("s_cbranch_scc0 L_GS1"); stamp(a, cfg, 9); a("L_GS1:")
        a("s_cmp_eq_u32 s23, 1"); a("s_cbranch_scc0 L_GS2"); stamp(a, cfg, 11); a("L_GS2:")
    a("s_cmp_lg_u32 s23, 0")
    a("s_cbranch_scc1 L_GEN")
    stamp(a, cfg, 3)
    a("v_and_b32 v2, 63, v0")
    a("v_and_b32 v8, 31, v2"); a("v_lshrrev_b32 v9, 5, v2")
    a("v_lshlrev_b32 v10, 2, v8"); a("v_lshl_add_u32 v10, v9, 9, v10"); a("v_add_u32 v10, s21, v10")
    a(f"s_add_u32 s22, s15, {KARR + 480}")
    a("v_lshlrev_b32 v11, 4, v2"); a("v_add_u32 v11, s22, v11")
    a("s_mov_b32 s23, 0x0000ffff")
    a("v_lshlrev_b32 v13, 2, v8"); a("v_add_u32 v13, s21, v13")
    a("v_lshlrev_b32 v14, 2, v2"); a("v_add_u32 v14, s21, v14")
    for r in range(12):
        a(f"v_cvt_pk_bf16_f32 v{16+r}, v{ACC+r}, v{ACC+r}")
    for r in range(12):
        row = 8*(r >> 2) + (r & 3)
        a(f"ds_write_b32 v10, v{16+r} offset:{row*128}")
    a("s_waitcnt lgkmcnt(0)")
    T = 64
    for r in range(8): a(f"ds_read_b32 v{T+r}, v13 offset:{r*128}")
    a(f"ds_read_b32 v{T+8}, v13 offset:{8*128}"); a(f"ds_read_b32 v{T+9}, v13 offset:{16*128}")
    a(f"ds_read_b32 v{T+10}, v13 offset:{17*128}"); a(f"ds_read_b32 v{T+11}, v13 offset:{18*128}")
    a(f"ds_read_b32 v{T+12}, v13 offset:{8*128+4}"); a(f"ds_read_b32 v{T+13}, v14 offset:{9*128}")
    a(f"ds_read_b32 v{T+14}, v14 offset:{19*128}")
    a("s_waitcnt lgkmcnt(4)")
    a(f"ds_read_b32 v{T+15}, v14 offset:{9*128+4}"); a(f"ds_read_b32 v{T+16}, v14 offset:{11*128}")
    a(f"ds_read_b32 v{T+17}, v14 offset:{11*128+4}"); a(f"ds_read_b32 v{T+18}, v14 offset:{13*128}")
    a(f"ds_read_b32 v{T+19}, v14 offset:{13*128+4}")
    def mix(d, lo, hi): a(f"v_bfi_b32 v{d}, s23, v{lo}, v{hi}")
    O = 88
    a("v_cmp_gt_u32 vcc, 32, v2")
    a("v_and_b32 v15, 1, v2"); a("v_cmp_eq_u32 s[24:25], 1, v15")
    a("s_waitcnt lgkmcnt(0)")
    for i in range(4): mix(O+i, T+2*i, T+2*i+1)
    a(f"v_mov_b32 v{O+4}, v{T+8}"); mix(O+5, T+9, T+10); a(f"v_mov_b32 v{O+6}, v{T+10}"); mix(O+7, T+11, T+12)
    for i in range(4): a(f"v_cndmask_b32 v{O+i}, v{O+4+i}, v{O+i}, vcc")
    a(f"v_mov_b32 v{O+8}, v{T+13}"); mix(O+9, T+13, T+14); a(f"v_mov_b32 v{O+10}, v{T+14}"); a(f"v_mov_b32 v{O+11}, v{T+15}")
    for k in range(2):
        s0, s1 = T+16+2*k, T+17+2*k
        d = O + 12 + 4*k
        a(f"v_mov_b32 v{d}, v{s0}"); a(f"v_mov_b32 v{d+1}, v{s0}"); mix(d+2, s0, s1)
        a(f"v_cndmask_b32 v{d+2}, v{d+2}, v{s1}, s[24:25]"); a(f"v_mov_b32 v{d+3}, v{s1}")
    a(f"ds_write_b128 v11, v[{O}:{O+3}]")
    a(f"ds_write_b128 v11, v[{O+8}:{O+11}] offset:1024")
    a(f"ds_write_b128 v11, v[{O+12}:{O+15}] offset:2048")
    a(f"ds_write_b128 v11, v[{O+16}:{O+19}] offset:3072")
    def sentinel_stores():
        srd_off(a, 56, 64, 65, WS_OT, D*XROW)
        a("v_lshrrev_b32 v3, 3, v2"); a(f"v_mul_u32_u24 v3, {XROW}, v3"); a("v_and_b32 v4, 7, v2"); a("v_lshl_add_u32 v3, v4, 4, v3")
        a(f"s_mul_i32 s22, s19, {80*XROW}"); a("s_lshl_b32 s23, s20, 7"); a("s_add_u32 s22, s22, s23"); a("v_add_u32 v3, s22, v3")
        for i in range(4): a(f"v_mov_b32 v{8+i}, -1")
        for i in range(10):
            a(f"s_mov_b32 s22, {8*XROW*i}")
            a(f"buffer_store_dwordx4 v[8:11], v3, s[56:59], s22 offen {cfg.st_ot}")
    if cfg.sentinel and cfg.sent_mode == "w6":
        a("s_cmp_eq_u32 s3, 6"); a("s_cbranch_scc0 L_PRE_B2")
        srd_off(a, 56, 64, 65, WS_OT, D*XROW)
        a("v_lshrrev_b32 v3, 3, v2"); a(f"v_mul_u32_u24 v3, {XROW}, v3"); a("v_and_b32 v4, 7, v2"); a("v_lshl_add_u32 v3, v4, 4, v3")
        a(f"s_mul_i32 s22, s19, {80*XROW}"); a("s_lshl_b32 s23, s20, 7"); a("s_add_u32 s22, s22, s23"); a("v_add_u32 v3, s22, v3")
        for i in range(4): a(f"v_mov_b32 v{8+i}, -1")
        for i in range(10):
            a(f"s_mov_b32 s22, {8*XROW*i}")
            a(f"buffer_store_dwordx4 v[8:11], v3, s[56:59], s22 offen {cfg.st_ot}")
    a("s_branch L_PRE_B2")
    a("L_PRE_B2:")
    if cfg.prio: a("s_setprio 0")
    stamp(a, cfg, 4)
    for n_, (base, ch) in enumerate(((50, "s16"), (50, None), (50, "s17"), (52, "s16"), (52, None), (52, "s17"))):
        if ch is None: a("s_add_u32 s14, s16, 1"); ch = "s14"
        a(f"s_lshl_b32 s22, {ch}, 1"); a("s_and_b32 s22, s22, 0xfffffffc")
        a(f"s_load_dword s{8+n_}, s[{base}:{base+1}], s22")
    srd(a, 60, 64, 65, 0x1000000)
    a("v_and_b32 v2, 63, v0")
    a("s_lshr_b32 s21, s3, 1"); a("s_add_u32 s22, s16, s21"); a("s_cmp_ge_u32 s3, 4"); a("s_cselect_b32 s22, s17, s22")
    a("s_and_b32 s23, s3, 1")
    a("s_lshl_b32 s14, s22, 1"); a("s_add_u32 s14, s14, s23"); a(f"s_mul_i32 s14, s14, {XROW}")
    srd_off(a, 24, 64, 65, "s14", 4096)
    a(f"s_mul_i32 s34, s3, {XARR}"); a(f"s_mul_i32 s35, s3, {KARR}"); a(f"s_add_u32 s35, s35, {L_K}")
    a("v_lshlrev_b32 v3, 4, v2"); a("v_add_u32 v4, 4, v3")
    a("v_and_b32 v8, 15, v2"); a("v_lshrrev_b32 v9, 4, v2")
    a("v_sub_u32 v10, 3, v8"); a("v_and_b32 v10, 3, v10")
    a("v_lshlrev_b32 v11, 3, v9"); a("v_sub_u32 v11, v11, v8"); a("v_add_u32 v11, 2031, v11"); a("v_sub_u32 v11, v11, v10")
    a("v_lshlrev_b32 v11, 1, v11"); a(f"v_mul_u32_u24 v12, {XCP}, v10"); a("v_add_u32 v11, v11, v12"); a("v_subrev_u32 v11, 4032, v11")
    a("v_lshlrev_b32 v12, 5, v8"); a("v_lshl_add_u32 v12, v9, 4, v12")
    VA, VB, VA2, VB2, VY, VX = 13, 14, 15, 16, 17, 18
    a(f"v_add_u32 v{VA}, s34, v11"); a(f"v_add_u32 v{VB}, s35, v12")
    a("s_add_u32 s36, s23, 4"); a(f"s_mul_i32 s37, s36, {XARR}"); a(f"s_mul_i32 s38, s36, {KARR}"); a(f"s_add_u32 s38, s38, {L_K}")
    a("s_lshr_b32 s39, s3, 1"); a("s_sub_u32 s39, 1, s39"); a("s_lshl_b32 s39, s39, 8")
    a("s_add_u32 s40, s37, s39"); a("s_add_u32 s41, s38, s39")
    a(f"v_add_u32 v{VA2}, s40, v11"); a(f"v_add_u32 v{VB2}, s41, v12")
    a(f"v_lshlrev_b32 v{VY}, 5, v8"); a(f"v_lshl_add_u32 v{VY}, v9, 3, v{VY}")
    a(f"v_add_u32 v19, s35, v{VY}")
    a("v_lshrrev_b32 v5, 1, v2"); a(f"v_mul_u32_u24 v5, {XCP}, v5"); a("v_and_b32 v6, 1, v2")
    a("v_lshl_add_u32 v5, v6, 4, v5"); a("v_add_u32 v5, s34, v5")
    a(f"v_add_u32 v{VX}, s34, v3")
    for i in range(4): a(f"v_mov_b32 v{8+i}, 0")
    stamp(a, cfg, 6)
    a("s_and_b32 s14, s3, 5"); a("s_cmp_eq_u32 s14, 4"); a("s_cbranch_scc1 L_B3W")
    a("s_waitcnt vmcnt(0)")
    a("L_B3W:")
    a("s_waitcnt lgkmcnt(0)")
    a("s_barrier")
    stamp(a, cfg, 7)
    ld = cfg.ld_x
    W = 64
    def x_even(sx, sbase):
        for cp, vreg in ((0, 3), (2, 4)):
            for q in range(4):
                a(f"s_add_u32 m0, {sbase}, {cp*XCP + 1024*q}"); a(f"s_movk_i32 s36, {1024*q}")
                a(f"buffer_load_dwordx4 v{vreg}, s[{sx}:{sx+3}], s36 offen {ld} lds")
    def x_odd(ndma):
        for q in range(4):
            a(f"buffer_load_dwordx4 v[{W+8*q}:{W+8*q+3}], v3, s[24:27], 0 offen offset:{1024*q} {ld}")
            a(f"buffer_load_dwordx4 v[{W+8*q+4}:{W+8*q+7}], v3, s[24:27], 0 offen offset:{1024*q+16} {ld}")
        if ndma: x_even(24, "s34")
        a("s_mov_b64 exec, 0xff")
        a("ds_write_b128 v5, v[8:11] offset:4096")
        a("s_mov_b64 exec, -1")
        for q in range(4):
            w = W + 8*q
            a(f"s_waitcnt vmcnt({ndma + 6 - 2*q})")
            if q == 0: stamp(a, cfg, 8)
            for j in range(4): a(f"v_alignbit_b32 v{96+j}, v{w+j+1}, v{w+j}, 16")
            for j in range(4): a(f"v_alignbit_b32 v{100+j}, v{w+j+2}, v{w+j+1}, 16")
            a(f"ds_write_b128 v{VX}, v[96:99] offset:{1*XCP + 1024*q}")
            a(f"ds_write_b128 v{VX}, v[100:103] offset:{3*XCP + 1024*q}")
        a("s_waitcnt vmcnt(0) lgkmcnt(0)")
    def xload(): x_odd(8)
    a("s_cmp_ge_u32 s3, 4"); a("s_cbranch_scc1 L_HELP")
    x_odd(0 if cfg.x1 else 8)
    stamp(a, cfg, 9)
    a("s_barrier")
    sets = [(20, 52), (84, 116)]
    ACC0, ACC2 = 148, 180
    pairs = [(aa, cc) for aa in range(8) for cc in range(8 - aa)]
    offA = lambda i, b, h: 512*(7-i) + 64*(7-b) + 8*h
    offB = lambda c, b: 512*c + 64*(7-b)
    offA2 = lambda i, b, h: 512*(7-i) + 64*(3-b) + 8*h
    offB2 = lambda c, b: 512*c + 64*(3-b)
    for l in op_loads(pairs, 0, *sets[0], VA, VB, offA, offB): a(l)
    a(f"v_mov_b32 v6, {L_CNT - 4}")
    for b in range(7):
        fill = op_loads(pairs, b+1, *sets[(b+1) & 1], VA, VB, offA, offB)
        if b == 6:
            a("L_C1:")
            a("ds_read_b32 v7, v6"); a("s_waitcnt lgkmcnt(0)")
            a("v_cmp_gt_u32 vcc, 2, v7"); a("s_cbranch_vccnz L_C1")
        mfma_iter(a, pairs, lambda aa, cc: ACC0 + 4*(aa+cc), *sets[b & 1], fill, b == 0, cfg.frac)
    a("s_cmp_eq_u32 s18, 0"); a("s_cbranch_scc0 L_C2_E1")
    ywr = []
    for p in range(8):
        tt = (4, 6)[p & 1]
        ywr += [f"v_cvt_pk_bf16_f32 v{tt}, v{ACC0+4*p}, v{ACC0+4*p+1}", f"v_cvt_pk_bf16_f32 v{tt+1}, v{ACC0+4*p+2}, v{ACC0+4*p+3}",
                f"ds_write_b64 v19, v[{tt}:{tt+1}] offset:{512*p}"]
    for e in range(2):
        if e == 1: a("L_C2_E1:")
        ps = PSET[e]
        prs = [(aa, cc) for aa in range(8) for cc in range(8 - aa) if aa + cc in ps]
        a("s_waitcnt lgkmcnt(0)")
        pre = op_loads(prs, 0, *sets[0], VA2, VB2, offA2, offB2)
        last = {aa + cc: idx for idx, (aa, cc) in enumerate(pairs)}
        ins = {i: [] for i in range(len(pairs))}
        for n_, l in enumerate(pre): ins[min(len(pairs)-1, n_ + 1)].append(l)
        for p_ in range(5):
            c0_, c1_, w_ = ywr[3*p_:3*p_+3]
            ins[min(35, last[p_] + 5)] += [c0_, c1_]; ins[min(35, last[p_] + 7)].append(w_)
        A0, B0 = sets[1]
        for idx, (aa, cc) in enumerate(pairs):
            d = ACC0 + 4*(aa+cc)
            a(f"v_mfma_f32_16x16x32_bf16 v[{d}:{d+3}], v[{A0+4*aa}:{A0+4*aa+3}], v[{B0+4*cc}:{B0+4*cc+3}], v[{d}:{d+3}]")
            for l in ins[idx]: a(l)
        stamp(a, cfg, 10)
        for b in range(4):
            fill = op_loads(prs, b+1, *sets[(b+1) & 1], VA2, VB2, offA2, offB2) if b < 3 else []
            if b == 0: fill = fill[:6] + ywr[15:17] + fill[6:9] + ywr[17:20] + fill[9:12] + ywr[20:23] + fill[12:15] + ywr[23:24] + fill[15:]
            if b == 1:
                a("s_waitcnt lgkmcnt(0)"); a("s_barrier")
            mfma_iter(a, prs, lambda aa, cc: ACC2 + 4*ps.index(aa+cc), *sets[b & 1], fill, b == 0, 0.95)
        if e == 0: a("s_branch L_C2_DONE")
    a("L_C2_DONE:")
    stamp(a, cfg, 11)
    def dscal_fix():
        a("s_waitcnt lgkmcnt(0)")
        for n_, ch in enumerate(("s16", None, "s17", "s16", None, "s17")):
            if ch is None: a("s_add_u32 s14, s16, 1"); ch = "s14"
            a(f"s_and_b32 s22, {ch}, 1"); a("s_lshl_b32 s22, s22, 4")
            a(f"s_lshr_b32 s{8+n_}, s{8+n_}, s22"); a(f"s_lshl_b32 s{8+n_}, s{8+n_}, 16")
    a("s_and_b32 s36, s3, 1"); a("s_lshl_b32 s39, s36, 2"); a("s_add_u32 s36, s36, 2"); a(f"s_mul_i32 s36, s36, {XARR}"); a(f"s_add_u32 s36, s36, {XCP}")
    a("v_add_u32 v4, s36, v3")
    a("s_lshl_b32 s37, s18, 9")
    a(f"v_add_u32 v5, s38, v{VY}")
    a("v_add_u32 v6, s37, v5"); a("v_subrev_u32 v7, s37, v5")
    a(f"s_add_u32 s39, s39, {L_CNT - 16}"); a("v_mov_b32 v8, s39"); a("v_mov_b32 v9, 1")
    def lds_sync(tag, vaddr, off, target):
        a("s_waitcnt lgkmcnt(0)")
        a("s_mov_b64 exec, 1")
        a(f"ds_add_u32 v{vaddr}, v9 offset:{off}")
        a(f"L_SY_{tag}:")
        a(f"ds_read_b32 v10, v{vaddr} offset:{off}"); a("s_waitcnt lgkmcnt(0)")
        a(f"v_cmp_gt_u32 vcc, {target}, v10"); a(f"s_cbranch_vccnz L_SY_{tag}")
        a("s_mov_b64 exec, -1")
    a("s_cmp_lt_u32 s3, 2"); a("s_cbranch_scc0 L_RED_HI")
    for (lbl, keep, give) in (("lo", (0, 1), (2, 3)), ("hi", (2, 3), (0, 1))):
        if lbl == "hi": a("L_RED_HI:")
        a("s_nop 4")
        for ti in give: a(f"ds_write_b128 v4, v[{ACC2+4*ti}:{ACC2+4*ti+3}] offset:{1024*ti}")
        lds_sync("R" + lbl, 8, 0, 2)
        for n_, ti in enumerate(keep): a(f"ds_read_b128 v[{20+4*n_}:{23+4*n_}], v4 offset:{1024*ti}")
        a("s_waitcnt lgkmcnt(0)")
        for n_, ti in enumerate(keep):
            for r in range(0, 4, 2):
                a(f"v_pk_add_f32 v[{20+4*n_+r}:{21+4*n_+r}], v[{20+4*n_+r}:{21+4*n_+r}], v[{ACC2+4*ti+r}:{ACC2+4*ti+r+1}]")
            a(f"v_cvt_pk_bf16_f32 v{28+2*n_}, v{20+4*n_}, v{21+4*n_}"); a(f"v_cvt_pk_bf16_f32 v{29+2*n_}, v{22+4*n_}, v{23+4*n_}")
        for n_, ti in enumerate(keep):
            if ti & 1: a(f"ds_write_b64 v7, v[{28+2*n_}:{29+2*n_}] offset:{1024*ti + 512}")
            else: a(f"ds_write_b64 v6, v[{28+2*n_}:{29+2*n_}] offset:{1024*ti}")
        if lbl == "lo": a("s_branch L_RED_DONE")
    a("L_RED_DONE:")
    a(f"v_mov_b32 v8, {L_CNT - 16}")
    lds_sync("Y2", 8, 8, 4)
    stamp(a, cfg, 12)
    dscal_fix()
    srd_off(a, 28, 64, 65, WS_OT, D*XROW)
    a("v_lshrrev_b32 v1, 6, v0"); a("v_and_b32 v2, 1, v1"); a("v_xor_b32 v2, s18, v2"); a("v_lshl_add_u32 v1, v1, 1, v2")
    a("v_lshlrev_b32 v1, 8, v1"); a("v_and_b32 v2, 63, v0"); a("v_lshl_add_u32 v1, v2, 2, v1")
    a("v_lshlrev_b32 v7, 1, v1")
    a(f"v_add_u32 v8, {L_K + 4*KARR}, v7"); a(f"v_sub_u32 v9, {4*XARR + 4088}, v7")
    a("v_lshlrev_b32 v10, 2, v1"); a(f"v_add_u32 v10, {L_G}, v10")
    a("ds_read_b64 v[20:21], v8"); a(f"ds_read_b64 v[22:23], v8 offset:{KARR}")
    a("ds_read_b64 v[24:25], v9"); a(f"ds_read_b64 v[26:27], v9 offset:{XARR}")
    a("ds_read_b128 v[28:31], v10"); a("ds_read_b128 v[32:35], v10 offset:8192")
    a(f"s_mul_i32 s47, s17, {XROW}"); a("v_add_u32 v7, s47, v7")
    a("v_mov_b32 v12, s10"); a("v_mov_b32 v13, s10"); a("v_mov_b32 v14, s13"); a("v_mov_b32 v15, s13")
    a("s_waitcnt lgkmcnt(0)")
    for i in range(2):
        t = 52 + 8*i
        a(f"v_lshlrev_b32 v{t}, 16, v{20+i}"); a(f"v_and_b32 v{t+1}, 0xffff0000, v{20+i}")
        a(f"v_lshlrev_b32 v{t+2}, 16, v{22+i}"); a(f"v_and_b32 v{t+3}, 0xffff0000, v{22+i}")
        a(f"v_and_b32 v{t+4}, 0xffff0000, v{24+1-i}"); a(f"v_lshlrev_b32 v{t+5}, 16, v{24+1-i}")
        a(f"v_and_b32 v{t+6}, 0xffff0000, v{26+1-i}"); a(f"v_lshlrev_b32 v{t+7}, 16, v{26+1-i}")
    for i in range(2):
        t = 52 + 8*i
        a(f"v_pk_fma_f32 v[{t}:{t+1}], v[{t+4}:{t+5}], v[12:13], v[{t}:{t+1}]")
        a(f"v_pk_fma_f32 v[{t+2}:{t+3}], v[{t+6}:{t+7}], v[14:15], v[{t+2}:{t+3}]")
    for i in range(2):
        t = 52 + 8*i
        a(f"v_pk_mul_f32 v[{t}:{t+1}], v[{t}:{t+1}], v[{t+6}:{t+7}]")
        a(f"v_pk_mul_f32 v[{t}:{t+1}], v[{t}:{t+1}], v[{28+2*i}:{29+2*i}]")
        a(f"v_pk_fma_f32 v[{t}:{t+1}], v[{t+2}:{t+3}], v[{32+2*i}:{33+2*i}], v[{t}:{t+1}]")
        a(f"v_cvt_pk_bf16_f32 v{68+i}, v{t}, v{t+1}")
    if cfg.sentinel:
        for i in range(2): a(f"v_min_u32 v{68+i}, 0xfffffffe, v{68+i}")
    a(f"buffer_store_dwordx2 v[68:69], v7, s[28:31], 0 offen {cfg.st_ot}")
    a("s_branch L_FINAL")
    def epi_oct(tagc):
        a("s_lshl_b32 s43, s42, 1")
        a(f"s_mul_i32 s45, s43, {XARR}"); a(f"s_mul_i32 s46, s43, {KARR}"); a(f"s_add_u32 s46, s46, {L_K}")
        a("v_lshlrev_b32 v7, 1, v1"); a("v_add_u32 v8, s46, v7")
        a("v_sub_u32 v9, 4080, v7"); a("v_add_u32 v9, s45, v9")
        a("v_lshlrev_b32 v10, 2, v1"); a(f"v_add_u32 v10, {L_G}, v10")
        a("ds_read_b128 v[20:23], v8"); a(f"ds_read_b128 v[24:27], v8 offset:{KARR}")
        a("ds_read_b128 v[28:31], v9"); a(f"ds_read_b128 v[32:35], v9 offset:{XARR}")
        a("ds_read_b128 v[36:39], v10"); a("ds_read_b128 v[40:43], v10 offset:16")
        a("ds_read_b128 v[44:47], v10 offset:8192"); a("ds_read_b128 v[48:51], v10 offset:8208")
        a("s_add_u32 s47, s16, s42"); a(f"s_mul_i32 s47, s47, {XROW}"); a("v_add_u32 v7, s47, v7")
        a("s_cmp_eq_u32 s42, 0"); a("s_cselect_b32 s44, s8, s9"); a("s_cselect_b32 s45, s11, s12")
        a("v_mov_b32 v12, s44"); a("v_mov_b32 v13, s44"); a("v_mov_b32 v14, s45"); a("v_mov_b32 v15, s45")
        a("s_waitcnt lgkmcnt(0)")
        for i in range(4):
            t = 52 + 8*(i & 1)
            a(f"v_lshlrev_b32 v{t}, 16, v{20+i}"); a(f"v_and_b32 v{t+1}, 0xffff0000, v{20+i}")
            a(f"v_lshlrev_b32 v{t+2}, 16, v{24+i}"); a(f"v_and_b32 v{t+3}, 0xffff0000, v{24+i}")
            a(f"v_and_b32 v{t+4}, 0xffff0000, v{28+3-i}"); a(f"v_lshlrev_b32 v{t+5}, 16, v{28+3-i}")
            a(f"v_and_b32 v{t+6}, 0xffff0000, v{32+3-i}"); a(f"v_lshlrev_b32 v{t+7}, 16, v{32+3-i}")
            a(f"v_pk_fma_f32 v[{t}:{t+1}], v[{t+4}:{t+5}], v[12:13], v[{t}:{t+1}]")
            a(f"v_pk_fma_f32 v[{t+2}:{t+3}], v[{t+6}:{t+7}], v[14:15], v[{t+2}:{t+3}]")
            a(f"v_pk_mul_f32 v[{t}:{t+1}], v[{t}:{t+1}], v[{t+6}:{t+7}]")
            a(f"v_pk_mul_f32 v[{t}:{t+1}], v[{t}:{t+1}], v[{36+2*i}:{37+2*i}]")
            a(f"v_pk_fma_f32 v[{t}:{t+1}], v[{t+2}:{t+3}], v[{44+2*i}:{45+2*i}], v[{t}:{t+1}]")
            a(f"v_cvt_pk_bf16_f32 v{68+i}, v{t}, v{t+1}")
        if cfg.sentinel:
            for i in range(4): a(f"v_min_u32 v{68+i}, 0xfffffffe, v{68+i}")
        a(f"buffer_store_dwordx4 v[68:71], v7, s[28:31], 0 offen {cfg.st_ot}")
    a("L_HELP:")
    if cfg.x1:
        a("s_sub_u32 s14, s3, 4"); a("s_lshr_b32 s22, s14, 1"); a("s_add_u32 s22, s16, s22"); a("s_lshl_b32 s22, s22, 1")
        a("s_and_b32 s23, s14, 1"); a("s_add_u32 s22, s22, s23"); a(f"s_mul_i32 s22, s22, {XROW}")
        srd_off(a, 28, 64, 65, "s22", 4096)
        a(f"s_mul_i32 s33, s14, {XARR}")
        x_even(28, "s33")
        a("s_waitcnt vmcnt(0)")
    a("s_barrier")
    a("s_cmp_ge_u32 s3, 6"); a("s_cbranch_scc1 L_H67")
    xload()
    a(f"v_mov_b32 v4, {L_CNT - 4}"); a("v_mov_b32 v5, 1")
    a("s_mov_b64 exec, 1"); a("ds_add_u32 v4, v5"); a("s_mov_b64 exec, -1")
    a("s_branch L_HELP2")
    a("L_H67:")
    if cfg.sentinel and cfg.sent_mode in ("w6", "w6b"):
        a("s_cmp_eq_u32 s3, 6"); a("s_cbranch_scc0 L_H7")
        if cfg.sent_mode == "w6b": sentinel_stores()
        a(f"v_mov_b32 v4, {L_CNT}"); a("ds_read_b64 v[6:7], v4 offset:8")
        a("s_waitcnt vmcnt(0) lgkmcnt(0)")
        a("v_readfirstlane_b32 s66, v6"); a("v_readfirstlane_b32 s67, v7")
        mb_send(a, cfg, WS_MB3, 32, "grp")
        mb_poll(a, cfg, "S", WS_MB3, 32, 8)
        a("s_branch L_HELP2")
        a("L_H7:")
    onew = cfg.sentinel and cfg.sent_mode in ("w6", "w6b")
    nq = 16 if onew else 8
    a(f"v_mov_b32 v4, {L_CNT}"); a("ds_read_b32 v5, v4 offset:8")
    srd_off(a, 24, 64, 65, WS_G, 16384)
    if onew: a("s_mov_b32 s36, 0")
    else: a("s_sub_u32 s36, s3, 6"); a("s_lshl_b32 s36, s36, 13")
    a("v_lshlrev_b32 v3, 4, v2"); a("v_add_u32 v6, s36, v3")
    for k_ in range(1, nq // 4): a(f"v_add_u32 v{9+k_}, {4096*k_}, v6")
    a(f"s_mov_b32 s21, {cfg.spin_max}")
    a("L_G_POLL:")
    for q in range(nq):
        a(f"buffer_load_dwordx4 v[{20+4*q}:{23+4*q}], v{6 if q < 4 else 9 + (q >> 2)}, s[24:27], 0 offen offset:{1024*(q & 3)} {cfg.ld_g}")
    a("s_waitcnt vmcnt(0) lgkmcnt(0)")
    a("v_xor_b32 v7, v21, v5")
    for q in range(nq):
        for h in (1, 3):
            if q == 0 and h == 1: continue
            a(f"v_xor_b32 v8, v{20+4*q+h}, v5"); a("v_or_b32 v7, v7, v8")
    a("v_cmp_ne_u32 vcc, 0, v7")
    a("s_cbranch_vccz L_G_OK")
    a("s_sub_u32 s21, s21, 1"); a("s_cmp_eq_u32 s21, 0"); a("s_cbranch_scc0 L_G_POLL")
    a("L_G_OK:")
    a("s_lshr_b32 s36, s36, 1")
    a("v_lshlrev_b32 v9, 3, v2"); a("v_add_u32 v9, s36, v9"); a(f"v_add_u32 v9, {L_G}, v9")
    for q in range(nq):
        r = 20 + 4*q
        a(f"v_lshlrev_b32 v{r+1}, 16, v{r+2}"); a(f"v_and_b32 v{r+3}, 0xffff0000, v{r+2}")
        a(f"v_and_b32 v{r+2}, 0xffff0000, v{r}"); a(f"v_lshlrev_b32 v{r}, 16, v{r}")
    for q in range(nq):
        r = 20 + 4*q
        a(f"ds_write_b64 v9, v[{r}:{r+1}] offset:{512*q}")
        a(f"ds_write_b64 v9, v[{r+2}:{r+3}] offset:{8192 + 512*q}")
    a("L_HELP2:")
    dscal_fix()
    srd_off(a, 28, 64, 65, WS_OT, D*XROW)
    a("s_barrier")
    a("v_and_b32 v1, 255, v0"); a("v_lshlrev_b32 v1, 3, v1")
    a("s_mov_b32 s42, 0")
    a("L_EPI_LOOP:")
    epi_oct("h")
    a("s_add_u32 s42, s42, 1"); a("s_cmp_lt_u32 s42, 2"); a("s_cbranch_scc1 L_EPI_LOOP")
    stamp(a, cfg, 10)
    a("L_FINAL:")
    a("v_and_b32 v2, 63, v0")
    a("v_lshrrev_b32 v3, 3, v2"); a(f"v_mul_u32_u24 v3, {XROW}, v3"); a("v_and_b32 v4, 7, v2"); a("v_lshl_add_u32 v3, v4, 4, v3")
    a(f"s_mul_i32 s22, s19, {80*XROW}"); a("s_lshl_b32 s23, s20, 7"); a("s_add_u32 s22, s22, s23"); a("v_add_u32 v3, s22, v3")
    srd(a, 12, 54, 55, S*D*2)
    a("v_mul_u32_u24 v5, 205, v0"); a("v_lshrrev_b32 v5, 11, v5"); a("v_mul_u32_u24 v6, 10, v5"); a("v_sub_u32 v6, v0, v6")
    a("v_mul_u32_u24 v7, 1056, v6"); a("v_lshl_add_u32 v7, v5, 3, v7")
    a("s_lshl_b32 s22, s20, 6"); a("v_lshl_add_u32 v8, v5, 2, s22"); a("v_mul_u32_u24 v8, 1280, v8")
    a("s_mul_i32 s23, s19, 160"); a("v_lshl_add_u32 v9, v6, 4, s23"); a("v_add_u32 v8, v8, v9")
    if not cfg.sentinel:
        a("s_waitcnt vmcnt(0)")
        a("s_barrier")
        a("s_cmp_eq_u32 s3, 7"); a("s_cbranch_scc0 L_D2")
        mb_send(a, cfg, WS_MB2, 32, "grp")
        mb_poll(a, cfg, "B", WS_MB2, 32, 8)
        a("L_D2:")
        a("s_barrier")
        stamp(a, cfg, 14)
        for r in range(2):
            if r == 1: a("s_cmp_ge_u32 s3, 2"); a("s_cbranch_scc1 L_P3_LD")
            a(f"s_add_u32 s22, s3, {8*r}"); a(f"s_mul_i32 s23, s22, {8*XROW}"); a("s_mul_i32 s22, s22, 1056"); a("s_mov_b32 m0, s22"); a("s_nop 0")
            a(f"buffer_load_dwordx4 v3, s[28:31], s23 offen {cfg.ld_ot} lds")
        a("L_P3_LD:")
        a("s_waitcnt vmcnt(0)")
    else:
        a("s_barrier")
        a("v_lshrrev_b32 v10, 3, v2"); a("v_and_b32 v11, 7, v2")
        a(f"s_mul_i32 s22, s19, {80*XROW}"); a("s_lshl_b32 s23, s20, 7"); a("s_add_u32 s22, s22, s23")
        a("s_cmp_lt_u32 s3, 2"); a("s_cbranch_scc0 L_OT_B")
        a("s_lshl_b32 s23, s3, 3"); a("v_add_u32 v10, s23, v10"); a("v_mul_u32_u24 v10, 5, v10"); a("v_add_u32 v10, 2, v10")
        a("v_mov_b32 v12, v10")
        a("s_branch L_OT_C")
        a("L_OT_B:")
        a("s_sub_u32 s23, s3, 2"); a("s_lshl_b32 s23, s23, 3"); a("v_add_u32 v10, s23, v10")
        a("s_cmp_lt_u32 s3, 4"); a("s_cselect_b32 s23, 48, 0"); a("v_add_u32 v12, s23, v10")
        for r in (10, 12):
            a(f"v_lshrrev_b32 v13, 2, v{r}"); a(f"v_and_b32 v14, 3, v{r}"); a("v_lshrrev_b32 v15, 1, v14")
            a("v_add_u32 v14, v14, v15"); a(f"v_mad_u32_u24 v{r}, v13, 5, v14")
        a("L_OT_C:")
        a(f"s_movk_i32 s23, {XROW}")
        for r, d_ in ((10, 4), (12, 5)):
            a(f"v_mul_lo_u32 v{d_}, v{r}, s23"); a(f"v_lshl_add_u32 v{d_}, v11, 4, v{d_}"); a(f"v_add_u32 v{d_}, s22, v{d_}")
            a(f"v_lshrrev_b32 v13, 3, v{r}"); a(f"v_and_b32 v14, 7, v{r}"); a("v_mul_u32_u24 v13, 1056, v13")
            a("v_lshl_add_u32 v13, v14, 7, v13"); a(f"v_lshl_add_u32 v{r}, v11, 4, v13")
        a(f"s_mov_b32 s21, {cfg.spin_max}")
        ld = lambda r, ad: a(f"buffer_load_dwordx4 v[{r}:{r+3}], v{ad}, s[28:31], 0 offen {cfg.ld_ot}")
        a("s_cmp_lt_u32 s3, 2"); a("s_cbranch_scc0 L_OT_POLL2")
        ld(48, 4); a(f"s_sleep {cfg.psleep}"); ld(52, 4); a(f"s_sleep {cfg.psleep}"); ld(56, 4)
        a("L_OT_POLL1:")
        for r in (48, 52, 56):
            a("s_waitcnt vmcnt(2)")
            a(f"v_max_u32 v28, v{r}, v{r+1}"); a(f"v_max3_u32 v28, v28, v{r+2}, v{r+3}")
            a("v_cmp_eq_u32 vcc, -1, v28")
            a(f"s_cbranch_vccz L_OT_OK{r}")
            ld(r, 4)
        a("s_sub_u32 s21, s21, 1"); a("s_cmp_eq_u32 s21, 0"); a("s_cbranch_scc0 L_OT_POLL1")
        for r in (48, 52, 56):
            a(f"L_OT_OK{r}:")
            a(f"ds_write_b128 v10, v[{r}:{r+3}]")
            a("s_branch L_OT_W")
        a("L_OT_POLL2:")
        ld(16, 4); ld(20, 5)
        a("s_waitcnt vmcnt(0)")
        a("v_max_u32 v28, v16, v17"); a("v_max3_u32 v28, v28, v18, v19")
        a("v_max3_u32 v28, v28, v20, v21"); a("v_max3_u32 v28, v28, v22, v23")
        a("v_cmp_eq_u32 vcc, -1, v28")
        a("s_cbranch_vccz L_OT_OK2")
        a("s_sub_u32 s21, s21, 1"); a("s_cmp_eq_u32 s21, 0"); a("s_cbranch_scc0 L_OT_POLL2")
        a("L_OT_OK2:")
        a("ds_write_b128 v10, v[16:19]"); a("ds_write_b128 v12, v[20:23]")
        a("L_OT_W:")
        stamp(a, cfg, 14)
        a("s_waitcnt lgkmcnt(0)")
    a("s_barrier")
    a("v_cmp_gt_u32 vcc, 160, v0")
    a("s_and_saveexec_b64 s[22:23], vcc")
    a("s_cbranch_execz L_FINISH")
    for i in range(8): a(f"ds_read_b64 v[{16+2*i}:{17+2*i}], v7 offset:{128*i}")
    a("s_mov_b32 s24, 0x05040100"); a("s_mov_b32 s25, 0x07060302")
    a("s_waitcnt lgkmcnt(0)")
    for r in range(4):
        for c in range(4):
            a(f"v_perm_b32 v{32+4*r+c}, v{16+2*(2*c+1)+(r>>1)}, v{16+2*(2*c)+(r>>1)}, s{24+(r&1)}")
        a(f"buffer_store_dwordx4 v[{32+4*r}:{35+4*r}], v8, s[12:15], 0 offen offset:{1280*r} {cfg.st_out}")
    a("L_FINISH:")
    if cfg.stamps:
        stamp(a, cfg, 15)
        stamp_flush(a, cfg)
    a("L_END:")
    a("s_endpgm")
    body = a.finish()
    kd = f""".section .rodata,"a"
.p2align 6
.amdhsa_kernel {KNAME}
  .amdhsa_next_free_vgpr 200
  .amdhsa_next_free_sgpr 102
  .amdhsa_accum_offset 200
  .amdhsa_group_segment_fixed_size 0
  .amdhsa_kernarg_size 136
  .amdhsa_user_sgpr_count 2
  .amdhsa_user_sgpr_kernarg_segment_ptr 1
  .amdhsa_system_sgpr_workgroup_id_x 1
  .amdhsa_float_denorm_mode_32 3
.end_amdhsa_kernel
"""
    header = open(__file__.replace("gen6.py", "header.txt")).read()
    return header + f"; @launch grid=(256,1,1) block=(512,1,1) lds={LDS_TOTAL}\n" + '.amdgcn_target "amdgcn-amd-amdhsa--gfx950"\n' + body + kd

if __name__ == "__main__":
    cfg = Cfg()
    for kv in sys.argv[2:]:
        k, v = kv.split("=", 1)
        setattr(cfg, k, (v == "True") if v in ("True", "False") else (int(v) if v.lstrip("-").isdigit() else (float(v) if k == "frac" else v)))
    open(sys.argv[1], "w").write(gen(cfg))
```

```python
import sys, struct
from asmlib import Asm

S, D = 2048, 640
XROW = 4224
WS_X, WS_G, WS_OT, WS_TS = 0, 0x7B0000, 0x800000, 0xC00000
WS_MB1, WS_MBG, WS_MB2, WS_MB3 = 0xD00000, 0xD10000, 0xD20000, 0xD30000
NAME = "gated_mix__ssm_conv_h3__ssm_conv_s4d__prompt"
KNAME = NAME + "_kernel"
XCP = 4160; XARR = 4*XCP; L_K = 6*XARR; KARR = 4608; L_G = L_K + 6*KARR
LDS_TOTAL = 163840
L_ST = L_G
ST_Q, ST_V, ST_K = 0, 10368, 20736
SLOT = 53*256
L_CNT = LDS_TOTAL - 16
PSET = ([0, 3, 4, 7], [1, 2, 5, 6])
SENT = 0xFFFFFFFF

class Cfg:
    nt_in = "nt"
    st_g = "sc1"; ld_g = "sc1"; st_n = "sc1"; ld_n = "sc1"
    st_x = "sc1"; ld_x = "sc1"; st_ot = "sc1"; ld_ot = "sc1"; st_out = "sc1"; st_flag = "sc1"; ld_flag = "sc1"
    stamps = False; clk = "s_memrealtime"
    spin_max = 100000
    sleep = 0
    sentinel = True
    psleep = 8
    ssm_late = False
    c2merge = True
    epi2 = True
    eprio = 1
    epi_scalar = True
    gate_after = False
    x1 = True
    map = "contig"
    prio = True
    sent_early = False
    sent_mode = "w6b"
    frac = 0.75

def hexf(x): return "0x%08x" % struct.unpack("<I", struct.pack("<f", float(x)))[0]

NST = 16
def stamp(a, cfg, i):
    if cfg.stamps: a(f"{cfg.clk} s[{70+2*i}:{71+2*i}]")
def stamp_flush(a, cfg):
    if not cfg.stamps: return
    a("s_waitcnt lgkmcnt(0)")
    a(f"s_add_u32 s4, s64, {WS_TS}"); a("s_addc_u32 s5, s65, 0")
    a("s_lshl_b32 s6, s2, 3"); a("s_add_u32 s6, s6, s3"); a("s_lshl_b32 s6, s6, 7")
    a("s_mov_b64 exec, 1")
    a("v_mov_b32 v4, s6")
    for i in range(NST):
        a(f"v_mov_b32 v6, s{70+2*i}"); a(f"v_mov_b32 v7, s{71+2*i}")
        a(f"global_store_dwordx2 v4, v[6:7], s[4:5] offset:{8*i}")
        a("s_nop 1")

def srd(a, s, lo, hi, size):
    a(f"s_mov_b32 s{s}, s{lo}"); a(f"s_and_b32 s{s+1}, s{hi}, 0xffff")
    a(f"s_mov_b32 s{s+2}, {size}"); a(f"s_mov_b32 s{s+3}, 0x00020000")
def srd_off(a, s, lo, hi, off, size):
    a(f"s_add_u32 s{s}, s{lo}, {off}"); a(f"s_addc_u32 s{s+1}, s{hi}, 0"); a(f"s_and_b32 s{s+1}, s{s+1}, 0xffff")
    a(f"s_mov_b32 s{s+2}, {size}"); a(f"s_mov_b32 s{s+3}, 0x00020000")
def cmul(a, d, z, w, t=2):
    a(f"v_pk_mul_f32 v[{t}:{t+1}], v[{z}:{z+1}], v[{w}:{w+1}] op_sel:[0,0] op_sel_hi:[1,0]")
    a(f"v_pk_fma_f32 v[{d}:{d+1}], v[{z}:{z+1}], v[{w}:{w+1}], v[{t}:{t+1}] op_sel:[1,1,0] op_sel_hi:[0,1,1] neg_lo:[1,0,0]")

def mb_send(a, cfg, region, nlanes, mode):
    a("v_and_b32 v4, 63, v0")
    if mode == "grp":
        a("v_lshl_add_u32 v4, v4, 3, s19"); a("v_lshlrev_b32 v4, 8, v4"); a("s_lshl_b32 s21, s20, 3")
    else:
        a("s_lshl_b32 s21, s20, 3"); a("v_add_u32 v4, s21, v4"); a("v_lshlrev_b32 v4, 7, v4"); a("s_lshl_b32 s21, s19, 3")
    a(f"s_add_u32 s21, s21, {region}"); a("v_add_u32 v4, s21, v4")
    a("v_mov_b32 v6, s66"); a("v_mov_b32 v7, s67")
    a(f"s_mov_b64 exec, {hex((1 << nlanes) - 1)}")
    a(f"buffer_store_dwordx2 v[6:7], v4, s[60:63], 0 offen {cfg.st_flag}")
    a("s_mov_b64 exec, -1")
def mb_poll(a, cfg, tag, region, nlanes, shift):
    a("v_and_b32 v4, 63, v0"); a("v_lshlrev_b32 v4, 3, v4")
    a("s_lshl_b32 s21, s20, 3"); a("s_add_u32 s21, s21, s19")
    a(f"s_lshl_b32 s21, s21, {shift}"); a(f"s_add_u32 s21, s21, {region}"); a("v_add_u32 v4, s21, v4")
    a(f"s_mov_b64 exec, {hex((1 << nlanes) - 1)}")
    a(f"s_mov_b32 s21, {cfg.spin_max}")
    ld = lambda r: a(f"buffer_load_dwordx2 v[{r}:{r+1}], v4, s[60:63], 0 offen {cfg.ld_flag}")
    ld(100); a(f"s_sleep {cfg.psleep}"); ld(102); a(f"s_sleep {cfg.psleep}"); ld(104)
    a(f"POLL_{tag}:")
    for r in (100, 102, 104):
        a("s_waitcnt vmcnt(2)")
        a(f"v_cmp_ne_u32 vcc, s66, v{r}"); a(f"v_cmp_ne_u32 s[22:23], s67, v{r+1}"); a("s_or_b64 vcc, vcc, s[22:23]")
        a(f"s_cbranch_vccz POLL_{tag}_OK")
        ld(r)
    a("s_sub_u32 s21, s21, 1"); a("s_cmp_eq_u32 s21, 0"); a(f"s_cbranch_scc0 POLL_{tag}")
    a(f"POLL_{tag}_OK:")
    a("s_mov_b64 exec, -1")

def op_loads(pairs, b, A0, B0, VA, VB, offA, offB):
    L = []; seen = []
    for (aa, cc) in pairs:
        if ("A", aa) not in seen: seen.append(("A", aa))
        if ("B", cc) not in seen: seen.append(("B", cc))
    for kind, i in seen:
        if kind == "A":
            L.append(f"ds_read_b64 v[{A0+4*i}:{A0+4*i+1}], v{VA} offset:{offA(i, b, 0)}")
            L.append(f"ds_read_b64 v[{A0+4*i+2}:{A0+4*i+3}], v{VA} offset:{offA(i, b, 1)}")
        else:
            L.append(f"ds_read_b128 v[{B0+4*i}:{B0+4*i+3}], v{VB} offset:{offB(i, b)}")
    return L

def mfma_iter(a, pairs, acc_of, A0, B0, fill, first, frac):
    a("s_waitcnt lgkmcnt(0)")
    k = 0; seen = set()
    for idx, (aa, cc) in enumerate(pairs):
        d = acc_of(aa, cc)
        c = "0" if (first and d not in seen) else f"v[{d}:{d+3}]"
        seen.add(d)
        a(f"v_mfma_f32_16x16x32_bf16 v[{d}:{d+3}], v[{A0+4*aa}:{A0+4*aa+3}], v[{B0+4*cc}:{B0+4*cc+3}], {c}")
        want = -(-len(fill) * (idx + 1) // max(1, int(len(pairs) * frac)))
        while k < min(len(fill), want): a(fill[k]); k += 1
    while k < len(fill): a(fill[k]); k += 1

def gen(cfg):
    a = Asm()
    a.lines += [".text", f".globl {KNAME}", ".p2align 8", f".type {KNAME},@function", f"{KNAME}:"]
    nt = cfg.nt_in
    a("s_cmp_ge_u32 s2, 256")
    a("s_cbranch_scc1 L_END")
    a("s_load_dwordx8 s[36:43], s[0:1], 56")
    a("s_load_dwordx2 s[44:45], s[0:1], 88")
    a("s_load_dwordx4 s[4:7], s[0:1], 0")
    a("s_load_dwordx4 s[8:11], s[0:1], 16")
    a("s_load_dwordx2 s[12:13], s[0:1], 120")
    a("s_load_dwordx2 s[64:65], s[0:1], 128")
    a("s_load_dwordx2 s[46:47], s[0:1], 104")
    a("s_load_dwordx4 s[48:51], s[0:1], 32")
    a("s_load_dwordx2 s[52:53], s[0:1], 96")
    a("s_load_dwordx2 s[54:55], s[0:1], 112")
    a("v_lshrrev_b32 v1, 6, v0")
    a("v_and_b32 v2, 63, v0")
    a("v_readfirstlane_b32 s3, v1")
    a("v_mov_b32 v3, 0"); a(f"v_mov_b32 v4, {L_CNT}")
    a("ds_write_b32 v4, v3")
    a("ds_write_b32 v4, v3 offset:4")
    a(f"v_mov_b32 v5, {L_CNT - 16}")
    a("ds_write_b32 v5, v3"); a("ds_write_b32 v5, v3 offset:4"); a("ds_write_b32 v5, v3 offset:8"); a("ds_write_b32 v5, v3 offset:12")
    for i in range(NST): stamp(a, cfg, i)
    if cfg.map == "contig":
        a("s_lshr_b32 s19, s2, 5"); a("s_and_b32 s20, s2, 31")
    else:
        a("s_and_b32 s19, s2, 7"); a("s_lshr_b32 s20, s2, 3")
    a("s_mul_i32 s17, s19, 80"); a("s_lshr_b32 s21, s20, 1"); a("s_mul_i32 s21, s21, 5"); a("s_add_u32 s17, s17, s21")
    a("s_and_b32 s18, s20, 1"); a("s_mul_i32 s21, s18, 3"); a("s_add_u32 s16, s17, s21"); a("s_add_u32 s17, s17, 2")
    a("s_waitcnt lgkmcnt(0)")
    a("s_barrier")
    a("s_cmp_ge_u32 s3, 5")
    a("s_cbranch_scc1 L_K")
    if cfg.prio: a("s_setprio 3")
    a("s_cmp_eq_u32 s3, 4"); a("s_cbranch_scc0 L_T1")
    a("s_cmp_eq_u32 s2, 0"); a("s_cbranch_scc0 L_T1")
    srd(a, 40, 12, 13, 256)
    a("s_memrealtime s[22:23]"); a("s_waitcnt lgkmcnt(0)")
    a("s_or_b32 s22, s22, 1"); a("s_or_b32 s23, s23, 0x80000000")
    a("v_mov_b32 v8, s22"); a("v_mov_b32 v9, s23"); a("v_mov_b32 v10, 0")
    a("s_mov_b64 exec, 1")
    a(f"buffer_store_dwordx2 v[8:9], v10, s[40:43], 0 offen {cfg.st_n}")
    a("s_mov_b64 exec, -1")
    a("L_T1:")
    srd(a, 24, 4, 5, S*D*2); srd(a, 28, 6, 7, S*D*2); srd(a, 32, 8, 9, S*D*2)
    a("v_mul_u32_u24 v3, 205, v2"); a("v_lshrrev_b32 v3, 11, v3")
    a("v_mul_u32_u24 v4, 10, v3"); a("v_sub_u32 v4, v2, v4")
    a("v_mul_u32_u24 v3, 1280, v3"); a("v_lshl_add_u32 v3, v4, 4, v3")
    a("s_mul_i32 s21, s20, 81920"); a("s_mul_i32 s22, s19, 160"); a("s_add_u32 s21, s21, s22")
    a("v_add_u32 v3, s21, v3"); a("v_subrev_u32 v4, 3840, v3"); a("v_add_u32 v5, 1280, v3")
    a("s_mov_b32 exec_hi, 0xff")
    def dma_i(ireg):
        a(f"s_mul_i32 s22, {ireg}, 640"); a(f"s_lshr_b32 s23, {ireg}, 1"); a("s_lshl_b32 s23, s23, 4")
        a("s_add_u32 s22, s22, s23"); a(f"s_mul_i32 s14, {ireg}, 5120"); a("s_sub_u32 s23, s14, 5120")
    a("s_cmp_eq_u32 s3, 0"); a("s_cbranch_scc0 L_DMA")
    a(f"s_mov_b32 m0, {L_ST + ST_K}"); a("s_nop 0")
    a(f"buffer_load_dwordx4 v4, s[28:31], 0 offen {nt} lds")
    a("L_DMA:")
    a("s_mov_b32 s15, s3")
    a("L_DMA_LOOP:")
    dma_i("s15")
    a("s_cmp_eq_u32 s15, 0"); a("s_cbranch_scc1 L_DMA_VQ")
    a(f"s_add_u32 m0, s22, {L_ST + ST_K}"); a("s_nop 0")
    a(f"buffer_load_dwordx4 v5, s[28:31], s23 offen {nt} lds")
    a("s_cmp_eq_u32 s15, 16"); a("s_cbranch_scc1 L_DMA_DONE")
    a("L_DMA_VQ:")
    a(f"s_add_u32 m0, s22, {L_ST + ST_V}"); a("s_nop 0")
    a(f"buffer_load_dwordx4 v3, s[32:35], s14 offen {nt} lds")
    a(f"s_add_u32 m0, s22, {L_ST + ST_Q}"); a("s_nop 0")
    a(f"buffer_load_dwordx4 v3, s[24:27], s14 offen {nt} lds")
    a("s_add_u32 s15, s15, 5"); a("s_cmp_le_u32 s15, 16"); a("s_cbranch_scc1 L_DMA_LOOP")
    a("L_DMA_DONE:")
    a("s_mov_b64 exec, -1")
    srd(a, 36, 10, 11, D*8)
    srd(a, 40, 46, 47, D*2)
    a("v_lshrrev_b32 v11, 3, v0"); a("v_and_b32 v13, 7, v0")
    a("s_mul_i32 s23, s19, 640"); a("v_lshl_add_u32 v12, v11, 4, s23")
    a("buffer_load_dwordx4 v[16:19], v12, s[36:39], 0 offen")
    def dscalar(dst, base, ch):
        a(f"s_lshl_b32 s22, {ch}, 1"); a("s_andn2_b32 s22, s22, 3")
        a(f"s_load_dword s{dst}, s[{base}:{base+1}], s22")
    a("s_and_b32 s23, s3, 3"); a("s_lshl_b32 s23, s23, 1"); a("s_lshl_b32 s14, s20, 6"); a("s_add_u32 s23, s23, s14")
    a("s_lshl_b32 s14, s19, 3"); a("s_add_u32 s23, s23, s14")
    a("v_lshrrev_b32 v12, 5, v2"); a("v_add_u32 v12, s23, v12")
    a("v_and_b32 v14, 31, v2"); a("v_lshlrev_b32 v14, 4, v14")
    a("v_mul_u32_u24 v15, 1280, v12"); a("v_add_u32 v15, v15, v14")
    a("v_add_u32 v20, 1024, v15"); a("v_cmp_gt_u32 vcc, 256, v14"); a("v_mov_b32 v21, -1"); a("v_cndmask_b32 v20, v21, v20, vcc")
    a("v_mul_u32_u24 v21, 1296, v13"); a("v_lshl_add_u32 v21, v11, 2, v21"); a(f"v_add_u32 v21, {L_ST}, v21")
    a("s_mul_i32 s23, s19, 80"); a("v_lshl_add_u32 v22, v11, 1, s23")
    a(f"s_movk_i32 s14, {2*XROW}"); a("v_mul_lo_u32 v22, v22, s14")
    a("s_lshl_b32 s15, s20, 7"); a("s_sub_u32 s15, 4080, s15")
    a("v_lshlrev_b32 v23, 4, v13"); a("v_sub_u32 v23, s15, v23"); a("v_add_u32 v22, v22, v23")
    srd_off(a, 44, 64, 65, WS_X, 1280*XROW)
    def gate_loads():
        a("buffer_load_dwordx4 v[24:27], v15, s[24:27], 0 offen")
        a("buffer_load_dwordx4 v[28:31], v15, s[24:27], 0 offen offset:512")
        a("buffer_load_dwordx4 v[32:35], v20, s[24:27], 0 offen")
        a("buffer_load_dwordx4 v[36:39], v14, s[40:43], 0 offen")
        a("buffer_load_dwordx4 v[40:43], v14, s[40:43], 0 offen offset:512")
        a("buffer_load_dwordx4 v[44:47], v14, s[40:43], 0 offen offset:1024")
    nsent = 0
    if cfg.sentinel and cfg.sent_mode == "t":
        nsent = 2
        srd_off(a, 56, 64, 65, WS_OT, D*XROW)
        a("v_lshrrev_b32 v3, 3, v2"); a(f"v_mul_u32_u24 v3, {XROW}, v3"); a("v_and_b32 v4, 7, v2"); a("v_lshl_add_u32 v3, v4, 4, v3")
        a(f"s_mul_i32 s22, s19, {80*XROW}"); a("s_lshl_b32 s23, s20, 7"); a("s_add_u32 s22, s22, s23"); a("v_add_u32 v3, s22, v3")
        for i in range(4): a(f"v_mov_b32 v{8+i}, -1")
        a(f"s_mul_i32 s22, s3, {16*XROW}"); a(f"s_add_u32 s23, s22, {8*XROW}")
        if cfg.sent_early:
            a(f"buffer_store_dwordx4 v[8:11], v3, s[56:59], s22 offen {cfg.st_ot}")
            a(f"buffer_store_dwordx4 v[8:11], v3, s[56:59], s23 offen {cfg.st_ot}")
    a("s_cmp_eq_u32 s3, 4"); a("s_cbranch_scc1 L_W4")
    stamp(a, cfg, 1)
    a("s_waitcnt vmcnt(0)")
    if not cfg.gate_after: gate_loads()
    a("s_branch L_TS0")
    a("L_W4:")
    srd(a, 40, 12, 13, 256)
    a("v_mov_b32 v26, 0")
    a(f"buffer_load_dwordx2 v[24:25], v26, s[40:43], 0 offen {cfg.ld_n}")
    stamp(a, cfg, 1)
    a("s_waitcnt vmcnt(0)")
    a(f"s_mov_b32 s21, {cfg.spin_max}")
    a("L_NONCE_CHK:")
    a("v_readfirstlane_b32 s66, v24"); a("v_readfirstlane_b32 s67, v25")
    a("s_cmp_eq_u32 s66, 0"); a("s_cselect_b32 s14, 0, s67"); a("s_cmp_lg_u32 s14, 0")
    a("s_cbranch_scc1 L_NONCE_OK")
    a("s_sub_u32 s21, s21, 1"); a("s_cmp_eq_u32 s21, 0"); a("s_cbranch_scc1 L_NONCE_OK")
    a(f"buffer_load_dwordx2 v[24:25], v26, s[40:43], 0 offen {cfg.ld_n}")
    a("s_waitcnt vmcnt(0)")
    a("s_branch L_NONCE_CHK")
    a("L_NONCE_OK:")
    a(f"v_mov_b32 v4, {L_CNT}")
    a("s_mov_b64 exec, 1")
    a("ds_write_b64 v4, v[24:25] offset:8")
    a("s_mov_b64 exec, -1")
    a("L_TS0:")
    a(f"v_mov_b32 v4, {L_CNT}"); a("v_mov_b32 v5, 1")
    a("s_mov_b64 exec, 1")
    a("ds_add_u32 v4, v5")
    a("L_TSYNC:")
    a("ds_read_b32 v5, v4"); a("s_waitcnt lgkmcnt(0)")
    a("v_cmp_gt_u32 vcc, 5, v5"); a("s_cbranch_vccnz L_TSYNC")
    a("s_mov_b64 exec, -1")
    stamp(a, cfg, 2)
    if cfg.sentinel and not cfg.sent_early and cfg.sent_mode == "t":
        a(f"buffer_store_dwordx4 v[8:11], v3, s[56:59], s22 offen {cfg.st_ot}")
        a(f"buffer_store_dwordx4 v[8:11], v3, s[56:59], s23 offen {cfg.st_ot}")
    KR, VR, QR = 48, 60, 68
    for r in range(11): a(f"ds_read_b32 v{KR+r}, v21 offset:{ST_K + r*160 + (r >> 3)*16}")
    for r in range(8): a(f"ds_read_b32 v{VR+r}, v21 offset:{ST_V + r*160}")
    for r in range(8): a(f"ds_read_b32 v{QR+r}, v21 offset:{ST_Q + r*160}")
    W = 80
    a(f"v_lshlrev_b32 v{W+0}, 16, v16");  a(f"v_lshlrev_b32 v{W+1}, 16, v18")
    a(f"v_and_b32 v{W+2}, 0xffff0000, v16"); a(f"v_and_b32 v{W+3}, 0xffff0000, v18")
    a(f"v_lshlrev_b32 v{W+4}, 16, v17");  a(f"v_lshlrev_b32 v{W+5}, 16, v19")
    a(f"v_and_b32 v{W+6}, 0xffff0000, v17"); a(f"v_and_b32 v{W+7}, 0xffff0000, v19")
    K2, V2, KV = 88, 110, 128
    a("s_mov_b32 s14, 0x05040100"); a("s_mov_b32 s15, 0x07060302")
    a("s_waitcnt lgkmcnt(0)")
    O2 = 144
    for e in range(2):
        for i in range(4): a(f"v_perm_b32 v{O2+8*e+4+i}, v{QR+6-2*i}, v{QR+7-2*i}, s{14+e}")
    st = cfg.st_x
    a(f"s_movk_i32 s22, {XROW}"); a(f"s_movk_i32 s23, {3*XROW}")
    a(f"buffer_store_dwordx4 v[{O2+4}:{O2+7}], v22, s[44:47], s22 offen {st}")
    a(f"buffer_store_dwordx4 v[{O2+12}:{O2+15}], v22, s[44:47], s23 offen {st}")
    for r in range(11):
        a(f"v_lshlrev_b32 v{K2+2*r}, 16, v{KR+r}"); a(f"v_and_b32 v{K2+2*r+1}, 0xffff0000, v{KR+r}")
    for r in range(8):
        a(f"v_lshlrev_b32 v{V2+2*r}, 16, v{VR+r}"); a(f"v_and_b32 v{V2+2*r+1}, 0xffff0000, v{VR+r}")
    def pk(op, d, *srcs): a(f"{op} v[{d}:{d+1}], " + ", ".join(f"v[{s_}:{s_+1}]" for s_ in srcs))
    for r in range(8): pk("v_pk_mul_f32", KV+2*r, K2+2*(r+0), W+6)
    for r in range(8): pk("v_pk_fma_f32", KV+2*r, K2+2*(r+1), W+4, KV+2*r)
    for r in range(8): pk("v_pk_fma_f32", KV+2*r, K2+2*(r+2), W+2, KV+2*r)
    for r in range(8): pk("v_pk_fma_f32", KV+2*r, K2+2*(r+3), W+0, KV+2*r)
    for r in range(8): pk("v_pk_mul_f32", KV+2*r, KV+2*r, V2+2*r)
    for e in range(2):
        for i in range(4): a(f"v_cvt_pk_bf16_f32 v{O2+8*e+i}, v{KV+2*(7-2*i)+e}, v{KV+2*(6-2*i)+e}")
    a(f"s_movk_i32 s22, {2*XROW}")
    a(f"buffer_store_dwordx4 v[{O2}:{O2+3}], v22, s[44:47], 0 offen {st}")
    a(f"buffer_store_dwordx4 v[{O2+8}:{O2+11}], v22, s[44:47], s22 offen {st}")
    stamp(a, cfg, 3)
    ng = 6 if cfg.gate_after else 0
    if cfg.gate_after:
        a("s_cmp_eq_u32 s3, 4"); a("s_cbranch_scc1 L_NOGATE")
        gate_loads()
        a("L_NOGATE:")
    def ssm_loads():
        a("s_lshr_b32 s22, s3, 1"); a("s_add_u32 s14, s16, s22"); a("s_cmp_eq_u32 s3, 4"); a("s_cselect_b32 s14, s17, s14")
        a("s_lshl_b32 s23, s14, 12")
        srd_off(a, 56, 48, 49, "s23", 4096)
        a("v_lshlrev_b32 v3, 4, v2")
        a(f"s_mul_i32 s14, s3, {KARR}")
        for q in range(4):
            a(f"s_add_u32 m0, s14, {L_K + 480 + 1024*q}"); a(f"s_movk_i32 s23, {1024*q}")
            a(f"buffer_load_dwordx4 v3, s[56:59], s23 offen {nt} lds")
    if cfg.ssm_late:
        a(f"s_waitcnt vmcnt({ng})")
    else:
        a("s_and_b32 s14, s3, 1"); a("s_cmp_eq_u32 s14, 0"); a("s_cbranch_scc0 L_NOSSM")
        a("s_lshr_b32 s22, s3, 1"); a("s_add_u32 s14, s16, s22"); a("s_cmp_eq_u32 s3, 4"); a("s_cselect_b32 s14, s17, s14")
        a("s_lshl_b32 s23, s14, 12")
        srd_off(a, 56, 48, 49, "s23", 4096)
        a("v_lshlrev_b32 v3, 4, v2")
        a(f"s_mul_i32 s14, s3, {KARR}")
        for q in range(4):
            a(f"s_add_u32 m0, s14, {L_K + 480 + 1024*q}"); a(f"s_movk_i32 s23, {1024*q}")
            a(f"buffer_load_dwordx4 v3, s[56:59], s23 offen {nt} lds")
        a("s_cmp_eq_u32 s3, 4"); a("s_cbranch_scc1 L_XA4")
        a(f"s_waitcnt vmcnt({4 + ng})")
        a("s_branch L_XACK0")
        a("L_XA4:")
        a("s_waitcnt vmcnt(4)")
        a("s_branch L_XACK0")
        a("L_NOSSM:")
        a(f"s_waitcnt vmcnt({ng})")
    a("L_XACK0:")
    a("s_cmp_eq_u32 s3, 4"); a("s_cbranch_scc1 L_W4D")
    srd_off(a, 36, 64, 65, WS_G, 16384)
    stamp(a, cfg, 13)
    a(f"v_mov_b32 v4, {L_CNT}"); a("v_mov_b32 v5, 1")
    a("s_mov_b64 exec, 1")
    a("ds_add_u32 v4, v5 offset:4")
    a("s_mov_b64 exec, -1")
    if cfg.ssm_late:
        a("s_and_b32 s14, s3, 1"); a("s_cmp_eq_u32 s14, 0"); a("s_cbranch_scc0 L_NOSSM2")
        ssm_loads()
        a("L_NOSSM2:")
    if cfg.gate_after:
        a("s_and_b32 s14, s3, 1"); a("s_cmp_eq_u32 s14, 0"); a("s_cbranch_scc0 L_GW0")
        a("s_waitcnt vmcnt(4)"); a("s_branch L_GW1")
        a("L_GW0:"); a("s_waitcnt vmcnt(0)"); a("L_GW1:")
    a("v_mov_b32 v4, 0"); a("s_mov_b32 s14, 0x3f803f80")
    for c in range(3):
        for i in range(4):
            xq = 24 + 4*c + i; wq = 36 + 4*c + i; t = 48 + 4*((4*c+i) % 2)
            a(f"v_lshlrev_b32 v{t}, 16, v{xq}"); a(f"v_and_b32 v{t+1}, 0xffff0000, v{xq}")
            a(f"v_lshlrev_b32 v{t+2}, 16, v{wq}"); a(f"v_and_b32 v{t+3}, 0xffff0000, v{wq}")
            a(f"v_pk_mul_f32 v[{t}:{t+1}], v[{t}:{t+1}], v[{t+2}:{t+3}]")
            a(f"v_cvt_pk_bf16_f32 v{t}, v{t}, v{t+1}")
            a(f"v_dot2_f32_bf16 v4, v{t}, s14, v4")
    for sh in (1, 2, 4, 8):
        a(f"v_add_f32_dpp v4, v4, v4 row_shr:{sh} row_mask:0xf bank_mask:0xf bound_ctrl:0")
    a("v_add_f32_dpp v4, v4, v4 row_bcast:15 row_mask:0xa bank_mask:0xf")
    a("v_cvt_pk_bf16_f32 v4, v4, v4"); a("v_lshlrev_b32 v4, 16, v4")
    a("v_mul_f32 v5, 0xbfb8aa3b, v4"); a("v_exp_f32 v5, v5"); a("v_add_f32 v5, 1.0, v5"); a("v_rcp_f32 v5, v5")
    a("v_cvt_pk_bf16_f32 v5, v5, v5"); a("v_lshlrev_b32 v5, 16, v5")
    a("v_sub_f32 v6, 1.0, v5"); a("v_cvt_pk_bf16_f32 v6, v5, v6")
    a(f"v_mov_b32 v9, {L_CNT}"); a("ds_read_b32 v7, v9 offset:8")
    a("v_lshlrev_b32 v9, 3, v12"); a("v_and_b32 v8, 31, v2"); a("v_cmp_eq_u32 vcc, 31, v8")
    a("s_waitcnt lgkmcnt(0)")
    a("s_and_saveexec_b64 s[22:23], vcc")
    a(f"buffer_store_dwordx2 v[6:7], v9, s[36:39], 0 offen {cfg.st_g}")
    a("s_mov_b64 exec, -1")
    a("s_branch L_PRE_B2")
    a("L_W4D:")
    stamp(a, cfg, 13)
    a(f"v_mov_b32 v4, {L_CNT}")
    a("s_mov_b64 exec, 1")
    a("L_TSYNC2:")
    a("ds_read_b32 v5, v4 offset:4"); a("s_waitcnt lgkmcnt(0)")
    a("v_cmp_gt_u32 vcc, 4, v5"); a("s_cbranch_vccnz L_TSYNC2")
    a("s_mov_b64 exec, -1")
    stamp(a, cfg, 5)
    srd(a, 60, 64, 65, 0x1000000)
    mb_send(a, cfg, WS_MB1, 32, "grp")
    if cfg.ssm_late: ssm_loads()
    mb_poll(a, cfg, "A", WS_MB1, 32, 8)
    a("s_branch L_PRE_B2")
    a("L_K:")
    a("s_sub_u32 s22, s3, 5")
    a("s_add_u32 s14, s16, s22"); a("s_cmp_eq_u32 s22, 2"); a("s_cselect_b32 s14, s17, s14")
    P = 152
    a("s_mul_i32 s23, s14, 384"); a("v_lshl_add_u32 v6, v2, 1, s23")
    a("s_lshl_b32 s23, s14, 1"); a("v_mov_b32 v7, s23")
    srd(a, 56, 44, 45, D*2)
    a(f"buffer_load_ushort v{P+12}, v7, s[56:59], 0 offen")
    for i in range(4):
        srd(a, 24 + 4*i, 36 + 2*i, 37 + 2*i, D*192*2)
        for st_ in range(3):
            a(f"buffer_load_ushort v{P+4*st_+i}, v6, s[{24+4*i}:{27+4*i}], 0 offen offset:{128*st_}")
    a(f"s_mul_i32 s15, s22, {2*KARR}"); a(f"s_add_u32 s15, s15, {L_K}")
    a(f"s_mul_i32 s21, s22, {SLOT}")
    AV = 16
    a("v_lshlrev_b32 v7, 2, v2"); a("v_add_u32 v7, s21, v7")
    for c in range(16): a(f"v_xor_b32 v{AV+c}, {c << 4}, v7")
    RX, RY = 32, 40
    a("v_and_b32 v8, 31, v2"); a("v_lshrrev_b32 v9, 5, v2"); a("v_min_u32 v10, 20, v8")
    for (R, rowreg, rowoff) in ((RX, 10, 32), (RY, 8, 0)):
        a(f"v_and_b32 v11, 15, v{rowreg}"); a("v_xor_b32 v11, v11, v9"); a("v_lshlrev_b32 v11, 4, v11")
        a(f"v_lshl_add_u32 v11, v{rowreg}, 8, v11")
        if rowoff: a(f"v_add_u32 v11, {rowoff*256}, v11")
        a("v_add_u32 v11, s21, v11")
        for i in range(8): a(f"v_xor_b32 v{R+i}, {32*i}, v11")
    ACC = 48
    for i in range(4): a(f"v_mov_b32 v{8+i}, 0")
    a("v_lshlrev_b32 v3, 4, v2"); a("v_add_u32 v6, s15, v3")
    a("s_mov_b64 exec, 0x3fffffff")
    a("ds_write_b128 v6, v[8:11]"); a(f"ds_write_b128 v6, v[8:11] offset:{KARR}")
    a("s_mov_b64 exec, -1")
    for i in range(16): a(f"v_mov_b32 v{ACC+i}, 0")
    stamp(a, cfg, 1)
    a("s_waitcnt vmcnt(0)")
    stamp(a, cfg, 2)
    a(f"v_lshlrev_b32 v6, 16, v{P+12}"); a("v_mul_f32 v6, 0x3fb8aa3b, v6"); a("v_exp_f32 v6, v6")
    a("v_cvt_pk_bf16_f32 v6, v6, v6"); a("v_lshlrev_b32 v6, 16, v6"); a("v_add_f32 v7, v6, v6")
    E1, E2, E4, E8, E256, E128, Z, Z2, C = 64, 66, 68, 70, 72, 74, 76, 78, 80
    Q1, Q2, Q3 = 82, 84, 86
    OA, OB = 88, 120
    class Em:
        def __init__(s): s.t = a
    def capture(fn):
        L = Asm(); fn(L); return L.lines
    def cexp(b, dst, h):
        if h == 1:
            b("v_exp_f32 v8, v14"); b("v_fract_f32 v9, v15")
        else:
            b(f"v_mul_f32 v8, {hexf(h)}, v14"); b(f"v_mul_f32 v9, {hexf(h)}, v15")
            b("v_exp_f32 v8, v8"); b("v_fract_f32 v9, v9")
        b(f"v_cos_f32 v{dst}, v9"); b(f"v_sin_f32 v{dst+1}, v9")
        b(f"v_mul_f32 v{dst}, v8, v{dst}"); b(f"v_mul_f32 v{dst+1}, v8, v{dst+1}")
    def setup(b):
        b(f"v_lshlrev_b32 v8, 16, v{P}"); b("v_mul_f32 v8, 0x3fb8aa3b, v8"); b("v_exp_f32 v8, v8")
        b(f"v_lshlrev_b32 v15, 16, v{P+1}"); b("v_mul_f32 v15, v15, v6"); b("v_mul_f32 v15, 0.15915494, v15")
        b("v_cvt_pk_bf16_f32 v8, v8, v8"); b("v_lshlrev_b32 v8, 16, v8")
        b("v_mul_f32 v14, v8, v6"); b("v_mul_f32 v14, 0xbfb8aa3b, v14")
        b(f"v_lshlrev_b32 v{C}, 16, v{P+2}"); b(f"v_lshlrev_b32 v{C+1}, 16, v{P+3}")
        b(f"v_mul_f32 v{C}, v{C}, v7"); b(f"v_mul_f32 v{C+1}, v{C+1}, v7")
        cexp(b, E1, 1); cexp(b, E8, 8); cexp(b, E256, 256); cexp(b, E128, 128)
        cmul(b, E2, E1, E1); cmul(b, E4, E2, E2)
        cmul(b, Q1, C, E256); cmul(b, Q2, Q1, E256); cmul(b, Q3, Q2, E256)
        for i in range(8): b(f"v_mov_b32 v{P+i}, v{P+4+i}")
    pend = []; rot = [0]
    def flush(keep=0):
        while len(pend) > keep: a(pend.pop(0))
    def store_pair(rowA, za, rowB, zb, neg):
        n = "-" if neg else ""
        t = (8, 10, 12)[rot[0] % 3]; rot[0] += 1
        a(f"v_cvt_pk_bf16_f32 v{t}, v{za}, {n}v{za+1}")
        if rowB is None:
            w = f"ds_write_b32 v{AV + (rowA & 15)}, v{t} offset:{rowA*256}"
        else:
            assert (rowA & 15) == (rowB & 15)
            a(f"v_cvt_pk_bf16_f32 v{t+1}, v{zb}, {n}v{zb+1}")
            w = f"ds_write2st64_b32 v{AV + (rowA & 15)}, v{t}, v{t+1} offset0:{rowA} offset1:{rowB}"
        flush(1); pend.append(w)
    def chains():
        a(f"v_mov_b32 v{Z}, 1.0"); a(f"v_mov_b32 v{Z+1}, 0")
        store_pair(0, Z, 16, E128, False)
        cmul(a, Z2, E128, E8)
        store_pair(1, E8, 17, Z2, False)
        cmul(a, Z, E8, E8); cmul(a, Z2, Z2, E8, 4)
        store_pair(2, Z, 18, Z2, False)
        for lam in range(3, 16):
            cmul(a, Z, Z, E8); cmul(a, Z2, Z2, E8, 4)
            store_pair(lam, Z, lam + 16, Z2, False)
        cmul(a, Z, Q1, E2)
        store_pair(32+0, C, 32+16, Z, True)
        cmul(a, Z2, C, E1); cmul(a, Z, Z, E2, 4)
        store_pair(32+1, Z2, 32+17, Z, True)
        cmul(a, Z2, Z2, E1); cmul(a, Z, Z, E2, 4)
        store_pair(32+2, Z2, 32+18, Z, True)
        cmul(a, Z2, Z2, E1); cmul(a, Z, Q2, E4, 4)
        store_pair(32+3, Z2, 32+19, Z, True)
        cmul(a, Z2, Z2, E1); cmul(a, Z, Q3, E4, 4)
        store_pair(32+4, Z2, 32+20, Z, True)
        cmul(a, Z, Q3, E256, 4)
        store_pair(32+8, Q1, None, None, True)
        cmul(a, Z2, Z2, E1); store_pair(32+5, Z2, None, None, True)
        store_pair(32+11, Z, None, None, True)
        cmul(a, Z2, Z2, E1); cmul(a, Z, Z, E256, 4); store_pair(32+6, Z2, None, None, True)
        store_pair(32+12, Z, None, None, True)
        cmul(a, Z2, Z2, E1); cmul(a, Z, Z, E256, 4); store_pair(32+7, Z2, None, None, True)
        store_pair(32+13, Z, None, None, True)
        cmul(a, Z, Z, E256, 4); store_pair(32+9, Q2, None, None, True)
        store_pair(32+14, Z, None, None, True)
        cmul(a, Z, Z, E256, 4); store_pair(32+10, Q3, None, None, True)
        store_pair(32+15, Z, None, None, True)
        flush()
    setup(a)
    a("s_mov_b32 s23, 3")
    a("L_GEN:")
    chains()
    a("s_waitcnt lgkmcnt(0)")
    for i in range(8):
        a(f"ds_read_b128 v[{OA+4*i}:{OA+4*i+3}], v{RX+i}")
        a(f"ds_read_b128 v[{OB+4*i}:{OB+4*i+3}], v{RY+i}")
    su = capture(setup); per = -(-len(su) // 8); k = 0
    for i in range(8):
        for l in su[k:k+per]: a(l)
        k += per
        a(f"s_waitcnt lgkmcnt({14-2*i})")
        a(f"v_mfma_f32_32x32x16_bf16 v[{ACC}:{ACC+15}], v[{OA+4*i}:{OA+4*i+3}], v[{OB+4*i}:{OB+4*i+3}], v[{ACC}:{ACC+15}]")
    a("s_sub_u32 s23, s23, 1")
    if cfg.stamps:
        a("s_cmp_eq_u32 s23, 2"); a("s_cbranch_scc0 L_GS1"); stamp(a, cfg, 9); a("L_GS1:")
        a("s_cmp_eq_u32 s23, 1"); a("s_cbranch_scc0 L_GS2"); stamp(a, cfg, 11); a("L_GS2:")
    a("s_cmp_lg_u32 s23, 0")
    a("s_cbranch_scc1 L_GEN")
    stamp(a, cfg, 3)
    a("v_and_b32 v2, 63, v0")
    a("v_and_b32 v8, 31, v2"); a("v_lshrrev_b32 v9, 5, v2")
    a("v_lshlrev_b32 v10, 2, v8"); a("v_lshl_add_u32 v10, v9, 9, v10"); a("v_add_u32 v10, s21, v10")
    a(f"s_add_u32 s22, s15, {KARR + 480}")
    a("v_lshlrev_b32 v11, 4, v2"); a("v_add_u32 v11, s22, v11")
    a("s_mov_b32 s23, 0x0000ffff")
    a("v_lshlrev_b32 v13, 2, v8"); a("v_add_u32 v13, s21, v13")
    a("v_lshlrev_b32 v14, 2, v2"); a("v_add_u32 v14, s21, v14")
    for r in range(12):
        a(f"v_cvt_pk_bf16_f32 v{16+r}, v{ACC+r}, v{ACC+r}")
    for r in range(12):
        row = 8*(r >> 2) + (r & 3)
        a(f"ds_write_b32 v10, v{16+r} offset:{row*128}")
    a("s_waitcnt lgkmcnt(0)")
    T = 64
    for r in range(8): a(f"ds_read_b32 v{T+r}, v13 offset:{r*128}")
    a(f"ds_read_b32 v{T+8}, v13 offset:{8*128}"); a(f"ds_read_b32 v{T+9}, v13 offset:{16*128}")
    a(f"ds_read_b32 v{T+10}, v13 offset:{17*128}"); a(f"ds_read_b32 v{T+11}, v13 offset:{18*128}")
    a(f"ds_read_b32 v{T+12}, v13 offset:{8*128+4}"); a(f"ds_read_b32 v{T+13}, v14 offset:{9*128}")
    a(f"ds_read_b32 v{T+14}, v14 offset:{19*128}")
    a("s_waitcnt lgkmcnt(4)")
    a(f"ds_read_b32 v{T+15}, v14 offset:{9*128+4}"); a(f"ds_read_b32 v{T+16}, v14 offset:{11*128}")
    a(f"ds_read_b32 v{T+17}, v14 offset:{11*128+4}"); a(f"ds_read_b32 v{T+18}, v14 offset:{13*128}")
    a(f"ds_read_b32 v{T+19}, v14 offset:{13*128+4}")
    def mix(d, lo, hi): a(f"v_bfi_b32 v{d}, s23, v{lo}, v{hi}")
    O = 88
    a("v_cmp_gt_u32 vcc, 32, v2")
    a("v_and_b32 v15, 1, v2"); a("v_cmp_eq_u32 s[24:25], 1, v15")
    a("s_waitcnt lgkmcnt(0)")
    for i in range(4): mix(O+i, T+2*i, T+2*i+1)
    a(f"v_mov_b32 v{O+4}, v{T+8}"); mix(O+5, T+9, T+10); a(f"v_mov_b32 v{O+6}, v{T+10}"); mix(O+7, T+11, T+12)
    for i in range(4): a(f"v_cndmask_b32 v{O+i}, v{O+4+i}, v{O+i}, vcc")
    a(f"v_mov_b32 v{O+8}, v{T+13}"); mix(O+9, T+13, T+14); a(f"v_mov_b32 v{O+10}, v{T+14}"); a(f"v_mov_b32 v{O+11}, v{T+15}")
    for k in range(2):
        s0, s1 = T+16+2*k, T+17+2*k
        d = O + 12 + 4*k
        a(f"v_mov_b32 v{d}, v{s0}"); a(f"v_mov_b32 v{d+1}, v{s0}"); mix(d+2, s0, s1)
        a(f"v_cndmask_b32 v{d+2}, v{d+2}, v{s1}, s[24:25]"); a(f"v_mov_b32 v{d+3}, v{s1}")
    a(f"ds_write_b128 v11, v[{O}:{O+3}]")
    a(f"ds_write_b128 v11, v[{O+8}:{O+11}] offset:1024")
    a(f"ds_write_b128 v11, v[{O+12}:{O+15}] offset:2048")
    a(f"ds_write_b128 v11, v[{O+16}:{O+19}] offset:3072")
    def sentinel_stores():
        srd_off(a, 56, 64, 65, WS_OT, D*XROW)
        a("v_lshrrev_b32 v3, 3, v2"); a(f"v_mul_u32_u24 v3, {XROW}, v3"); a("v_and_b32 v4, 7, v2"); a("v_lshl_add_u32 v3, v4, 4, v3")
        a(f"s_mul_i32 s22, s19, {80*XROW}"); a("s_lshl_b32 s23, s20, 7"); a("s_add_u32 s22, s22, s23"); a("v_add_u32 v3, s22, v3")
        for i in range(4): a(f"v_mov_b32 v{8+i}, -1")
        for i in range(10):
            a(f"s_mov_b32 s22, {8*XROW*i}")
            a(f"buffer_store_dwordx4 v[8:11], v3, s[56:59], s22 offen {cfg.st_ot}")
    if cfg.sentinel and cfg.sent_mode == "w6":
        a("s_cmp_eq_u32 s3, 6"); a("s_cbranch_scc0 L_PRE_B2")
        srd_off(a, 56, 64, 65, WS_OT, D*XROW)
        a("v_lshrrev_b32 v3, 3, v2"); a(f"v_mul_u32_u24 v3, {XROW}, v3"); a("v_and_b32 v4, 7, v2"); a("v_lshl_add_u32 v3, v4, 4, v3")
        a(f"s_mul_i32 s22, s19, {80*XROW}"); a("s_lshl_b32 s23, s20, 7"); a("s_add_u32 s22, s22, s23"); a("v_add_u32 v3, s22, v3")
        for i in range(4): a(f"v_mov_b32 v{8+i}, -1")
        for i in range(10):
            a(f"s_mov_b32 s22, {8*XROW*i}")
            a(f"buffer_store_dwordx4 v[8:11], v3, s[56:59], s22 offen {cfg.st_ot}")
    a("s_branch L_PRE_B2")
    a("L_PRE_B2:")
    if cfg.prio: a("s_setprio 0")
    stamp(a, cfg, 4)
    for n_, (base, ch) in enumerate(((50, "s16"), (50, None), (50, "s17"), (52, "s16"), (52, None), (52, "s17"))):
        if ch is None: a("s_add_u32 s14, s16, 1"); ch = "s14"
        a(f"s_lshl_b32 s22, {ch}, 1"); a("s_and_b32 s22, s22, 0xfffffffc")
        a(f"s_load_dword s{8+n_}, s[{base}:{base+1}], s22")
    srd(a, 60, 64, 65, 0x1000000)
    a("v_and_b32 v2, 63, v0")
    a("s_lshr_b32 s21, s3, 1"); a("s_add_u32 s22, s16, s21"); a("s_cmp_ge_u32 s3, 4"); a("s_cselect_b32 s22, s17, s22")
    a("s_and_b32 s23, s3, 1")
    a("s_lshl_b32 s14, s22, 1"); a("s_add_u32 s14, s14, s23"); a(f"s_mul_i32 s14, s14, {XROW}")
    srd_off(a, 24, 64, 65, "s14", 4096)
    a(f"s_mul_i32 s34, s3, {XARR}"); a(f"s_mul_i32 s35, s3, {KARR}"); a(f"s_add_u32 s35, s35, {L_K}")
    a("v_lshlrev_b32 v3, 4, v2"); a("v_add_u32 v4, 4, v3")
    a("v_and_b32 v8, 15, v2"); a("v_lshrrev_b32 v9, 4, v2")
    a("v_sub_u32 v10, 3, v8"); a("v_and_b32 v10, 3, v10")
    a("v_lshlrev_b32 v11, 3, v9"); a("v_sub_u32 v11, v11, v8"); a("v_add_u32 v11, 2031, v11"); a("v_sub_u32 v11, v11, v10")
    a("v_lshlrev_b32 v11, 1, v11"); a(f"v_mul_u32_u24 v12, {XCP}, v10"); a("v_add_u32 v11, v11, v12"); a("v_subrev_u32 v11, 4032, v11")
    a("v_lshlrev_b32 v12, 5, v8"); a("v_lshl_add_u32 v12, v9, 4, v12")
    VA, VB, VA2, VB2, VY, VX = 13, 14, 15, 16, 17, 18
    a(f"v_add_u32 v{VA}, s34, v11"); a(f"v_add_u32 v{VB}, s35, v12")
    a("s_add_u32 s36, s23, 4"); a(f"s_mul_i32 s37, s36, {XARR}"); a(f"s_mul_i32 s38, s36, {KARR}"); a(f"s_add_u32 s38, s38, {L_K}")
    a("s_lshr_b32 s39, s3, 1"); a("s_sub_u32 s39, 1, s39"); a("s_lshl_b32 s39, s39, 8")
    a("s_add_u32 s40, s37, s39"); a("s_add_u32 s41, s38, s39")
    a(f"v_add_u32 v{VA2}, s40, v11"); a(f"v_add_u32 v{VB2}, s41, v12")
    a(f"v_lshlrev_b32 v{VY}, 5, v8"); a(f"v_lshl_add_u32 v{VY}, v9, 3, v{VY}")
    a(f"v_add_u32 v19, s35, v{VY}")
    a("v_lshrrev_b32 v5, 1, v2"); a(f"v_mul_u32_u24 v5, {XCP}, v5"); a("v_and_b32 v6, 1, v2")
    a("v_lshl_add_u32 v5, v6, 4, v5"); a("v_add_u32 v5, s34, v5")
    a(f"v_add_u32 v{VX}, s34, v3")
    for i in range(4): a(f"v_mov_b32 v{8+i}, 0")
    stamp(a, cfg, 6)
    a("s_and_b32 s14, s3, 5"); a("s_cmp_eq_u32 s14, 4"); a("s_cbranch_scc1 L_B3W")
    a("s_waitcnt vmcnt(0)")
    a("L_B3W:")
    a("s_waitcnt lgkmcnt(0)")
    a("s_barrier")
    stamp(a, cfg, 7)
    ld = cfg.ld_x
    W = 64
    def x_even(sx, sbase):
        for cp, vreg in ((0, 3), (2, 4)):
            for q in range(4):
                a(f"s_add_u32 m0, {sbase}, {cp*XCP + 1024*q}"); a(f"s_movk_i32 s36, {1024*q}")
                a(f"buffer_load_dwordx4 v{vreg}, s[{sx}:{sx+3}], s36 offen {ld} lds")
    def x_odd(ndma):
        for q in range(4):
            a(f"buffer_load_dwordx4 v[{W+8*q}:{W+8*q+3}], v3, s[24:27], 0 offen offset:{1024*q} {ld}")
            a(f"buffer_load_dwordx4 v[{W+8*q+4}:{W+8*q+7}], v3, s[24:27], 0 offen offset:{1024*q+16} {ld}")
        if ndma: x_even(24, "s34")
        a("s_mov_b64 exec, 0xff")
        a("ds_write_b128 v5, v[8:11] offset:4096")
        a("s_mov_b64 exec, -1")
        for q in range(4):
            w = W + 8*q
            a(f"s_waitcnt vmcnt({ndma + 6 - 2*q})")
            if q == 0: stamp(a, cfg, 8)
            for j in range(4): a(f"v_alignbit_b32 v{96+j}, v{w+j+1}, v{w+j}, 16")
            for j in range(4): a(f"v_alignbit_b32 v{100+j}, v{w+j+2}, v{w+j+1}, 16")
            a(f"ds_write_b128 v{VX}, v[96:99] offset:{1*XCP + 1024*q}")
            a(f"ds_write_b128 v{VX}, v[100:103] offset:{3*XCP + 1024*q}")
        a("s_waitcnt vmcnt(0) lgkmcnt(0)")
    def xload(): x_odd(8)
    def dscal_fix():
        a("s_waitcnt lgkmcnt(0)")
        for n_, ch in enumerate(("s16", None, "s17", "s16", None, "s17")):
            if ch is None: a("s_add_u32 s14, s16, 1"); ch = "s14"
            a(f"s_and_b32 s22, {ch}, 1"); a("s_lshl_b32 s22, s22, 4")
            a(f"s_lshr_b32 s{8+n_}, s{8+n_}, s22"); a(f"s_lshl_b32 s{8+n_}, s{8+n_}, 16")
    a("s_cmp_ge_u32 s3, 4"); a("s_cbranch_scc1 L_HELP")
    x_odd(0 if cfg.x1 else 8)
    if cfg.c2merge:
        dscal_fix()
        srd_off(a, 28, 64, 65, WS_OT, D*XROW)
        SCR = L_G + 16384
        a(f"s_lshl_b32 s36, s3, 12"); a(f"s_add_u32 s36, s36, {SCR}"); a("v_add_u32 v196, s36, v3")
        a(f"s_lshl_b32 s36, s3, 10"); a(f"s_add_u32 s36, s36, {SCR}"); a("v_add_u32 v197, s36, v3")
        a("s_and_b32 s36, s3, 1"); a("s_xor_b32 s36, s36, s18"); a("s_lshl_b32 s37, s3, 1"); a("s_add_u32 s36, s36, s37"); a("s_lshl_b32 s36, s36, 9")
        a(f"v_add_u32 v12, s36, v{VY}")
        a(f"v_sub_u32 v198, {4*XARR + 4088}, v12")
        a("v_lshlrev_b32 v199, 1, v12"); a(f"v_add_u32 v199, {L_G}, v199")
        a(f"s_mul_i32 s47, s17, {XROW}"); a("v_add_u32 v12, s47, v12")
    stamp(a, cfg, 9)
    a("s_barrier")
    sets = [(20, 52), (84, 116)]
    ACC0, ACC2 = 148, 180
    pairs = [(aa, cc) for aa in range(8) for cc in range(8 - aa)]
    offA = lambda i, b, h: 512*(7-i) + 64*(7-b) + 8*h
    offB = lambda c, b: 512*c + 64*(7-b)
    offA2 = lambda i, b, h: 512*(7-i) + 64*(3-b) + 8*h
    offB2 = lambda c, b: 512*c + 64*(3-b)
    for l in op_loads(pairs, 0, *sets[0], VA, VB, offA, offB): a(l)
    a(f"v_mov_b32 v6, {L_CNT - 4}")
    for b in range(7):
        fill = op_loads(pairs, b+1, *sets[(b+1) & 1], VA, VB, offA, offB)
        if b == 6:
            a("L_C1:")
            a("ds_read_b32 v7, v6"); a("s_waitcnt lgkmcnt(0)")
            a("v_cmp_gt_u32 vcc, 2, v7"); a("s_cbranch_vccnz L_C1")
        mfma_iter(a, pairs, lambda aa, cc: ACC0 + 4*(aa+cc), *sets[b & 1], fill, b == 0, cfg.frac)
    a("s_cmp_eq_u32 s18, 0"); a("s_cbranch_scc0 L_C2_E1")
    ywr = []
    for p in range(8):
        tt = (4, 6)[p & 1]
        ywr += [f"v_cvt_pk_bf16_f32 v{tt}, v{ACC0+4*p}, v{ACC0+4*p+1}", f"v_cvt_pk_bf16_f32 v{tt+1}, v{ACC0+4*p+2}, v{ACC0+4*p+3}",
                f"ds_write_b64 v19, v[{tt}:{tt+1}] offset:{512*p}"]
    for e in range(2):
        if e == 1: a("L_C2_E1:")
        ps = PSET[e]
        prs = [(aa, cc) for aa in range(8) for cc in range(8 - aa) if aa + cc in ps]
        a("s_waitcnt lgkmcnt(0)")
        pre = op_loads(prs, 0, *sets[0], VA2, VB2, offA2, offB2)
        last = {aa + cc: idx for idx, (aa, cc) in enumerate(pairs)}
        ins = {i: [] for i in range(len(pairs))}
        for n_, l in enumerate(pre): ins[min(len(pairs)-1, n_ + 1)].append(l)
        for p_ in range(5):
            c0_, c1_, w_ = ywr[3*p_:3*p_+3]
            ins[min(35, last[p_] + 5)] += [c0_, c1_]; ins[min(35, last[p_] + 7)].append(w_)
        A0, B0 = sets[1]
        for idx, (aa, cc) in enumerate(pairs):
            d = ACC0 + 4*(aa+cc)
            a(f"v_mfma_f32_16x16x32_bf16 v[{d}:{d+3}], v[{A0+4*aa}:{A0+4*aa+3}], v[{B0+4*cc}:{B0+4*cc+3}], v[{d}:{d+3}]")
            for l in ins[idx]: a(l)
        stamp(a, cfg, 10)
        for b in range(4):
            fill = op_loads(prs, b+1, *sets[(b+1) & 1], VA2, VB2, offA2, offB2) if b < 3 else []
            if b == 3 and cfg.c2merge:
                fill = ["ds_read_b64 v[24:25], v198", f"ds_read_b64 v[26:27], v198 offset:{XARR}", "ds_read_b128 v[28:31], v199", "ds_read_b128 v[32:35], v199 offset:8192"]
            if b == 0: fill = fill[:6] + ywr[15:17] + fill[6:9] + ywr[17:20] + fill[9:12] + ywr[20:23] + fill[12:15] + ywr[23:24] + fill[15:]
            if b == 1:
                a("s_waitcnt lgkmcnt(0)"); a("s_barrier")
            mfma_iter(a, prs, lambda aa, cc: ACC2 + 4*ps.index(aa+cc), *sets[b & 1], fill, b == 0, 0.95)
        if e == 0: a("s_branch L_C2_DONE")
    a("L_C2_DONE:")
    stamp(a, cfg, 11)
    def lds_sync(tag, vaddr, off, target):
        a("s_waitcnt lgkmcnt(0)")
        a("s_mov_b64 exec, 1")
        a(f"ds_add_u32 v{vaddr}, v9 offset:{off}")
        a(f"L_SY_{tag}:")
        a(f"ds_read_b32 v10, v{vaddr} offset:{off}"); a("s_waitcnt lgkmcnt(0)")
        a(f"v_cmp_gt_u32 vcc, {target}, v10"); a(f"s_cbranch_vccnz L_SY_{tag}")
        a("s_mov_b64 exec, -1")
    if cfg.c2merge:
        a("s_nop 2")
        for ti in range(4): a(f"ds_write_b128 v196, v[{ACC2+4*ti}:{ACC2+4*ti+3}] offset:{1024*ti}")
        a(f"v_mov_b32 v8, {L_CNT - 16}"); a("v_mov_b32 v9, 1"); a("v_mov_b32 v4, v197"); a("v_mov_b32 v7, v12")
        a("s_waitcnt lgkmcnt(4)")
        for (src, dst) in ((24, 52), (26, 56)):
            a(f"v_and_b32 v{dst}, 0xffff0000, v{src+1}"); a(f"v_lshlrev_b32 v{dst+1}, 16, v{src+1}")
            a(f"v_and_b32 v{dst+2}, 0xffff0000, v{src}"); a(f"v_lshlrev_b32 v{dst+3}, 16, v{src}")
        lds_sync("R", 8, 8, 4)
        stamp(a, cfg, 12)
        for w_ in range(4): a(f"ds_read_b128 v[{36+4*w_}:{39+4*w_}], v4 offset:{4096*w_}")
        a("s_waitcnt lgkmcnt(0)")
        for r in range(4):
            a(f"v_add_f32 v{36+r}, v{36+r}, v{44+r}"); a(f"v_add_f32 v{40+r}, v{40+r}, v{48+r}")
        for r in range(4):
            a(f"v_fmac_f32 v{36+r}, s10, v{52+r}"); a(f"v_fmac_f32 v{40+r}, s13, v{56+r}")
        for r in range(4):
            a(f"v_mul_f32 v{36+r}, v{36+r}, v{56+r}"); a(f"v_mul_f32 v{36+r}, v{36+r}, v{28+r}")
            a(f"v_fmac_f32 v{36+r}, v{40+r}, v{32+r}")
        a("v_cvt_pk_bf16_f32 v68, v36, v37"); a("v_cvt_pk_bf16_f32 v69, v38, v39")
        if cfg.sentinel:
            for i in range(2): a(f"v_min_u32 v{68+i}, 0xfffffffe, v{68+i}")
        a(f"buffer_store_dwordx2 v[68:69], v7, s[28:31], 0 offen {cfg.st_ot}")
        a("s_branch L_FINAL")
    else:
        a("s_and_b32 s36, s3, 1"); a("s_lshl_b32 s39, s36, 2"); a("s_add_u32 s36, s36, 2"); a(f"s_mul_i32 s36, s36, {XARR}"); a(f"s_add_u32 s36, s36, {XCP}")
        a("v_add_u32 v4, s36, v3")
        a("s_lshl_b32 s37, s18, 9")
        a(f"v_add_u32 v5, s38, v{VY}")
        a("v_add_u32 v6, s37, v5"); a("v_subrev_u32 v7, s37, v5")
        a(f"s_add_u32 s39, s39, {L_CNT - 16}"); a("v_mov_b32 v8, s39"); a("v_mov_b32 v9, 1")
        a("s_cmp_lt_u32 s3, 2"); a("s_cbranch_scc0 L_RED_HI")
        for (lbl, keep, give) in (("lo", (0, 1), (2, 3)), ("hi", (2, 3), (0, 1))):
            if lbl == "hi": a("L_RED_HI:")
            a("s_nop 4")
            for ti in give: a(f"ds_write_b128 v4, v[{ACC2+4*ti}:{ACC2+4*ti+3}] offset:{1024*ti}")
            lds_sync("R" + lbl, 8, 0, 2)
            for n_, ti in enumerate(keep): a(f"ds_read_b128 v[{20+4*n_}:{23+4*n_}], v4 offset:{1024*ti}")
            a("s_waitcnt lgkmcnt(0)")
            for n_, ti in enumerate(keep):
                for r in range(0, 4, 2):
                    a(f"v_pk_add_f32 v[{20+4*n_+r}:{21+4*n_+r}], v[{20+4*n_+r}:{21+4*n_+r}], v[{ACC2+4*ti+r}:{ACC2+4*ti+r+1}]")
                a(f"v_cvt_pk_bf16_f32 v{28+2*n_}, v{20+4*n_}, v{21+4*n_}"); a(f"v_cvt_pk_bf16_f32 v{29+2*n_}, v{22+4*n_}, v{23+4*n_}")
            for n_, ti in enumerate(keep):
                if ti & 1: a(f"ds_write_b64 v7, v[{28+2*n_}:{29+2*n_}] offset:{1024*ti + 512}")
                else: a(f"ds_write_b64 v6, v[{28+2*n_}:{29+2*n_}] offset:{1024*ti}")
            if lbl == "lo": a("s_branch L_RED_DONE")
        a("L_RED_DONE:")
        a(f"v_mov_b32 v8, {L_CNT - 16}")
        lds_sync("Y2", 8, 8, 4)
        stamp(a, cfg, 12)
        dscal_fix()
        srd_off(a, 28, 64, 65, WS_OT, D*XROW)
        a("v_lshrrev_b32 v1, 6, v0"); a("v_and_b32 v2, 1, v1"); a("v_xor_b32 v2, s18, v2"); a("v_lshl_add_u32 v1, v1, 1, v2")
        a("v_lshlrev_b32 v1, 8, v1"); a("v_and_b32 v2, 63, v0"); a("v_lshl_add_u32 v1, v2, 2, v1")
        a("v_lshlrev_b32 v7, 1, v1")
        a(f"v_add_u32 v8, {L_K + 4*KARR}, v7"); a(f"v_sub_u32 v9, {4*XARR + 4088}, v7")
        a("v_lshlrev_b32 v10, 2, v1"); a(f"v_add_u32 v10, {L_G}, v10")
        a("ds_read_b64 v[20:21], v8"); a(f"ds_read_b64 v[22:23], v8 offset:{KARR}")
        a("ds_read_b64 v[24:25], v9"); a(f"ds_read_b64 v[26:27], v9 offset:{XARR}")
        a("ds_read_b128 v[28:31], v10"); a("ds_read_b128 v[32:35], v10 offset:8192")
        a(f"s_mul_i32 s47, s17, {XROW}"); a("v_add_u32 v7, s47, v7")
        a("v_mov_b32 v12, s10"); a("v_mov_b32 v13, s10"); a("v_mov_b32 v14, s13"); a("v_mov_b32 v15, s13")
        a("s_waitcnt lgkmcnt(0)")
        for i in range(2):
            t = 52 + 8*i
            a(f"v_lshlrev_b32 v{t}, 16, v{20+i}"); a(f"v_and_b32 v{t+1}, 0xffff0000, v{20+i}")
            a(f"v_lshlrev_b32 v{t+2}, 16, v{22+i}"); a(f"v_and_b32 v{t+3}, 0xffff0000, v{22+i}")
            a(f"v_and_b32 v{t+4}, 0xffff0000, v{24+1-i}"); a(f"v_lshlrev_b32 v{t+5}, 16, v{24+1-i}")
            a(f"v_and_b32 v{t+6}, 0xffff0000, v{26+1-i}"); a(f"v_lshlrev_b32 v{t+7}, 16, v{26+1-i}")
        for i in range(2):
            t = 52 + 8*i
            a(f"v_pk_fma_f32 v[{t}:{t+1}], v[{t+4}:{t+5}], v[12:13], v[{t}:{t+1}]")
            a(f"v_pk_fma_f32 v[{t+2}:{t+3}], v[{t+6}:{t+7}], v[14:15], v[{t+2}:{t+3}]")
        for i in range(2):
            t = 52 + 8*i
            a(f"v_pk_mul_f32 v[{t}:{t+1}], v[{t}:{t+1}], v[{t+6}:{t+7}]")
            a(f"v_pk_mul_f32 v[{t}:{t+1}], v[{t}:{t+1}], v[{28+2*i}:{29+2*i}]")
            a(f"v_pk_fma_f32 v[{t}:{t+1}], v[{t+2}:{t+3}], v[{32+2*i}:{33+2*i}], v[{t}:{t+1}]")
            a(f"v_cvt_pk_bf16_f32 v{68+i}, v{t}, v{t+1}")
        if cfg.sentinel:
            for i in range(2): a(f"v_min_u32 v{68+i}, 0xfffffffe, v{68+i}")
        a(f"buffer_store_dwordx2 v[68:69], v7, s[28:31], 0 offen {cfg.st_ot}")
        a("s_branch L_FINAL")
    def epi_oct(tagc):
        a("s_lshl_b32 s43, s42, 1")
        a(f"s_mul_i32 s45, s43, {XARR}"); a(f"s_mul_i32 s46, s43, {KARR}"); a(f"s_add_u32 s46, s46, {L_K}")
        a("v_lshlrev_b32 v7, 1, v1"); a("v_add_u32 v8, s46, v7")
        a("v_sub_u32 v9, 4080, v7"); a("v_add_u32 v9, s45, v9")
        a("v_lshlrev_b32 v10, 2, v1"); a(f"v_add_u32 v10, {L_G}, v10")
        a("ds_read_b128 v[20:23], v8"); a(f"ds_read_b128 v[24:27], v8 offset:{KARR}")
        a("ds_read_b128 v[28:31], v9"); a(f"ds_read_b128 v[32:35], v9 offset:{XARR}")
        a("ds_read_b128 v[36:39], v10"); a("ds_read_b128 v[40:43], v10 offset:16")
        a("ds_read_b128 v[44:47], v10 offset:8192"); a("ds_read_b128 v[48:51], v10 offset:8208")
        a("s_add_u32 s47, s16, s42"); a(f"s_mul_i32 s47, s47, {XROW}"); a("v_add_u32 v7, s47, v7")
        a("s_cmp_eq_u32 s42, 0"); a("s_cselect_b32 s44, s8, s9"); a("s_cselect_b32 s45, s11, s12")
        a("v_mov_b32 v12, s44"); a("v_mov_b32 v13, s44"); a("v_mov_b32 v14, s45"); a("v_mov_b32 v15, s45")
        a("s_waitcnt lgkmcnt(0)")
        for i in range(4):
            t = 52 + 8*(i & 1)
            a(f"v_lshlrev_b32 v{t}, 16, v{20+i}"); a(f"v_and_b32 v{t+1}, 0xffff0000, v{20+i}")
            a(f"v_lshlrev_b32 v{t+2}, 16, v{24+i}"); a(f"v_and_b32 v{t+3}, 0xffff0000, v{24+i}")
            a(f"v_and_b32 v{t+4}, 0xffff0000, v{28+3-i}"); a(f"v_lshlrev_b32 v{t+5}, 16, v{28+3-i}")
            a(f"v_and_b32 v{t+6}, 0xffff0000, v{32+3-i}"); a(f"v_lshlrev_b32 v{t+7}, 16, v{32+3-i}")
            if cfg.epi_scalar:
                for h in range(2):
                    a(f"v_fmac_f32 v{t+h}, s44, v{t+4+h}"); a(f"v_fmac_f32 v{t+2+h}, s45, v{t+6+h}")
                for h in range(2):
                    a(f"v_mul_f32 v{t+h}, v{t+h}, v{t+6+h}"); a(f"v_mul_f32 v{t+h}, v{t+h}, v{36+2*i+h}")
                    a(f"v_fmac_f32 v{t+h}, v{t+2+h}, v{44+2*i+h}")
            else:
                a(f"v_pk_fma_f32 v[{t}:{t+1}], v[{t+4}:{t+5}], v[12:13], v[{t}:{t+1}]")
                a(f"v_pk_fma_f32 v[{t+2}:{t+3}], v[{t+6}:{t+7}], v[14:15], v[{t+2}:{t+3}]")
                a(f"v_pk_mul_f32 v[{t}:{t+1}], v[{t}:{t+1}], v[{t+6}:{t+7}]")
                a(f"v_pk_mul_f32 v[{t}:{t+1}], v[{t}:{t+1}], v[{36+2*i}:{37+2*i}]")
                a(f"v_pk_fma_f32 v[{t}:{t+1}], v[{t+2}:{t+3}], v[{44+2*i}:{45+2*i}], v[{t}:{t+1}]")
            a(f"v_cvt_pk_bf16_f32 v{68+i}, v{t}, v{t+1}")
        if cfg.sentinel:
            for i in range(4): a(f"v_min_u32 v{68+i}, 0xfffffffe, v{68+i}")
        a(f"buffer_store_dwordx4 v[68:71], v7, s[28:31], 0 offen {cfg.st_ot}")
    a("L_HELP:")
    if cfg.x1:
        a("s_sub_u32 s14, s3, 4"); a("s_lshr_b32 s22, s14, 1"); a("s_add_u32 s22, s16, s22"); a("s_lshl_b32 s22, s22, 1")
        a("s_and_b32 s23, s14, 1"); a("s_add_u32 s22, s22, s23"); a(f"s_mul_i32 s22, s22, {XROW}")
        srd_off(a, 28, 64, 65, "s22", 4096)
        a(f"s_mul_i32 s33, s14, {XARR}")
        x_even(28, "s33")
        a("s_waitcnt vmcnt(0)")
    a("s_barrier")
    a("s_cmp_ge_u32 s3, 6"); a("s_cbranch_scc1 L_H67")
    xload()
    a(f"v_mov_b32 v4, {L_CNT - 4}"); a("v_mov_b32 v5, 1")
    a("s_mov_b64 exec, 1"); a("ds_add_u32 v4, v5"); a("s_mov_b64 exec, -1")
    a("s_branch L_HELP2")
    a("L_H67:")
    if cfg.sentinel and cfg.sent_mode in ("w6", "w6b"):
        a("s_cmp_eq_u32 s3, 6"); a("s_cbranch_scc0 L_H7")
        if cfg.sent_mode == "w6b": sentinel_stores()
        a(f"v_mov_b32 v4, {L_CNT}"); a("ds_read_b64 v[6:7], v4 offset:8")
        a("s_waitcnt vmcnt(0) lgkmcnt(0)")
        a("v_readfirstlane_b32 s66, v6"); a("v_readfirstlane_b32 s67, v7")
        mb_send(a, cfg, WS_MB3, 32, "grp")
        mb_poll(a, cfg, "S", WS_MB3, 32, 8)
        a("s_branch L_HELP2")
        a("L_H7:")
    onew = cfg.sentinel and cfg.sent_mode in ("w6", "w6b")
    nq = 16 if onew else 8
    a(f"v_mov_b32 v4, {L_CNT}"); a("ds_read_b32 v5, v4 offset:8")
    srd_off(a, 24, 64, 65, WS_G, 16384)
    if onew: a("s_mov_b32 s36, 0")
    else: a("s_sub_u32 s36, s3, 6"); a("s_lshl_b32 s36, s36, 13")
    a("v_lshlrev_b32 v3, 4, v2"); a("v_add_u32 v6, s36, v3")
    for k_ in range(1, nq // 4): a(f"v_add_u32 v{9+k_}, {4096*k_}, v6")
    a(f"s_mov_b32 s21, {cfg.spin_max}")
    a("L_G_POLL:")
    for q in range(nq):
        a(f"buffer_load_dwordx4 v[{20+4*q}:{23+4*q}], v{6 if q < 4 else 9 + (q >> 2)}, s[24:27], 0 offen offset:{1024*(q & 3)} {cfg.ld_g}")
    a("s_waitcnt vmcnt(0) lgkmcnt(0)")
    a("v_xor_b32 v7, v21, v5")
    for q in range(nq):
        for h in (1, 3):
            if q == 0 and h == 1: continue
            a(f"v_xor_b32 v8, v{20+4*q+h}, v5"); a("v_or_b32 v7, v7, v8")
    a("v_cmp_ne_u32 vcc, 0, v7")
    a("s_cbranch_vccz L_G_OK")
    a("s_sub_u32 s21, s21, 1"); a("s_cmp_eq_u32 s21, 0"); a("s_cbranch_scc0 L_G_POLL")
    a("L_G_OK:")
    a("s_lshr_b32 s36, s36, 1")
    a("v_lshlrev_b32 v9, 3, v2"); a("v_add_u32 v9, s36, v9"); a(f"v_add_u32 v9, {L_G}, v9")
    for q in range(nq):
        r = 20 + 4*q
        a(f"v_lshlrev_b32 v{r+1}, 16, v{r+2}"); a(f"v_and_b32 v{r+3}, 0xffff0000, v{r+2}")
        a(f"v_and_b32 v{r+2}, 0xffff0000, v{r}"); a(f"v_lshlrev_b32 v{r}, 16, v{r}")
    for q in range(nq):
        r = 20 + 4*q
        a(f"ds_write_b64 v9, v[{r}:{r+1}] offset:{512*q}")
        a(f"ds_write_b64 v9, v[{r+2}:{r+3}] offset:{8192 + 512*q}")
    if cfg.epi2:
        a("L_GDONE:")
        a(f"v_mov_b32 v8, {L_CNT - 16}"); a("v_mov_b32 v9, 1")
        a("s_waitcnt lgkmcnt(0)"); a("s_mov_b64 exec, 1"); a("ds_add_u32 v8, v9"); a("s_mov_b64 exec, -1")
        a("L_HELP2:")
        dscal_fix()
        srd_off(a, 28, 64, 65, WS_OT, D*XROW)
        a("v_and_b32 v1, 255, v0"); a("v_lshlrev_b32 v1, 4, v1")
        a(f"v_add_u32 v8, {L_K}, v1")
        a("v_sub_u32 v9, 4080, v1")
        a("v_lshlrev_b32 v10, 1, v1"); a(f"v_add_u32 v10, {L_G}, v10")
        for c in range(4): a(f"ds_read_b128 v[{20+4*c}:{23+4*c}], v9 offset:{XARR*c}")
        ngw = 1 if (cfg.sentinel and cfg.sent_mode in ("w6", "w6b")) else 2
        a(f"v_mov_b32 v11, {L_CNT - 16}")
        a("L_GWAIT:")
        a("ds_read_b32 v12, v11"); a("s_waitcnt lgkmcnt(0)")
        a(f"v_cmp_gt_u32 vcc, {ngw}, v12"); a("s_cbranch_vccnz L_GWAIT")
        a("ds_read_b128 v[36:39], v10"); a("ds_read_b128 v[40:43], v10 offset:16")
        a("ds_read_b128 v[44:47], v10 offset:8192"); a("ds_read_b128 v[48:51], v10 offset:8208")
        a("s_add_u32 s14, s16, 1"); a(f"s_mul_i32 s47, s16, {XROW}"); a(f"s_mul_i32 s46, s14, {XROW}")
        a("v_add_u32 v6, s47, v1"); a("v_add_u32 v7, s46, v1")
        AL, GA = (132, 148), (140, 156)
        for c in range(2):
            kvr, ur = 20 + 8*c, 24 + 8*c
            for j in range(8):
                src = 3 - (j >> 1)
                if j & 1:
                    a(f"v_lshlrev_b32 v{52+j}, 16, v{kvr+src}"); a(f"v_lshlrev_b32 v{60+j}, 16, v{ur+src}")
                else:
                    a(f"v_and_b32 v{52+j}, 0xffff0000, v{kvr+src}"); a(f"v_and_b32 v{60+j}, 0xffff0000, v{ur+src}")
            if c == 0: a("s_waitcnt lgkmcnt(0)")
            sDA, sDS = ("s8", "s11") if c == 0 else ("s9", "s12")
            for j in range(8):
                a(f"v_mul_f32 v{AL[c]+j}, v{36+j}, v{60+j}")
                a(f"v_mul_f32 v{52+j}, {sDA}, v{52+j}")
                a(f"v_mul_f32 v{60+j}, {sDS}, v{60+j}")
                a(f"v_mul_f32 v{GA[c]+j}, v{44+j}, v{60+j}")
                a(f"v_fmac_f32 v{GA[c]+j}, v{AL[c]+j}, v{52+j}")
        if cfg.eprio: a(f"s_setprio {cfg.eprio}")
        a("s_barrier")
        for c in range(2):
            a(f"ds_read_b128 v[{20+8*c}:{23+8*c}], v8 offset:{2*c*KARR}"); a(f"ds_read_b128 v[{24+8*c}:{27+8*c}], v8 offset:{(2*c+1)*KARR}")
        for c in range(2):
            a(f"s_waitcnt lgkmcnt({2 - 2*c})")
            ya, yb = 20 + 8*c, 24 + 8*c
            for j in range(8):
                src = j >> 1
                if j & 1:
                    a(f"v_and_b32 v{52+j}, 0xffff0000, v{ya+src}"); a(f"v_and_b32 v{60+j}, 0xffff0000, v{yb+src}")
                else:
                    a(f"v_lshlrev_b32 v{52+j}, 16, v{ya+src}"); a(f"v_lshlrev_b32 v{60+j}, 16, v{yb+src}")
            for j in range(8):
                a(f"v_fmac_f32 v{GA[c]+j}, v{AL[c]+j}, v{52+j}"); a(f"v_fmac_f32 v{GA[c]+j}, v{44+j}, v{60+j}")
            for i in range(4): a(f"v_cvt_pk_bf16_f32 v{68+4*c+i}, v{GA[c]+2*i}, v{GA[c]+2*i+1}")
            if cfg.sentinel:
                for i in range(4): a(f"v_min_u32 v{68+4*c+i}, 0xfffffffe, v{68+4*c+i}")
            a(f"buffer_store_dwordx4 v[{68+4*c}:{71+4*c}], v{6+c}, s[28:31], 0 offen {cfg.st_ot}")
        if cfg.eprio: a("s_setprio 0")
        stamp(a, cfg, 10)
    else:
        a("L_HELP2:")
        dscal_fix()
        srd_off(a, 28, 64, 65, WS_OT, D*XROW)
        a("s_barrier")
        a("v_and_b32 v1, 255, v0"); a("v_lshlrev_b32 v1, 3, v1")
        a("s_mov_b32 s42, 0")
        a("L_EPI_LOOP:")
        epi_oct("h")
        a("s_add_u32 s42, s42, 1"); a("s_cmp_lt_u32 s42, 2"); a("s_cbranch_scc1 L_EPI_LOOP")
        stamp(a, cfg, 10)
    a("L_FINAL:")
    a("v_and_b32 v2, 63, v0")
    a("v_lshrrev_b32 v3, 3, v2"); a(f"v_mul_u32_u24 v3, {XROW}, v3"); a("v_and_b32 v4, 7, v2"); a("v_lshl_add_u32 v3, v4, 4, v3")
    a(f"s_mul_i32 s22, s19, {80*XROW}"); a("s_lshl_b32 s23, s20, 7"); a("s_add_u32 s22, s22, s23"); a("v_add_u32 v3, s22, v3")
    srd(a, 12, 54, 55, S*D*2)
    a("v_mul_u32_u24 v5, 205, v0"); a("v_lshrrev_b32 v5, 11, v5"); a("v_mul_u32_u24 v6, 10, v5"); a("v_sub_u32 v6, v0, v6")
    a("v_mul_u32_u24 v7, 1056, v6"); a("v_lshl_add_u32 v7, v5, 3, v7")
    a("s_lshl_b32 s22, s20, 6"); a("v_lshl_add_u32 v8, v5, 2, s22"); a("v_mul_u32_u24 v8, 1280, v8")
    a("s_mul_i32 s23, s19, 160"); a("v_lshl_add_u32 v9, v6, 4, s23"); a("v_add_u32 v8, v8, v9")
    if not cfg.sentinel:
        a("s_waitcnt vmcnt(0)")
        a("s_barrier")
        a("s_cmp_eq_u32 s3, 7"); a("s_cbranch_scc0 L_D2")
        mb_send(a, cfg, WS_MB2, 32, "grp")
        mb_poll(a, cfg, "B", WS_MB2, 32, 8)
        a("L_D2:")
        a("s_barrier")
        stamp(a, cfg, 14)
        for r in range(2):
            if r == 1: a("s_cmp_ge_u32 s3, 2"); a("s_cbranch_scc1 L_P3_LD")
            a(f"s_add_u32 s22, s3, {8*r}"); a(f"s_mul_i32 s23, s22, {8*XROW}"); a("s_mul_i32 s22, s22, 1056"); a("s_mov_b32 m0, s22"); a("s_nop 0")
            a(f"buffer_load_dwordx4 v3, s[28:31], s23 offen {cfg.ld_ot} lds")
        a("L_P3_LD:")
        a("s_waitcnt vmcnt(0)")
    else:
        a("s_barrier")
        a("v_lshrrev_b32 v10, 3, v2"); a("v_and_b32 v11, 7, v2")
        a(f"s_mul_i32 s22, s19, {80*XROW}"); a("s_lshl_b32 s23, s20, 7"); a("s_add_u32 s22, s22, s23")
        a("s_cmp_lt_u32 s3, 2"); a("s_cbranch_scc0 L_OT_B")
        a("s_lshl_b32 s23, s3, 3"); a("v_add_u32 v10, s23, v10"); a("v_mul_u32_u24 v10, 5, v10"); a("v_add_u32 v10, 2, v10")
        a("v_mov_b32 v12, v10")
        a("s_branch L_OT_C")
        a("L_OT_B:")
        a("s_sub_u32 s23, s3, 2"); a("s_lshl_b32 s23, s23, 3"); a("v_add_u32 v10, s23, v10")
        a("s_cmp_lt_u32 s3, 4"); a("s_cselect_b32 s23, 48, 0"); a("v_add_u32 v12, s23, v10")
        for r in (10, 12):
            a(f"v_lshrrev_b32 v13, 2, v{r}"); a(f"v_and_b32 v14, 3, v{r}"); a("v_lshrrev_b32 v15, 1, v14")
            a("v_add_u32 v14, v14, v15"); a(f"v_mad_u32_u24 v{r}, v13, 5, v14")
        a("L_OT_C:")
        a(f"s_movk_i32 s23, {XROW}")
        for r, d_ in ((10, 4), (12, 5)):
            a(f"v_mul_lo_u32 v{d_}, v{r}, s23"); a(f"v_lshl_add_u32 v{d_}, v11, 4, v{d_}"); a(f"v_add_u32 v{d_}, s22, v{d_}")
            a(f"v_lshrrev_b32 v13, 3, v{r}"); a(f"v_and_b32 v14, 7, v{r}"); a("v_mul_u32_u24 v13, 1056, v13")
            a("v_lshl_add_u32 v13, v14, 7, v13"); a(f"v_lshl_add_u32 v{r}, v11, 4, v13")
        a(f"s_mov_b32 s21, {cfg.spin_max}")
        ld = lambda r, ad: a(f"buffer_load_dwordx4 v[{r}:{r+3}], v{ad}, s[28:31], 0 offen {cfg.ld_ot}")
        a("s_cmp_lt_u32 s3, 2"); a("s_cbranch_scc0 L_OT_POLL2")
        ld(48, 4); a(f"s_sleep {cfg.psleep}"); ld(52, 4); a(f"s_sleep {cfg.psleep}"); ld(56, 4)
        a("L_OT_POLL1:")
        for r in (48, 52, 56):
            a("s_waitcnt vmcnt(2)")
            a(f"v_max_u32 v28, v{r}, v{r+1}"); a(f"v_max3_u32 v28, v28, v{r+2}, v{r+3}")
            a("v_cmp_eq_u32 vcc, -1, v28")
            a(f"s_cbranch_vccz L_OT_OK{r}")
            ld(r, 4)
        a("s_sub_u32 s21, s21, 1"); a("s_cmp_eq_u32 s21, 0"); a("s_cbranch_scc0 L_OT_POLL1")
        for r in (48, 52, 56):
            a(f"L_OT_OK{r}:")
            a(f"ds_write_b128 v10, v[{r}:{r+3}]")
            a("s_branch L_OT_W")
        a("L_OT_POLL2:")
        ld(16, 4); ld(20, 5)
        a("s_waitcnt vmcnt(0)")
        a("v_max_u32 v28, v16, v17"); a("v_max3_u32 v28, v28, v18, v19")
        a("v_max3_u32 v28, v28, v20, v21"); a("v_max3_u32 v28, v28, v22, v23")
        a("v_cmp_eq_u32 vcc, -1, v28")
        a("s_cbranch_vccz L_OT_OK2")
        a("s_sub_u32 s21, s21, 1"); a("s_cmp_eq_u32 s21, 0"); a("s_cbranch_scc0 L_OT_POLL2")
        a("L_OT_OK2:")
        a("ds_write_b128 v10, v[16:19]"); a("ds_write_b128 v12, v[20:23]")
        a("L_OT_W:")
        stamp(a, cfg, 14)
        a("s_waitcnt lgkmcnt(0)")
    a("s_barrier")
    a("v_cmp_gt_u32 vcc, 160, v0")
    a("s_and_saveexec_b64 s[22:23], vcc")
    a("s_cbranch_execz L_FINISH")
    for i in range(8): a(f"ds_read_b64 v[{16+2*i}:{17+2*i}], v7 offset:{128*i}")
    a("s_mov_b32 s24, 0x05040100"); a("s_mov_b32 s25, 0x07060302")
    a("s_waitcnt lgkmcnt(0)")
    for r in range(4):
        for c in range(4):
            a(f"v_perm_b32 v{32+4*r+c}, v{16+2*(2*c+1)+(r>>1)}, v{16+2*(2*c)+(r>>1)}, s{24+(r&1)}")
        a(f"buffer_store_dwordx4 v[{32+4*r}:{35+4*r}], v8, s[12:15], 0 offen offset:{1280*r} {cfg.st_out}")
    a("L_FINISH:")
    if cfg.stamps:
        stamp(a, cfg, 15)
        stamp_flush(a, cfg)
    a("L_END:")
    a("s_endpgm")
    body = a.finish()
    kd = f""".section .rodata,"a"
.p2align 6
.amdhsa_kernel {KNAME}
  .amdhsa_next_free_vgpr 200
  .amdhsa_next_free_sgpr 102
  .amdhsa_accum_offset 200
  .amdhsa_group_segment_fixed_size 0
  .amdhsa_kernarg_size 136
  .amdhsa_user_sgpr_count 2
  .amdhsa_user_sgpr_kernarg_segment_ptr 1
  .amdhsa_system_sgpr_workgroup_id_x 1
  .amdhsa_float_denorm_mode_32 3
.end_amdhsa_kernel
"""
    header = open(__file__.replace("gen6.py", "header.txt")).read()
    return header + f"; @launch grid=(256,1,1) block=(512,1,1) lds={LDS_TOTAL}\n" + '.amdgcn_target "amdgcn-amd-amdhsa--gfx950"\n' + body + kd

if __name__ == "__main__":
    cfg = Cfg()
    for kv in sys.argv[2:]:
        k, v = kv.split("=", 1)
        setattr(cfg, k, (v == "True") if v in ("True", "False") else (int(v) if v.lstrip("-").isdigit() else (float(v) if k == "frac" else v)))
    open(sys.argv[1], "w").write(gen(cfg))
```

```python
import sys, struct
from asmlib import Asm

S, D = 2048, 640
XROW = 4224
WS_X, WS_G, WS_OT, WS_TS = 0, 0x7B0000, 0x800000, 0xC00000
WS_MB1, WS_MBG, WS_MB2, WS_MB3 = 0xD00000, 0xD10000, 0xD20000, 0xD30000
NAME = "gated_mix__ssm_conv_h3__ssm_conv_s4d__prompt"
KNAME = NAME + "_kernel"
XCP = 4160; XARR = 4*XCP; L_K = 6*XARR; KARR = 4608; L_G = L_K + 6*KARR
LDS_TOTAL = 163840
L_ST = L_G
ST_Q, ST_V, ST_K = 0, 10368, 20736
SLOT = 53*256
L_CNT = LDS_TOTAL - 16
PSET = ([0, 3, 4, 7], [1, 2, 5, 6])
SENT = 0xFFFFFFFF

class Cfg:
    nt_in = "nt"
    st_g = "sc1"; ld_g = "sc1"; st_n = "sc1"; ld_n = "sc1"
    st_x = "sc1"; ld_x = "sc1"; st_ot = "sc1"; ld_ot = "sc1"; st_out = "sc1"; st_flag = "sc1"; ld_flag = "sc1"
    stamps = False; clk = "s_memrealtime"
    spin_max = 100000
    sleep = 0
    sentinel = True
    psleep = 8
    qfirst = True
    ssm_late = False
    c2merge = True
    epi2 = True
    eprio = 1
    epi_scalar = True
    gate_after = False
    x1 = True
    map = "contig"
    prio = True
    sent_early = False
    sent_mode = "t"
    frac = 0.75

def hexf(x): return "0x%08x" % struct.unpack("<I", struct.pack("<f", float(x)))[0]

NST = 16
def stamp(a, cfg, i):
    if cfg.stamps: a(f"{cfg.clk} s[{70+2*i}:{71+2*i}]")
def stamp_flush(a, cfg):
    if not cfg.stamps: return
    a("s_waitcnt lgkmcnt(0)")
    a(f"s_add_u32 s4, s64, {WS_TS}"); a("s_addc_u32 s5, s65, 0")
    a("s_lshl_b32 s6, s2, 3"); a("s_add_u32 s6, s6, s3"); a("s_lshl_b32 s6, s6, 7")
    a("s_mov_b64 exec, 1")
    a("v_mov_b32 v4, s6")
    for i in range(NST):
        a(f"v_mov_b32 v6, s{70+2*i}"); a(f"v_mov_b32 v7, s{71+2*i}")
        a(f"global_store_dwordx2 v4, v[6:7], s[4:5] offset:{8*i}")
        a("s_nop 1")

def srd(a, s, lo, hi, size):
    a(f"s_mov_b32 s{s}, s{lo}"); a(f"s_and_b32 s{s+1}, s{hi}, 0xffff")
    a(f"s_mov_b32 s{s+2}, {size}"); a(f"s_mov_b32 s{s+3}, 0x00020000")
def srd_off(a, s, lo, hi, off, size):
    a(f"s_add_u32 s{s}, s{lo}, {off}"); a(f"s_addc_u32 s{s+1}, s{hi}, 0"); a(f"s_and_b32 s{s+1}, s{s+1}, 0xffff")
    a(f"s_mov_b32 s{s+2}, {size}"); a(f"s_mov_b32 s{s+3}, 0x00020000")
def cmul(a, d, z, w, t=2):
    a(f"v_pk_mul_f32 v[{t}:{t+1}], v[{z}:{z+1}], v[{w}:{w+1}] op_sel:[0,0] op_sel_hi:[1,0]")
    a(f"v_pk_fma_f32 v[{d}:{d+1}], v[{z}:{z+1}], v[{w}:{w+1}], v[{t}:{t+1}] op_sel:[1,1,0] op_sel_hi:[0,1,1] neg_lo:[1,0,0]")

def mb_send(a, cfg, region, nlanes, mode):
    a("v_and_b32 v4, 63, v0")
    if mode == "grp":
        a("v_lshl_add_u32 v4, v4, 3, s19"); a("v_lshlrev_b32 v4, 8, v4"); a("s_lshl_b32 s21, s20, 3")
    else:
        a("s_lshl_b32 s21, s20, 3"); a("v_add_u32 v4, s21, v4"); a("v_lshlrev_b32 v4, 7, v4"); a("s_lshl_b32 s21, s19, 3")
    a(f"s_add_u32 s21, s21, {region}"); a("v_add_u32 v4, s21, v4")
    a("v_mov_b32 v6, s66"); a("v_mov_b32 v7, s67")
    a(f"s_mov_b64 exec, {hex((1 << nlanes) - 1)}")
    a(f"buffer_store_dwordx2 v[6:7], v4, s[60:63], 0 offen {cfg.st_flag}")
    a("s_mov_b64 exec, -1")
def mb_poll(a, cfg, tag, region, nlanes, shift):
    a("v_and_b32 v4, 63, v0"); a("v_lshlrev_b32 v4, 3, v4")
    a("s_lshl_b32 s21, s20, 3"); a("s_add_u32 s21, s21, s19")
    a(f"s_lshl_b32 s21, s21, {shift}"); a(f"s_add_u32 s21, s21, {region}"); a("v_add_u32 v4, s21, v4")
    a(f"s_mov_b64 exec, {hex((1 << nlanes) - 1)}")
    a(f"s_mov_b32 s21, {cfg.spin_max}")
    ld = lambda r: a(f"buffer_load_dwordx2 v[{r}:{r+1}], v4, s[60:63], 0 offen {cfg.ld_flag}")
    ld(100); a(f"s_sleep {cfg.psleep}"); ld(102); a(f"s_sleep {cfg.psleep}"); ld(104)
    a(f"POLL_{tag}:")
    for r in (100, 102, 104):
        a("s_waitcnt vmcnt(2)")
        a(f"v_cmp_ne_u32 vcc, s66, v{r}"); a(f"v_cmp_ne_u32 s[22:23], s67, v{r+1}"); a("s_or_b64 vcc, vcc, s[22:23]")
        a(f"s_cbranch_vccz POLL_{tag}_OK")
        ld(r)
    a("s_sub_u32 s21, s21, 1"); a("s_cmp_eq_u32 s21, 0"); a(f"s_cbranch_scc0 POLL_{tag}")
    a(f"POLL_{tag}_OK:")
    a("s_mov_b64 exec, -1")

def op_loads(pairs, b, A0, B0, VA, VB, offA, offB):
    L = []; seen = []
    for (aa, cc) in pairs:
        if ("A", aa) not in seen: seen.append(("A", aa))
        if ("B", cc) not in seen: seen.append(("B", cc))
    for kind, i in seen:
        if kind == "A":
            L.append(f"ds_read_b64 v[{A0+4*i}:{A0+4*i+1}], v{VA} offset:{offA(i, b, 0)}")
            L.append(f"ds_read_b64 v[{A0+4*i+2}:{A0+4*i+3}], v{VA} offset:{offA(i, b, 1)}")
        else:
            L.append(f"ds_read_b128 v[{B0+4*i}:{B0+4*i+3}], v{VB} offset:{offB(i, b)}")
    return L

def mfma_iter(a, pairs, acc_of, A0, B0, fill, first, frac):
    a("s_waitcnt lgkmcnt(0)")
    k = 0; seen = set()
    for idx, (aa, cc) in enumerate(pairs):
        d = acc_of(aa, cc)
        c = "0" if (first and d not in seen) else f"v[{d}:{d+3}]"
        seen.add(d)
        a(f"v_mfma_f32_16x16x32_bf16 v[{d}:{d+3}], v[{A0+4*aa}:{A0+4*aa+3}], v[{B0+4*cc}:{B0+4*cc+3}], {c}")
        want = -(-len(fill) * (idx + 1) // max(1, int(len(pairs) * frac)))
        while k < min(len(fill), want): a(fill[k]); k += 1
    while k < len(fill): a(fill[k]); k += 1

def gen(cfg):
    a = Asm()
    a.lines += [".text", f".globl {KNAME}", ".p2align 8", f".type {KNAME},@function", f"{KNAME}:"]
    nt = cfg.nt_in
    a("s_cmp_ge_u32 s2, 256")
    a("s_cbranch_scc1 L_END")
    a("s_load_dwordx8 s[36:43], s[0:1], 56")
    a("s_load_dwordx2 s[44:45], s[0:1], 88")
    a("s_load_dwordx4 s[4:7], s[0:1], 0")
    a("s_load_dwordx4 s[8:11], s[0:1], 16")
    a("s_load_dwordx2 s[12:13], s[0:1], 120")
    a("s_load_dwordx2 s[64:65], s[0:1], 128")
    a("s_load_dwordx2 s[46:47], s[0:1], 104")
    a("s_load_dwordx4 s[48:51], s[0:1], 32")
    a("s_load_dwordx2 s[52:53], s[0:1], 96")
    a("s_load_dwordx2 s[54:55], s[0:1], 112")
    a("v_lshrrev_b32 v1, 6, v0")
    a("v_and_b32 v2, 63, v0")
    a("v_readfirstlane_b32 s3, v1")
    a("v_mov_b32 v3, 0"); a(f"v_mov_b32 v4, {L_CNT}")
    a("ds_write_b32 v4, v3")
    a("ds_write_b32 v4, v3 offset:4")
    a(f"v_mov_b32 v5, {L_CNT - 16}")
    a("ds_write_b32 v5, v3"); a("ds_write_b32 v5, v3 offset:4"); a("ds_write_b32 v5, v3 offset:8"); a("ds_write_b32 v5, v3 offset:12")
    for i in range(NST): stamp(a, cfg, i)
    if cfg.map == "contig":
        a("s_lshr_b32 s19, s2, 5"); a("s_and_b32 s20, s2, 31")
    else:
        a("s_and_b32 s19, s2, 7"); a("s_lshr_b32 s20, s2, 3")
    a("s_mul_i32 s17, s19, 80"); a("s_lshr_b32 s21, s20, 1"); a("s_mul_i32 s21, s21, 5"); a("s_add_u32 s17, s17, s21")
    a("s_and_b32 s18, s20, 1"); a("s_mul_i32 s21, s18, 3"); a("s_add_u32 s16, s17, s21"); a("s_add_u32 s17, s17, 2")
    a("s_waitcnt lgkmcnt(0)")
    a("s_barrier")
    a("s_cmp_ge_u32 s3, 5")
    a("s_cbranch_scc1 L_K")
    if cfg.prio: a("s_setprio 3")
    a("s_cmp_eq_u32 s3, 4"); a("s_cbranch_scc0 L_T1")
    a("s_cmp_eq_u32 s2, 0"); a("s_cbranch_scc0 L_T1")
    srd(a, 40, 12, 13, 256)
    a("s_memrealtime s[22:23]"); a("s_waitcnt lgkmcnt(0)")
    a("s_or_b32 s22, s22, 1"); a("s_or_b32 s23, s23, 0x80000000")
    a("v_mov_b32 v8, s22"); a("v_mov_b32 v9, s23"); a("v_mov_b32 v10, 0")
    a("s_mov_b64 exec, 1")
    a(f"buffer_store_dwordx2 v[8:9], v10, s[40:43], 0 offen {cfg.st_n}")
    a("s_mov_b64 exec, -1")
    a("L_T1:")
    srd(a, 24, 4, 5, S*D*2); srd(a, 28, 6, 7, S*D*2); srd(a, 32, 8, 9, S*D*2)
    a("v_mul_u32_u24 v3, 205, v2"); a("v_lshrrev_b32 v3, 11, v3")
    a("v_mul_u32_u24 v4, 10, v3"); a("v_sub_u32 v4, v2, v4")
    a("v_mul_u32_u24 v3, 1280, v3"); a("v_lshl_add_u32 v3, v4, 4, v3")
    a("s_mul_i32 s21, s20, 81920"); a("s_mul_i32 s22, s19, 160"); a("s_add_u32 s21, s21, s22")
    a("v_add_u32 v3, s21, v3"); a("v_subrev_u32 v4, 3840, v3"); a("v_add_u32 v5, 1280, v3")
    a("s_mov_b32 exec_hi, 0xff")
    def dma_i(ireg):
        a(f"s_mul_i32 s22, {ireg}, 640"); a(f"s_lshr_b32 s23, {ireg}, 1"); a("s_lshl_b32 s23, s23, 4")
        a("s_add_u32 s22, s22, s23"); a(f"s_mul_i32 s14, {ireg}, 5120"); a("s_sub_u32 s23, s14, 5120")
    if cfg.qfirst:
        a("s_mov_b32 s15, s3")
        a("L_DMA_Q:")
        dma_i("s15")
        a(f"s_add_u32 m0, s22, {L_ST + ST_Q}"); a("s_nop 0")
        a(f"buffer_load_dwordx4 v3, s[24:27], s14 offen {nt} lds")
        a("s_add_u32 s15, s15, 5"); a("s_cmp_le_u32 s15, 15"); a("s_cbranch_scc1 L_DMA_Q")
        a("s_cmp_eq_u32 s3, 0"); a("s_cbranch_scc0 L_DMA")
        a(f"s_mov_b32 m0, {L_ST + ST_K}"); a("s_nop 0")
        a(f"buffer_load_dwordx4 v4, s[28:31], 0 offen {nt} lds")
        a("L_DMA:")
        a("s_mov_b32 s15, s3")
        a("L_DMA_LOOP:")
        dma_i("s15")
        a("s_cmp_eq_u32 s15, 0"); a("s_cbranch_scc1 L_DMA_VQ")
        a(f"s_add_u32 m0, s22, {L_ST + ST_K}"); a("s_nop 0")
        a(f"buffer_load_dwordx4 v5, s[28:31], s23 offen {nt} lds")
        a("s_cmp_eq_u32 s15, 16"); a("s_cbranch_scc1 L_DMA_DONE")
        a("L_DMA_VQ:")
        a(f"s_add_u32 m0, s22, {L_ST + ST_V}"); a("s_nop 0")
        a(f"buffer_load_dwordx4 v3, s[32:35], s14 offen {nt} lds")
        a("s_add_u32 s15, s15, 5"); a("s_cmp_le_u32 s15, 16"); a("s_cbranch_scc1 L_DMA_LOOP")
    else:
        a("s_cmp_eq_u32 s3, 0"); a("s_cbranch_scc0 L_DMA")
        a(f"s_mov_b32 m0, {L_ST + ST_K}"); a("s_nop 0")
        a(f"buffer_load_dwordx4 v4, s[28:31], 0 offen {nt} lds")
        a("L_DMA:")
        a("s_mov_b32 s15, s3")
        a("L_DMA_LOOP:")
        dma_i("s15")
        a("s_cmp_eq_u32 s15, 0"); a("s_cbranch_scc1 L_DMA_VQ")
        a(f"s_add_u32 m0, s22, {L_ST + ST_K}"); a("s_nop 0")
        a(f"buffer_load_dwordx4 v5, s[28:31], s23 offen {nt} lds")
        a("s_cmp_eq_u32 s15, 16"); a("s_cbranch_scc1 L_DMA_DONE")
        a("L_DMA_VQ:")
        a(f"s_add_u32 m0, s22, {L_ST + ST_V}"); a("s_nop 0")
        a(f"buffer_load_dwordx4 v3, s[32:35], s14 offen {nt} lds")
        a(f"s_add_u32 m0, s22, {L_ST + ST_Q}"); a("s_nop 0")
        a(f"buffer_load_dwordx4 v3, s[24:27], s14 offen {nt} lds")
        a("s_add_u32 s15, s15, 5"); a("s_cmp_le_u32 s15, 16"); a("s_cbranch_scc1 L_DMA_LOOP")
    a("L_DMA_DONE:")
    a("s_mov_b64 exec, -1")
    srd(a, 36, 10, 11, D*8)
    srd(a, 40, 46, 47, D*2)
    a("v_lshrrev_b32 v11, 3, v0"); a("v_and_b32 v13, 7, v0")
    a("s_mul_i32 s23, s19, 640"); a("v_lshl_add_u32 v12, v11, 4, s23")
    a("buffer_load_dwordx4 v[16:19], v12, s[36:39], 0 offen")
    def dscalar(dst, base, ch):
        a(f"s_lshl_b32 s22, {ch}, 1"); a("s_andn2_b32 s22, s22, 3")
        a(f"s_load_dword s{dst}, s[{base}:{base+1}], s22")
    a("s_and_b32 s23, s3, 3"); a("s_lshl_b32 s23, s23, 1"); a("s_lshl_b32 s14, s20, 6"); a("s_add_u32 s23, s23, s14")
    a("s_lshl_b32 s14, s19, 3"); a("s_add_u32 s23, s23, s14")
    a("v_lshrrev_b32 v12, 5, v2"); a("v_add_u32 v12, s23, v12")
    a("v_and_b32 v14, 31, v2"); a("v_lshlrev_b32 v14, 4, v14")
    a("v_mul_u32_u24 v15, 1280, v12"); a("v_add_u32 v15, v15, v14")
    a("v_add_u32 v20, 1024, v15"); a("v_cmp_gt_u32 vcc, 256, v14"); a("v_mov_b32 v21, -1"); a("v_cndmask_b32 v20, v21, v20, vcc")
    a("v_mul_u32_u24 v21, 1296, v13"); a("v_lshl_add_u32 v21, v11, 2, v21"); a(f"v_add_u32 v21, {L_ST}, v21")
    a("s_mul_i32 s23, s19, 80"); a("v_lshl_add_u32 v22, v11, 1, s23")
    a(f"s_movk_i32 s14, {2*XROW}"); a("v_mul_lo_u32 v22, v22, s14")
    a("s_lshl_b32 s15, s20, 7"); a("s_sub_u32 s15, 4080, s15")
    a("v_lshlrev_b32 v23, 4, v13"); a("v_sub_u32 v23, s15, v23"); a("v_add_u32 v22, v22, v23")
    srd_off(a, 44, 64, 65, WS_X, 1280*XROW)
    def gate_loads():
        a("buffer_load_dwordx4 v[24:27], v15, s[24:27], 0 offen")
        a("buffer_load_dwordx4 v[28:31], v15, s[24:27], 0 offen offset:512")
        a("buffer_load_dwordx4 v[32:35], v20, s[24:27], 0 offen")
        a("buffer_load_dwordx4 v[36:39], v14, s[40:43], 0 offen")
        a("buffer_load_dwordx4 v[40:43], v14, s[40:43], 0 offen offset:512")
        a("buffer_load_dwordx4 v[44:47], v14, s[40:43], 0 offen offset:1024")
    nsent = 0
    if cfg.sentinel and cfg.sent_mode == "t":
        nsent = 2
        srd_off(a, 56, 64, 65, WS_OT, D*XROW)
        a("v_lshrrev_b32 v3, 3, v2"); a(f"v_mul_u32_u24 v3, {XROW}, v3"); a("v_and_b32 v4, 7, v2"); a("v_lshl_add_u32 v3, v4, 4, v3")
        a(f"s_mul_i32 s22, s19, {80*XROW}"); a("s_lshl_b32 s23, s20, 7"); a("s_add_u32 s22, s22, s23"); a("v_add_u32 v3, s22, v3")
        for i in range(4): a(f"v_mov_b32 v{8+i}, -1")
        a(f"s_mul_i32 s22, s3, {16*XROW}"); a(f"s_add_u32 s23, s22, {8*XROW}")
        if cfg.sent_early:
            a(f"buffer_store_dwordx4 v[8:11], v3, s[56:59], s22 offen {cfg.st_ot}")
            a(f"buffer_store_dwordx4 v[8:11], v3, s[56:59], s23 offen {cfg.st_ot}")
    def tsync(tag, off):
        a(f"v_mov_b32 v4, {L_CNT + off}"); a("v_mov_b32 v5, 1")
        a("s_mov_b64 exec, 1")
        a("ds_add_u32 v4, v5")
        a(f"L_TSYNC{tag}:")
        a("ds_read_b32 v5, v4"); a("s_waitcnt lgkmcnt(0)")
        a("v_cmp_gt_u32 vcc, 5, v5"); a(f"s_cbranch_vccnz L_TSYNC{tag}")
        a("s_mov_b64 exec, -1")
    KR, VR, QR = 48, 60, 68
    O2 = 144
    st = cfg.st_x
    if cfg.qfirst:
        a("v_mov_b32 v26, 0")
        a("s_cmp_eq_u32 s3, 4"); a("s_cbranch_scc0 L_NW4")
        srd(a, 40, 12, 13, 256)
        a(f"buffer_load_dwordx2 v[24:25], v26, s[40:43], 0 offen {cfg.ld_n}")
        a("L_NW4:")
        stamp(a, cfg, 1)
        a("s_waitcnt vmcnt(7)")
        tsync("Q", 0)
        for r in range(8): a(f"ds_read_b32 v{QR+r}, v21 offset:{ST_Q + r*160}")
        a("s_mov_b32 s14, 0x05040100"); a("s_mov_b32 s15, 0x07060302")
        a("s_waitcnt lgkmcnt(0)")
        for e in range(2):
            for i in range(4): a(f"v_perm_b32 v{O2+8*e+4+i}, v{QR+6-2*i}, v{QR+7-2*i}, s{14+e}")
        a(f"s_movk_i32 s14, {XROW}"); a(f"s_movk_i32 s15, {3*XROW}")
        a(f"buffer_store_dwordx4 v[{O2+4}:{O2+7}], v22, s[44:47], s14 offen {st}")
        a(f"buffer_store_dwordx4 v[{O2+12}:{O2+15}], v22, s[44:47], s15 offen {st}")
        if cfg.sentinel and cfg.sent_mode == "t":
            a(f"buffer_store_dwordx4 v[8:11], v3, s[56:59], s22 offen {cfg.st_ot}")
            a(f"buffer_store_dwordx4 v[8:11], v3, s[56:59], s23 offen {cfg.st_ot}")
        a(f"s_waitcnt vmcnt({2 + nsent})")
        a("s_cmp_eq_u32 s3, 4"); a("s_cbranch_scc0 L_TS0")
        a(f"s_mov_b32 s21, {cfg.spin_max}")
        a("L_NONCE_CHK:")
        a("v_readfirstlane_b32 s66, v24"); a("v_readfirstlane_b32 s67, v25")
        a("s_cmp_eq_u32 s66, 0"); a("s_cselect_b32 s14, 0, s67"); a("s_cmp_lg_u32 s14, 0")
        a("s_cbranch_scc1 L_NONCE_OK")
        a("s_sub_u32 s21, s21, 1"); a("s_cmp_eq_u32 s21, 0"); a("s_cbranch_scc1 L_NONCE_OK")
        a(f"buffer_load_dwordx2 v[24:25], v26, s[40:43], 0 offen {cfg.ld_n}")
        a("s_waitcnt vmcnt(0)")
        a("s_branch L_NONCE_CHK")
        a("L_NONCE_OK:")
        a(f"v_mov_b32 v4, {L_CNT}")
        a("s_mov_b64 exec, 1")
        a("ds_write_b64 v4, v[24:25] offset:8")
        a("s_mov_b64 exec, -1")
        a("L_TS0:")
        tsync("KV", -12)
        stamp(a, cfg, 2)
        a("s_cmp_eq_u32 s3, 4"); a("s_cbranch_scc1 L_NOG0")
        if not cfg.gate_after: gate_loads()
        a("L_NOG0:")
        for r in range(11): a(f"ds_read_b32 v{KR+r}, v21 offset:{ST_K + r*160 + (r >> 3)*16}")
        for r in range(8): a(f"ds_read_b32 v{VR+r}, v21 offset:{ST_V + r*160}")
    else:
        a("s_cmp_eq_u32 s3, 4"); a("s_cbranch_scc1 L_W4")
        stamp(a, cfg, 1)
        a("s_waitcnt vmcnt(0)")
        if not cfg.gate_after: gate_loads()
        a("s_branch L_TS0")
        a("L_W4:")
        srd(a, 40, 12, 13, 256)
        a("v_mov_b32 v26, 0")
        a(f"buffer_load_dwordx2 v[24:25], v26, s[40:43], 0 offen {cfg.ld_n}")
        stamp(a, cfg, 1)
        a("s_waitcnt vmcnt(0)")
        a(f"s_mov_b32 s21, {cfg.spin_max}")
        a("L_NONCE_CHK:")
        a("v_readfirstlane_b32 s66, v24"); a("v_readfirstlane_b32 s67, v25")
        a("s_cmp_eq_u32 s66, 0"); a("s_cselect_b32 s14, 0, s67"); a("s_cmp_lg_u32 s14, 0")
        a("s_cbranch_scc1 L_NONCE_OK")
        a("s_sub_u32 s21, s21, 1"); a("s_cmp_eq_u32 s21, 0"); a("s_cbranch_scc1 L_NONCE_OK")
        a(f"buffer_load_dwordx2 v[24:25], v26, s[40:43], 0 offen {cfg.ld_n}")
        a("s_waitcnt vmcnt(0)")
        a("s_branch L_NONCE_CHK")
        a("L_NONCE_OK:")
        a(f"v_mov_b32 v4, {L_CNT}")
        a("s_mov_b64 exec, 1")
        a("ds_write_b64 v4, v[24:25] offset:8")
        a("s_mov_b64 exec, -1")
        a("L_TS0:")
        a(f"v_mov_b32 v4, {L_CNT}"); a("v_mov_b32 v5, 1")
        a("s_mov_b64 exec, 1")
        a("ds_add_u32 v4, v5")
        a("L_TSYNC:")
        a("ds_read_b32 v5, v4"); a("s_waitcnt lgkmcnt(0)")
        a("v_cmp_gt_u32 vcc, 5, v5"); a("s_cbranch_vccnz L_TSYNC")
        a("s_mov_b64 exec, -1")
        stamp(a, cfg, 2)
        if cfg.sentinel and not cfg.sent_early and cfg.sent_mode == "t":
            a(f"buffer_store_dwordx4 v[8:11], v3, s[56:59], s22 offen {cfg.st_ot}")
            a(f"buffer_store_dwordx4 v[8:11], v3, s[56:59], s23 offen {cfg.st_ot}")
        KR, VR, QR = 48, 60, 68
        for r in range(11): a(f"ds_read_b32 v{KR+r}, v21 offset:{ST_K + r*160 + (r >> 3)*16}")
        for r in range(8): a(f"ds_read_b32 v{VR+r}, v21 offset:{ST_V + r*160}")
        for r in range(8): a(f"ds_read_b32 v{QR+r}, v21 offset:{ST_Q + r*160}")
    W = 80
    a(f"v_lshlrev_b32 v{W+0}, 16, v16");  a(f"v_lshlrev_b32 v{W+1}, 16, v18")
    a(f"v_and_b32 v{W+2}, 0xffff0000, v16"); a(f"v_and_b32 v{W+3}, 0xffff0000, v18")
    a(f"v_lshlrev_b32 v{W+4}, 16, v17");  a(f"v_lshlrev_b32 v{W+5}, 16, v19")
    a(f"v_and_b32 v{W+6}, 0xffff0000, v17"); a(f"v_and_b32 v{W+7}, 0xffff0000, v19")
    K2, V2, KV = 88, 110, 128
    if not cfg.qfirst:
        a("s_mov_b32 s14, 0x05040100"); a("s_mov_b32 s15, 0x07060302")
    a("s_waitcnt lgkmcnt(0)")
    if not cfg.qfirst:
        for e in range(2):
            for i in range(4): a(f"v_perm_b32 v{O2+8*e+4+i}, v{QR+6-2*i}, v{QR+7-2*i}, s{14+e}")
        a(f"s_movk_i32 s22, {XROW}"); a(f"s_movk_i32 s23, {3*XROW}")
        a(f"buffer_store_dwordx4 v[{O2+4}:{O2+7}], v22, s[44:47], s22 offen {st}")
        a(f"buffer_store_dwordx4 v[{O2+12}:{O2+15}], v22, s[44:47], s23 offen {st}")
    for r in range(11):
        a(f"v_lshlrev_b32 v{K2+2*r}, 16, v{KR+r}"); a(f"v_and_b32 v{K2+2*r+1}, 0xffff0000, v{KR+r}")
    for r in range(8):
        a(f"v_lshlrev_b32 v{V2+2*r}, 16, v{VR+r}"); a(f"v_and_b32 v{V2+2*r+1}, 0xffff0000, v{VR+r}")
    def pk(op, d, *srcs): a(f"{op} v[{d}:{d+1}], " + ", ".join(f"v[{s_}:{s_+1}]" for s_ in srcs))
    for r in range(8): pk("v_pk_mul_f32", KV+2*r, K2+2*(r+0), W+6)
    for r in range(8): pk("v_pk_fma_f32", KV+2*r, K2+2*(r+1), W+4, KV+2*r)
    for r in range(8): pk("v_pk_fma_f32", KV+2*r, K2+2*(r+2), W+2, KV+2*r)
    for r in range(8): pk("v_pk_fma_f32", KV+2*r, K2+2*(r+3), W+0, KV+2*r)
    for r in range(8): pk("v_pk_mul_f32", KV+2*r, KV+2*r, V2+2*r)
    for e in range(2):
        for i in range(4): a(f"v_cvt_pk_bf16_f32 v{O2+8*e+i}, v{KV+2*(7-2*i)+e}, v{KV+2*(6-2*i)+e}")
    a(f"s_movk_i32 s22, {2*XROW}")
    a(f"buffer_store_dwordx4 v[{O2}:{O2+3}], v22, s[44:47], 0 offen {st}")
    a(f"buffer_store_dwordx4 v[{O2+8}:{O2+11}], v22, s[44:47], s22 offen {st}")
    stamp(a, cfg, 3)
    ng = 6 if cfg.gate_after else 0
    if cfg.gate_after:
        a("s_cmp_eq_u32 s3, 4"); a("s_cbranch_scc1 L_NOGATE")
        gate_loads()
        a("L_NOGATE:")
    def ssm_loads():
        a("s_lshr_b32 s22, s3, 1"); a("s_add_u32 s14, s16, s22"); a("s_cmp_eq_u32 s3, 4"); a("s_cselect_b32 s14, s17, s14")
        a("s_lshl_b32 s23, s14, 12")
        srd_off(a, 56, 48, 49, "s23", 4096)
        a("v_lshlrev_b32 v3, 4, v2")
        a(f"s_mul_i32 s14, s3, {KARR}")
        for q in range(4):
            a(f"s_add_u32 m0, s14, {L_K + 480 + 1024*q}"); a(f"s_movk_i32 s23, {1024*q}")
            a(f"buffer_load_dwordx4 v3, s[56:59], s23 offen {nt} lds")
    if cfg.ssm_late:
        a(f"s_waitcnt vmcnt({ng})")
    else:
        a("s_and_b32 s14, s3, 1"); a("s_cmp_eq_u32 s14, 0"); a("s_cbranch_scc0 L_NOSSM")
        a("s_lshr_b32 s22, s3, 1"); a("s_add_u32 s14, s16, s22"); a("s_cmp_eq_u32 s3, 4"); a("s_cselect_b32 s14, s17, s14")
        a("s_lshl_b32 s23, s14, 12")
        srd_off(a, 56, 48, 49, "s23", 4096)
        a("v_lshlrev_b32 v3, 4, v2")
        a(f"s_mul_i32 s14, s3, {KARR}")
        for q in range(4):
            a(f"s_add_u32 m0, s14, {L_K + 480 + 1024*q}"); a(f"s_movk_i32 s23, {1024*q}")
            a(f"buffer_load_dwordx4 v3, s[56:59], s23 offen {nt} lds")
        a("s_cmp_eq_u32 s3, 4"); a("s_cbranch_scc1 L_XA4")
        a(f"s_waitcnt vmcnt({4 + ng})")
        a("s_branch L_XACK0")
        a("L_XA4:")
        a("s_waitcnt vmcnt(4)")
        a("s_branch L_XACK0")
        a("L_NOSSM:")
        a(f"s_waitcnt vmcnt({ng})")
    a("L_XACK0:")
    a("s_cmp_eq_u32 s3, 4"); a("s_cbranch_scc1 L_W4D")
    srd_off(a, 36, 64, 65, WS_G, 16384)
    stamp(a, cfg, 13)
    a(f"v_mov_b32 v4, {L_CNT}"); a("v_mov_b32 v5, 1")
    a("s_mov_b64 exec, 1")
    a("ds_add_u32 v4, v5 offset:4")
    a("s_mov_b64 exec, -1")
    if cfg.ssm_late:
        a("s_and_b32 s14, s3, 1"); a("s_cmp_eq_u32 s14, 0"); a("s_cbranch_scc0 L_NOSSM2")
        ssm_loads()
        a("L_NOSSM2:")
    if cfg.gate_after:
        a("s_and_b32 s14, s3, 1"); a("s_cmp_eq_u32 s14, 0"); a("s_cbranch_scc0 L_GW0")
        a("s_waitcnt vmcnt(4)"); a("s_branch L_GW1")
        a("L_GW0:"); a("s_waitcnt vmcnt(0)"); a("L_GW1:")
    a("v_mov_b32 v4, 0"); a("s_mov_b32 s14, 0x3f803f80")
    for c in range(3):
        for i in range(4):
            xq = 24 + 4*c + i; wq = 36 + 4*c + i; t = 48 + 4*((4*c+i) % 2)
            a(f"v_lshlrev_b32 v{t}, 16, v{xq}"); a(f"v_and_b32 v{t+1}, 0xffff0000, v{xq}")
            a(f"v_lshlrev_b32 v{t+2}, 16, v{wq}"); a(f"v_and_b32 v{t+3}, 0xffff0000, v{wq}")
            a(f"v_pk_mul_f32 v[{t}:{t+1}], v[{t}:{t+1}], v[{t+2}:{t+3}]")
            a(f"v_cvt_pk_bf16_f32 v{t}, v{t}, v{t+1}")
            a(f"v_dot2_f32_bf16 v4, v{t}, s14, v4")
    for sh in (1, 2, 4, 8):
        a(f"v_add_f32_dpp v4, v4, v4 row_shr:{sh} row_mask:0xf bank_mask:0xf bound_ctrl:0")
    a("v_add_f32_dpp v4, v4, v4 row_bcast:15 row_mask:0xa bank_mask:0xf")
    a("v_cvt_pk_bf16_f32 v4, v4, v4"); a("v_lshlrev_b32 v4, 16, v4")
    a("v_mul_f32 v5, 0xbfb8aa3b, v4"); a("v_exp_f32 v5, v5"); a("v_add_f32 v5, 1.0, v5"); a("v_rcp_f32 v5, v5")
    a("v_cvt_pk_bf16_f32 v5, v5, v5"); a("v_lshlrev_b32 v5, 16, v5")
    a("v_sub_f32 v6, 1.0, v5"); a("v_cvt_pk_bf16_f32 v6, v5, v6")
    a(f"v_mov_b32 v9, {L_CNT}"); a("ds_read_b32 v7, v9 offset:8")
    a("v_lshlrev_b32 v9, 3, v12"); a("v_and_b32 v8, 31, v2"); a("v_cmp_eq_u32 vcc, 31, v8")
    a("s_waitcnt lgkmcnt(0)")
    a("s_and_saveexec_b64 s[22:23], vcc")
    a(f"buffer_store_dwordx2 v[6:7], v9, s[36:39], 0 offen {cfg.st_g}")
    a("s_mov_b64 exec, -1")
    a("s_branch L_PRE_B2")
    a("L_W4D:")
    stamp(a, cfg, 13)
    a(f"v_mov_b32 v4, {L_CNT}")
    a("s_mov_b64 exec, 1")
    a("L_TSYNC2:")
    a("ds_read_b32 v5, v4 offset:4"); a("s_waitcnt lgkmcnt(0)")
    a("v_cmp_gt_u32 vcc, 4, v5"); a("s_cbranch_vccnz L_TSYNC2")
    a("s_mov_b64 exec, -1")
    stamp(a, cfg, 5)
    srd(a, 60, 64, 65, 0x1000000)
    mb_send(a, cfg, WS_MB1, 32, "grp")
    if cfg.ssm_late: ssm_loads()
    mb_poll(a, cfg, "A", WS_MB1, 32, 8)
    a("s_branch L_PRE_B2")
    a("L_K:")
    a("s_sub_u32 s22, s3, 5")
    a("s_add_u32 s14, s16, s22"); a("s_cmp_eq_u32 s22, 2"); a("s_cselect_b32 s14, s17, s14")
    P = 152
    a("s_mul_i32 s23, s14, 384"); a("v_lshl_add_u32 v6, v2, 1, s23")
    a("s_lshl_b32 s23, s14, 1"); a("v_mov_b32 v7, s23")
    srd(a, 56, 44, 45, D*2)
    a(f"buffer_load_ushort v{P+12}, v7, s[56:59], 0 offen")
    for i in range(4):
        srd(a, 24 + 4*i, 36 + 2*i, 37 + 2*i, D*192*2)
        for st_ in range(3):
            a(f"buffer_load_ushort v{P+4*st_+i}, v6, s[{24+4*i}:{27+4*i}], 0 offen offset:{128*st_}")
    a(f"s_mul_i32 s15, s22, {2*KARR}"); a(f"s_add_u32 s15, s15, {L_K}")
    a(f"s_mul_i32 s21, s22, {SLOT}")
    AV = 16
    a("v_lshlrev_b32 v7, 2, v2"); a("v_add_u32 v7, s21, v7")
    for c in range(16): a(f"v_xor_b32 v{AV+c}, {c << 4}, v7")
    RX, RY = 32, 40
    a("v_and_b32 v8, 31, v2"); a("v_lshrrev_b32 v9, 5, v2"); a("v_min_u32 v10, 20, v8")
    for (R, rowreg, rowoff) in ((RX, 10, 32), (RY, 8, 0)):
        a(f"v_and_b32 v11, 15, v{rowreg}"); a("v_xor_b32 v11, v11, v9"); a("v_lshlrev_b32 v11, 4, v11")
        a(f"v_lshl_add_u32 v11, v{rowreg}, 8, v11")
        if rowoff: a(f"v_add_u32 v11, {rowoff*256}, v11")
        a("v_add_u32 v11, s21, v11")
        for i in range(8): a(f"v_xor_b32 v{R+i}, {32*i}, v11")
    ACC = 48
    for i in range(4): a(f"v_mov_b32 v{8+i}, 0")
    a("v_lshlrev_b32 v3, 4, v2"); a("v_add_u32 v6, s15, v3")
    a("s_mov_b64 exec, 0x3fffffff")
    a("ds_write_b128 v6, v[8:11]"); a(f"ds_write_b128 v6, v[8:11] offset:{KARR}")
    a("s_mov_b64 exec, -1")
    for i in range(16): a(f"v_mov_b32 v{ACC+i}, 0")
    stamp(a, cfg, 1)
    a("s_waitcnt vmcnt(0)")
    stamp(a, cfg, 2)
    a(f"v_lshlrev_b32 v6, 16, v{P+12}"); a("v_mul_f32 v6, 0x3fb8aa3b, v6"); a("v_exp_f32 v6, v6")
    a("v_cvt_pk_bf16_f32 v6, v6, v6"); a("v_lshlrev_b32 v6, 16, v6"); a("v_add_f32 v7, v6, v6")
    E1, E2, E4, E8, E256, E128, Z, Z2, C = 64, 66, 68, 70, 72, 74, 76, 78, 80
    Q1, Q2, Q3 = 82, 84, 86
    OA, OB = 88, 120
    class Em:
        def __init__(s): s.t = a
    def capture(fn):
        L = Asm(); fn(L); return L.lines
    def cexp(b, dst, h):
        if h == 1:
            b("v_exp_f32 v8, v14"); b("v_fract_f32 v9, v15")
        else:
            b(f"v_mul_f32 v8, {hexf(h)}, v14"); b(f"v_mul_f32 v9, {hexf(h)}, v15")
            b("v_exp_f32 v8, v8"); b("v_fract_f32 v9, v9")
        b(f"v_cos_f32 v{dst}, v9"); b(f"v_sin_f32 v{dst+1}, v9")
        b(f"v_mul_f32 v{dst}, v8, v{dst}"); b(f"v_mul_f32 v{dst+1}, v8, v{dst+1}")
    def setup(b):
        b(f"v_lshlrev_b32 v8, 16, v{P}"); b("v_mul_f32 v8, 0x3fb8aa3b, v8"); b("v_exp_f32 v8, v8")
        b(f"v_lshlrev_b32 v15, 16, v{P+1}"); b("v_mul_f32 v15, v15, v6"); b("v_mul_f32 v15, 0.15915494, v15")
        b("v_cvt_pk_bf16_f32 v8, v8, v8"); b("v_lshlrev_b32 v8, 16, v8")
        b("v_mul_f32 v14, v8, v6"); b("v_mul_f32 v14, 0xbfb8aa3b, v14")
        b(f"v_lshlrev_b32 v{C}, 16, v{P+2}"); b(f"v_lshlrev_b32 v{C+1}, 16, v{P+3}")
        b(f"v_mul_f32 v{C}, v{C}, v7"); b(f"v_mul_f32 v{C+1}, v{C+1}, v7")
        cexp(b, E1, 1); cexp(b, E8, 8); cexp(b, E256, 256); cexp(b, E128, 128)
        cmul(b, E2, E1, E1); cmul(b, E4, E2, E2)
        cmul(b, Q1, C, E256); cmul(b, Q2, Q1, E256); cmul(b, Q3, Q2, E256)
        for i in range(8): b(f"v_mov_b32 v{P+i}, v{P+4+i}")
    pend = []; rot = [0]
    def flush(keep=0):
        while len(pend) > keep: a(pend.pop(0))
    def store_pair(rowA, za, rowB, zb, neg):
        n = "-" if neg else ""
        t = (8, 10, 12)[rot[0] % 3]; rot[0] += 1
        a(f"v_cvt_pk_bf16_f32 v{t}, v{za}, {n}v{za+1}")
        if rowB is None:
            w = f"ds_write_b32 v{AV + (rowA & 15)}, v{t} offset:{rowA*256}"
        else:
            assert (rowA & 15) == (rowB & 15)
            a(f"v_cvt_pk_bf16_f32 v{t+1}, v{zb}, {n}v{zb+1}")
            w = f"ds_write2st64_b32 v{AV + (rowA & 15)}, v{t}, v{t+1} offset0:{rowA} offset1:{rowB}"
        flush(1); pend.append(w)
    def chains():
        a(f"v_mov_b32 v{Z}, 1.0"); a(f"v_mov_b32 v{Z+1}, 0")
        store_pair(0, Z, 16, E128, False)
        cmul(a, Z2, E128, E8)
        store_pair(1, E8, 17, Z2, False)
        cmul(a, Z, E8, E8); cmul(a, Z2, Z2, E8, 4)
        store_pair(2, Z, 18, Z2, False)
        for lam in range(3, 16):
            cmul(a, Z, Z, E8); cmul(a, Z2, Z2, E8, 4)
            store_pair(lam, Z, lam + 16, Z2, False)
        cmul(a, Z, Q1, E2)
        store_pair(32+0, C, 32+16, Z, True)
        cmul(a, Z2, C, E1); cmul(a, Z, Z, E2, 4)
        store_pair(32+1, Z2, 32+17, Z, True)
        cmul(a, Z2, Z2, E1); cmul(a, Z, Z, E2, 4)
        store_pair(32+2, Z2, 32+18, Z, True)
        cmul(a, Z2, Z2, E1); cmul(a, Z, Q2, E4, 4)
        store_pair(32+3, Z2, 32+19, Z, True)
        cmul(a, Z2, Z2, E1); cmul(a, Z, Q3, E4, 4)
        store_pair(32+4, Z2, 32+20, Z, True)
        cmul(a, Z, Q3, E256, 4)
        store_pair(32+8, Q1, None, None, True)
        cmul(a, Z2, Z2, E1); store_pair(32+5, Z2, None, None, True)
        store_pair(32+11, Z, None, None, True)
        cmul(a, Z2, Z2, E1); cmul(a, Z, Z, E256, 4); store_pair(32+6, Z2, None, None, True)
        store_pair(32+12, Z, None, None, True)
        cmul(a, Z2, Z2, E1); cmul(a, Z, Z, E256, 4); store_pair(32+7, Z2, None, None, True)
        store_pair(32+13, Z, None, None, True)
        cmul(a, Z, Z, E256, 4); store_pair(32+9, Q2, None, None, True)
        store_pair(32+14, Z, None, None, True)
        cmul(a, Z, Z, E256, 4); store_pair(32+10, Q3, None, None, True)
        store_pair(32+15, Z, None, None, True)
        flush()
    setup(a)
    a("s_mov_b32 s23, 3")
    a("L_GEN:")
    chains()
    a("s_waitcnt lgkmcnt(0)")
    for i in range(8):
        a(f"ds_read_b128 v[{OA+4*i}:{OA+4*i+3}], v{RX+i}")
        a(f"ds_read_b128 v[{OB+4*i}:{OB+4*i+3}], v{RY+i}")
    su = capture(setup); per = -(-len(su) // 8); k = 0
    for i in range(8):
        for l in su[k:k+per]: a(l)
        k += per
        a(f"s_waitcnt lgkmcnt({14-2*i})")
        a(f"v_mfma_f32_32x32x16_bf16 v[{ACC}:{ACC+15}], v[{OA+4*i}:{OA+4*i+3}], v[{OB+4*i}:{OB+4*i+3}], v[{ACC}:{ACC+15}]")
    a("s_sub_u32 s23, s23, 1")
    if cfg.stamps:
        a("s_cmp_eq_u32 s23, 2"); a("s_cbranch_scc0 L_GS1"); stamp(a, cfg, 9); a("L_GS1:")
        a("s_cmp_eq_u32 s23, 1"); a("s_cbranch_scc0 L_GS2"); stamp(a, cfg, 11); a("L_GS2:")
    a("s_cmp_lg_u32 s23, 0")
    a("s_cbranch_scc1 L_GEN")
    stamp(a, cfg, 3)
    a("v_and_b32 v2, 63, v0")
    a("v_and_b32 v8, 31, v2"); a("v_lshrrev_b32 v9, 5, v2")
    a("v_lshlrev_b32 v10, 2, v8"); a("v_lshl_add_u32 v10, v9, 9, v10"); a("v_add_u32 v10, s21, v10")
    a(f"s_add_u32 s22, s15, {KARR + 480}")
    a("v_lshlrev_b32 v11, 4, v2"); a("v_add_u32 v11, s22, v11")
    a("s_mov_b32 s23, 0x0000ffff")
    a("v_lshlrev_b32 v13, 2, v8"); a("v_add_u32 v13, s21, v13")
    a("v_lshlrev_b32 v14, 2, v2"); a("v_add_u32 v14, s21, v14")
    for r in range(12):
        a(f"v_cvt_pk_bf16_f32 v{16+r}, v{ACC+r}, v{ACC+r}")
    for r in range(12):
        row = 8*(r >> 2) + (r & 3)
        a(f"ds_write_b32 v10, v{16+r} offset:{row*128}")
    a("s_waitcnt lgkmcnt(0)")
    T = 64
    for r in range(8): a(f"ds_read_b32 v{T+r}, v13 offset:{r*128}")
    a(f"ds_read_b32 v{T+8}, v13 offset:{8*128}"); a(f"ds_read_b32 v{T+9}, v13 offset:{16*128}")
    a(f"ds_read_b32 v{T+10}, v13 offset:{17*128}"); a(f"ds_read_b32 v{T+11}, v13 offset:{18*128}")
    a(f"ds_read_b32 v{T+12}, v13 offset:{8*128+4}"); a(f"ds_read_b32 v{T+13}, v14 offset:{9*128}")
    a(f"ds_read_b32 v{T+14}, v14 offset:{19*128}")
    a("s_waitcnt lgkmcnt(4)")
    a(f"ds_read_b32 v{T+15}, v14 offset:{9*128+4}"); a(f"ds_read_b32 v{T+16}, v14 offset:{11*128}")
    a(f"ds_read_b32 v{T+17}, v14 offset:{11*128+4}"); a(f"ds_read_b32 v{T+18}, v14 offset:{13*128}")
    a(f"ds_read_b32 v{T+19}, v14 offset:{13*128+4}")
    def mix(d, lo, hi): a(f"v_bfi_b32 v{d}, s23, v{lo}, v{hi}")
    O = 88
    a("v_cmp_gt_u32 vcc, 32, v2")
    a("v_and_b32 v15, 1, v2"); a("v_cmp_eq_u32 s[24:25], 1, v15")
    a("s_waitcnt lgkmcnt(0)")
    for i in range(4): mix(O+i, T+2*i, T+2*i+1)
    a(f"v_mov_b32 v{O+4}, v{T+8}"); mix(O+5, T+9, T+10); a(f"v_mov_b32 v{O+6}, v{T+10}"); mix(O+7, T+11, T+12)
    for i in range(4): a(f"v_cndmask_b32 v{O+i}, v{O+4+i}, v{O+i}, vcc")
    a(f"v_mov_b32 v{O+8}, v{T+13}"); mix(O+9, T+13, T+14); a(f"v_mov_b32 v{O+10}, v{T+14}"); a(f"v_mov_b32 v{O+11}, v{T+15}")
    for k in range(2):
        s0, s1 = T+16+2*k, T+17+2*k
        d = O + 12 + 4*k
        a(f"v_mov_b32 v{d}, v{s0}"); a(f"v_mov_b32 v{d+1}, v{s0}"); mix(d+2, s0, s1)
        a(f"v_cndmask_b32 v{d+2}, v{d+2}, v{s1}, s[24:25]"); a(f"v_mov_b32 v{d+3}, v{s1}")
    a(f"ds_write_b128 v11, v[{O}:{O+3}]")
    a(f"ds_write_b128 v11, v[{O+8}:{O+11}] offset:1024")
    a(f"ds_write_b128 v11, v[{O+12}:{O+15}] offset:2048")
    a(f"ds_write_b128 v11, v[{O+16}:{O+19}] offset:3072")
    def sentinel_stores():
        srd_off(a, 56, 64, 65, WS_OT, D*XROW)
        a("v_lshrrev_b32 v3, 3, v2"); a(f"v_mul_u32_u24 v3, {XROW}, v3"); a("v_and_b32 v4, 7, v2"); a("v_lshl_add_u32 v3, v4, 4, v3")
        a(f"s_mul_i32 s22, s19, {80*XROW}"); a("s_lshl_b32 s23, s20, 7"); a("s_add_u32 s22, s22, s23"); a("v_add_u32 v3, s22, v3")
        for i in range(4): a(f"v_mov_b32 v{8+i}, -1")
        for i in range(10):
            a(f"s_mov_b32 s22, {8*XROW*i}")
            a(f"buffer_store_dwordx4 v[8:11], v3, s[56:59], s22 offen {cfg.st_ot}")
    if cfg.sentinel and cfg.sent_mode == "w6":
        a("s_cmp_eq_u32 s3, 6"); a("s_cbranch_scc0 L_PRE_B2")
        srd_off(a, 56, 64, 65, WS_OT, D*XROW)
        a("v_lshrrev_b32 v3, 3, v2"); a(f"v_mul_u32_u24 v3, {XROW}, v3"); a("v_and_b32 v4, 7, v2"); a("v_lshl_add_u32 v3, v4, 4, v3")
        a(f"s_mul_i32 s22, s19, {80*XROW}"); a("s_lshl_b32 s23, s20, 7"); a("s_add_u32 s22, s22, s23"); a("v_add_u32 v3, s22, v3")
        for i in range(4): a(f"v_mov_b32 v{8+i}, -1")
        for i in range(10):
            a(f"s_mov_b32 s22, {8*XROW*i}")
            a(f"buffer_store_dwordx4 v[8:11], v3, s[56:59], s22 offen {cfg.st_ot}")
    a("s_branch L_PRE_B2")
    a("L_PRE_B2:")
    if cfg.prio: a("s_setprio 0")
    stamp(a, cfg, 4)
    for n_, (base, ch) in enumerate(((50, "s16"), (50, None), (50, "s17"), (52, "s16"), (52, None), (52, "s17"))):
        if ch is None: a("s_add_u32 s14, s16, 1"); ch = "s14"
        a(f"s_lshl_b32 s22, {ch}, 1"); a("s_and_b32 s22, s22, 0xfffffffc")
        a(f"s_load_dword s{8+n_}, s[{base}:{base+1}], s22")
    srd(a, 60, 64, 65, 0x1000000)
    a("v_and_b32 v2, 63, v0")
    a("s_lshr_b32 s21, s3, 1"); a("s_add_u32 s22, s16, s21"); a("s_cmp_ge_u32 s3, 4"); a("s_cselect_b32 s22, s17, s22")
    a("s_and_b32 s23, s3, 1")
    a("s_lshl_b32 s14, s22, 1"); a("s_add_u32 s14, s14, s23"); a(f"s_mul_i32 s14, s14, {XROW}")
    srd_off(a, 24, 64, 65, "s14", 4096)
    a(f"s_mul_i32 s34, s3, {XARR}"); a(f"s_mul_i32 s35, s3, {KARR}"); a(f"s_add_u32 s35, s35, {L_K}")
    a("v_lshlrev_b32 v3, 4, v2"); a("v_add_u32 v4, 4, v3")
    a("v_and_b32 v8, 15, v2"); a("v_lshrrev_b32 v9, 4, v2")
    a("v_sub_u32 v10, 3, v8"); a("v_and_b32 v10, 3, v10")
    a("v_lshlrev_b32 v11, 3, v9"); a("v_sub_u32 v11, v11, v8"); a("v_add_u32 v11, 2031, v11"); a("v_sub_u32 v11, v11, v10")
    a("v_lshlrev_b32 v11, 1, v11"); a(f"v_mul_u32_u24 v12, {XCP}, v10"); a("v_add_u32 v11, v11, v12"); a("v_subrev_u32 v11, 4032, v11")
    a("v_lshlrev_b32 v12, 5, v8"); a("v_lshl_add_u32 v12, v9, 4, v12")
    VA, VB, VA2, VB2, VY, VX = 13, 14, 15, 16, 17, 18
    a(f"v_add_u32 v{VA}, s34, v11"); a(f"v_add_u32 v{VB}, s35, v12")
    a("s_add_u32 s36, s23, 4"); a(f"s_mul_i32 s37, s36, {XARR}"); a(f"s_mul_i32 s38, s36, {KARR}"); a(f"s_add_u32 s38, s38, {L_K}")
    a("s_lshr_b32 s39, s3, 1"); a("s_sub_u32 s39, 1, s39"); a("s_lshl_b32 s39, s39, 8")
    a("s_add_u32 s40, s37, s39"); a("s_add_u32 s41, s38, s39")
    a(f"v_add_u32 v{VA2}, s40, v11"); a(f"v_add_u32 v{VB2}, s41, v12")
    a(f"v_lshlrev_b32 v{VY}, 5, v8"); a(f"v_lshl_add_u32 v{VY}, v9, 3, v{VY}")
    a(f"v_add_u32 v19, s35, v{VY}")
    a("v_lshrrev_b32 v5, 1, v2"); a(f"v_mul_u32_u24 v5, {XCP}, v5"); a("v_and_b32 v6, 1, v2")
    a("v_lshl_add_u32 v5, v6, 4, v5"); a("v_add_u32 v5, s34, v5")
    a(f"v_add_u32 v{VX}, s34, v3")
    for i in range(4): a(f"v_mov_b32 v{8+i}, 0")
    stamp(a, cfg, 6)
    a("s_and_b32 s14, s3, 5"); a("s_cmp_eq_u32 s14, 4"); a("s_cbranch_scc1 L_B3W")
    a("s_waitcnt vmcnt(0)")
    a("L_B3W:")
    a("s_waitcnt lgkmcnt(0)")
    a("s_barrier")
    stamp(a, cfg, 7)
    ld = cfg.ld_x
    W = 64
    def x_even(sx, sbase):
        for cp, vreg in ((0, 3), (2, 4)):
            for q in range(4):
                a(f"s_add_u32 m0, {sbase}, {cp*XCP + 1024*q}"); a(f"s_movk_i32 s36, {1024*q}")
                a(f"buffer_load_dwordx4 v{vreg}, s[{sx}:{sx+3}], s36 offen {ld} lds")
    def x_odd(ndma):
        for q in range(4):
            a(f"buffer_load_dwordx4 v[{W+8*q}:{W+8*q+3}], v3, s[24:27], 0 offen offset:{1024*q} {ld}")
            a(f"buffer_load_dwordx4 v[{W+8*q+4}:{W+8*q+7}], v3, s[24:27], 0 offen offset:{1024*q+16} {ld}")
        if ndma: x_even(24, "s34")
        a("s_mov_b64 exec, 0xff")
        a("ds_write_b128 v5, v[8:11] offset:4096")
        a("s_mov_b64 exec, -1")
        for q in range(4):
            w = W + 8*q
            a(f"s_waitcnt vmcnt({ndma + 6 - 2*q})")
            if q == 0: stamp(a, cfg, 8)
            for j in range(4): a(f"v_alignbit_b32 v{96+j}, v{w+j+1}, v{w+j}, 16")
            for j in range(4): a(f"v_alignbit_b32 v{100+j}, v{w+j+2}, v{w+j+1}, 16")
            a(f"ds_write_b128 v{VX}, v[96:99] offset:{1*XCP + 1024*q}")
            a(f"ds_write_b128 v{VX}, v[100:103] offset:{3*XCP + 1024*q}")
        a("s_waitcnt vmcnt(0) lgkmcnt(0)")
    def xload(): x_odd(8)
    def dscal_fix():
        a("s_waitcnt lgkmcnt(0)")
        for n_, ch in enumerate(("s16", None, "s17", "s16", None, "s17")):
            if ch is None: a("s_add_u32 s14, s16, 1"); ch = "s14"
            a(f"s_and_b32 s22, {ch}, 1"); a("s_lshl_b32 s22, s22, 4")
            a(f"s_lshr_b32 s{8+n_}, s{8+n_}, s22"); a(f"s_lshl_b32 s{8+n_}, s{8+n_}, 16")
    a("s_cmp_ge_u32 s3, 4"); a("s_cbranch_scc1 L_HELP")
    x_odd(0 if cfg.x1 else 8)
    if cfg.c2merge:
        dscal_fix()
        srd_off(a, 28, 64, 65, WS_OT, D*XROW)
        SCR = L_G + 16384
        a(f"s_lshl_b32 s36, s3, 12"); a(f"s_add_u32 s36, s36, {SCR}"); a("v_add_u32 v196, s36, v3")
        a(f"s_lshl_b32 s36, s3, 10"); a(f"s_add_u32 s36, s36, {SCR}"); a("v_add_u32 v197, s36, v3")
        a("s_and_b32 s36, s3, 1"); a("s_xor_b32 s36, s36, s18"); a("s_lshl_b32 s37, s3, 1"); a("s_add_u32 s36, s36, s37"); a("s_lshl_b32 s36, s36, 9")
        a(f"v_add_u32 v12, s36, v{VY}")
        a(f"v_sub_u32 v198, {4*XARR + 4088}, v12")
        a("v_lshlrev_b32 v199, 1, v12"); a(f"v_add_u32 v199, {L_G}, v199")
        a(f"s_mul_i32 s47, s17, {XROW}"); a("v_add_u32 v12, s47, v12")
    stamp(a, cfg, 9)
    a("s_barrier")
    sets = [(20, 52), (84, 116)]
    ACC0, ACC2 = 148, 180
    pairs = [(aa, cc) for aa in range(8) for cc in range(8 - aa)]
    offA = lambda i, b, h: 512*(7-i) + 64*(7-b) + 8*h
    offB = lambda c, b: 512*c + 64*(7-b)
    offA2 = lambda i, b, h: 512*(7-i) + 64*(3-b) + 8*h
    offB2 = lambda c, b: 512*c + 64*(3-b)
    for l in op_loads(pairs, 0, *sets[0], VA, VB, offA, offB): a(l)
    a(f"v_mov_b32 v6, {L_CNT - 4}")
    for b in range(7):
        fill = op_loads(pairs, b+1, *sets[(b+1) & 1], VA, VB, offA, offB)
        if b == 6:
            a("L_C1:")
            a("ds_read_b32 v7, v6"); a("s_waitcnt lgkmcnt(0)")
            a("v_cmp_gt_u32 vcc, 2, v7"); a("s_cbranch_vccnz L_C1")
        mfma_iter(a, pairs, lambda aa, cc: ACC0 + 4*(aa+cc), *sets[b & 1], fill, b == 0, cfg.frac)
    a("s_cmp_eq_u32 s18, 0"); a("s_cbranch_scc0 L_C2_E1")
    ywr = []
    for p in range(8):
        tt = (4, 6)[p & 1]
        ywr += [f"v_cvt_pk_bf16_f32 v{tt}, v{ACC0+4*p}, v{ACC0+4*p+1}", f"v_cvt_pk_bf16_f32 v{tt+1}, v{ACC0+4*p+2}, v{ACC0+4*p+3}",
                f"ds_write_b64 v19, v[{tt}:{tt+1}] offset:{512*p}"]
    for e in range(2):
        if e == 1: a("L_C2_E1:")
        ps = PSET[e]
        prs = [(aa, cc) for aa in range(8) for cc in range(8 - aa) if aa + cc in ps]
        a("s_waitcnt lgkmcnt(0)")
        pre = op_loads(prs, 0, *sets[0], VA2, VB2, offA2, offB2)
        last = {aa + cc: idx for idx, (aa, cc) in enumerate(pairs)}
        ins = {i: [] for i in range(len(pairs))}
        for n_, l in enumerate(pre): ins[min(len(pairs)-1, n_ + 1)].append(l)
        for p_ in range(5):
            c0_, c1_, w_ = ywr[3*p_:3*p_+3]
            ins[min(35, last[p_] + 5)] += [c0_, c1_]; ins[min(35, last[p_] + 7)].append(w_)
        A0, B0 = sets[1]
        for idx, (aa, cc) in enumerate(pairs):
            d = ACC0 + 4*(aa+cc)
            a(f"v_mfma_f32_16x16x32_bf16 v[{d}:{d+3}], v[{A0+4*aa}:{A0+4*aa+3}], v[{B0+4*cc}:{B0+4*cc+3}], v[{d}:{d+3}]")
            for l in ins[idx]: a(l)
        stamp(a, cfg, 10)
        for b in range(4):
            fill = op_loads(prs, b+1, *sets[(b+1) & 1], VA2, VB2, offA2, offB2) if b < 3 else []
            if b == 3 and cfg.c2merge:
                fill = ["ds_read_b64 v[24:25], v198", f"ds_read_b64 v[26:27], v198 offset:{XARR}", "ds_read_b128 v[28:31], v199", "ds_read_b128 v[32:35], v199 offset:8192"]
            if b == 0: fill = fill[:6] + ywr[15:17] + fill[6:9] + ywr[17:20] + fill[9:12] + ywr[20:23] + fill[12:15] + ywr[23:24] + fill[15:]
            if b == 1:
                a("s_waitcnt lgkmcnt(0)"); a("s_barrier")
            mfma_iter(a, prs, lambda aa, cc: ACC2 + 4*ps.index(aa+cc), *sets[b & 1], fill, b == 0, 0.95)
        if e == 0: a("s_branch L_C2_DONE")
    a("L_C2_DONE:")
    stamp(a, cfg, 11)
    def lds_sync(tag, vaddr, off, target):
        a("s_waitcnt lgkmcnt(0)")
        a("s_mov_b64 exec, 1")
        a(f"ds_add_u32 v{vaddr}, v9 offset:{off}")
        a(f"L_SY_{tag}:")
        a(f"ds_read_b32 v10, v{vaddr} offset:{off}"); a("s_waitcnt lgkmcnt(0)")
        a(f"v_cmp_gt_u32 vcc, {target}, v10"); a(f"s_cbranch_vccnz L_SY_{tag}")
        a("s_mov_b64 exec, -1")
    if cfg.c2merge:
        a("s_nop 2")
        for ti in range(4): a(f"ds_write_b128 v196, v[{ACC2+4*ti}:{ACC2+4*ti+3}] offset:{1024*ti}")
        a(f"v_mov_b32 v8, {L_CNT - 16}"); a("v_mov_b32 v9, 1"); a("v_mov_b32 v4, v197"); a("v_mov_b32 v7, v12")
        a("s_waitcnt lgkmcnt(4)")
        for (src, dst) in ((24, 52), (26, 56)):
            a(f"v_and_b32 v{dst}, 0xffff0000, v{src+1}"); a(f"v_lshlrev_b32 v{dst+1}, 16, v{src+1}")
            a(f"v_and_b32 v{dst+2}, 0xffff0000, v{src}"); a(f"v_lshlrev_b32 v{dst+3}, 16, v{src}")
        lds_sync("R", 8, 8, 4)
        stamp(a, cfg, 12)
        for w_ in range(4): a(f"ds_read_b128 v[{36+4*w_}:{39+4*w_}], v4 offset:{4096*w_}")
        a("s_waitcnt lgkmcnt(0)")
        for r in range(4):
            a(f"v_add_f32 v{36+r}, v{36+r}, v{44+r}"); a(f"v_add_f32 v{40+r}, v{40+r}, v{48+r}")
        for r in range(4):
            a(f"v_fmac_f32 v{36+r}, s10, v{52+r}"); a(f"v_fmac_f32 v{40+r}, s13, v{56+r}")
        for r in range(4):
            a(f"v_mul_f32 v{36+r}, v{36+r}, v{56+r}"); a(f"v_mul_f32 v{36+r}, v{36+r}, v{28+r}")
            a(f"v_fmac_f32 v{36+r}, v{40+r}, v{32+r}")
        a("v_cvt_pk_bf16_f32 v68, v36, v37"); a("v_cvt_pk_bf16_f32 v69, v38, v39")
        if cfg.sentinel:
            for i in range(2): a(f"v_min_u32 v{68+i}, 0xfffffffe, v{68+i}")
        a(f"buffer_store_dwordx2 v[68:69], v7, s[28:31], 0 offen {cfg.st_ot}")
        a("s_branch L_FINAL")
    else:
        a("s_and_b32 s36, s3, 1"); a("s_lshl_b32 s39, s36, 2"); a("s_add_u32 s36, s36, 2"); a(f"s_mul_i32 s36, s36, {XARR}"); a(f"s_add_u32 s36, s36, {XCP}")
        a("v_add_u32 v4, s36, v3")
        a("s_lshl_b32 s37, s18, 9")
        a(f"v_add_u32 v5, s38, v{VY}")
        a("v_add_u32 v6, s37, v5"); a("v_subrev_u32 v7, s37, v5")
        a(f"s_add_u32 s39, s39, {L_CNT - 16}"); a("v_mov_b32 v8, s39"); a("v_mov_b32 v9, 1")
        a("s_cmp_lt_u32 s3, 2"); a("s_cbranch_scc0 L_RED_HI")
        for (lbl, keep, give) in (("lo", (0, 1), (2, 3)), ("hi", (2, 3), (0, 1))):
            if lbl == "hi": a("L_RED_HI:")
            a("s_nop 4")
            for ti in give: a(f"ds_write_b128 v4, v[{ACC2+4*ti}:{ACC2+4*ti+3}] offset:{1024*ti}")
            lds_sync("R" + lbl, 8, 0, 2)
            for n_, ti in enumerate(keep): a(f"ds_read_b128 v[{20+4*n_}:{23+4*n_}], v4 offset:{1024*ti}")
            a("s_waitcnt lgkmcnt(0)")
            for n_, ti in enumerate(keep):
                for r in range(0, 4, 2):
                    a(f"v_pk_add_f32 v[{20+4*n_+r}:{21+4*n_+r}], v[{20+4*n_+r}:{21+4*n_+r}], v[{ACC2+4*ti+r}:{ACC2+4*ti+r+1}]")
                a(f"v_cvt_pk_bf16_f32 v{28+2*n_}, v{20+4*n_}, v{21+4*n_}"); a(f"v_cvt_pk_bf16_f32 v{29+2*n_}, v{22+4*n_}, v{23+4*n_}")
            for n_, ti in enumerate(keep):
                if ti & 1: a(f"ds_write_b64 v7, v[{28+2*n_}:{29+2*n_}] offset:{1024*ti + 512}")
                else: a(f"ds_write_b64 v6, v[{28+2*n_}:{29+2*n_}] offset:{1024*ti}")
            if lbl == "lo": a("s_branch L_RED_DONE")
        a("L_RED_DONE:")
        a(f"v_mov_b32 v8, {L_CNT - 16}")
        lds_sync("Y2", 8, 8, 4)
        stamp(a, cfg, 12)
        dscal_fix()
        srd_off(a, 28, 64, 65, WS_OT, D*XROW)
        a("v_lshrrev_b32 v1, 6, v0"); a("v_and_b32 v2, 1, v1"); a("v_xor_b32 v2, s18, v2"); a("v_lshl_add_u32 v1, v1, 1, v2")
        a("v_lshlrev_b32 v1, 8, v1"); a("v_and_b32 v2, 63, v0"); a("v_lshl_add_u32 v1, v2, 2, v1")
        a("v_lshlrev_b32 v7, 1, v1")
        a(f"v_add_u32 v8, {L_K + 4*KARR}, v7"); a(f"v_sub_u32 v9, {4*XARR + 4088}, v7")
        a("v_lshlrev_b32 v10, 2, v1"); a(f"v_add_u32 v10, {L_G}, v10")
        a("ds_read_b64 v[20:21], v8"); a(f"ds_read_b64 v[22:23], v8 offset:{KARR}")
        a("ds_read_b64 v[24:25], v9"); a(f"ds_read_b64 v[26:27], v9 offset:{XARR}")
        a("ds_read_b128 v[28:31], v10"); a("ds_read_b128 v[32:35], v10 offset:8192")
        a(f"s_mul_i32 s47, s17, {XROW}"); a("v_add_u32 v7, s47, v7")
        a("v_mov_b32 v12, s10"); a("v_mov_b32 v13, s10"); a("v_mov_b32 v14, s13"); a("v_mov_b32 v15, s13")
        a("s_waitcnt lgkmcnt(0)")
        for i in range(2):
            t = 52 + 8*i
            a(f"v_lshlrev_b32 v{t}, 16, v{20+i}"); a(f"v_and_b32 v{t+1}, 0xffff0000, v{20+i}")
            a(f"v_lshlrev_b32 v{t+2}, 16, v{22+i}"); a(f"v_and_b32 v{t+3}, 0xffff0000, v{22+i}")
            a(f"v_and_b32 v{t+4}, 0xffff0000, v{24+1-i}"); a(f"v_lshlrev_b32 v{t+5}, 16, v{24+1-i}")
            a(f"v_and_b32 v{t+6}, 0xffff0000, v{26+1-i}"); a(f"v_lshlrev_b32 v{t+7}, 16, v{26+1-i}")
        for i in range(2):
            t = 52 + 8*i
            a(f"v_pk_fma_f32 v[{t}:{t+1}], v[{t+4}:{t+5}], v[12:13], v[{t}:{t+1}]")
            a(f"v_pk_fma_f32 v[{t+2}:{t+3}], v[{t+6}:{t+7}], v[14:15], v[{t+2}:{t+3}]")
        for i in range(2):
            t = 52 + 8*i
            a(f"v_pk_mul_f32 v[{t}:{t+1}], v[{t}:{t+1}], v[{t+6}:{t+7}]")
            a(f"v_pk_mul_f32 v[{t}:{t+1}], v[{t}:{t+1}], v[{28+2*i}:{29+2*i}]")
            a(f"v_pk_fma_f32 v[{t}:{t+1}], v[{t+2}:{t+3}], v[{32+2*i}:{33+2*i}], v[{t}:{t+1}]")
            a(f"v_cvt_pk_bf16_f32 v{68+i}, v{t}, v{t+1}")
        if cfg.sentinel:
            for i in range(2): a(f"v_min_u32 v{68+i}, 0xfffffffe, v{68+i}")
        a(f"buffer_store_dwordx2 v[68:69], v7, s[28:31], 0 offen {cfg.st_ot}")
        a("s_branch L_FINAL")
    def epi_oct(tagc):
        a("s_lshl_b32 s43, s42, 1")
        a(f"s_mul_i32 s45, s43, {XARR}"); a(f"s_mul_i32 s46, s43, {KARR}"); a(f"s_add_u32 s46, s46, {L_K}")
        a("v_lshlrev_b32 v7, 1, v1"); a("v_add_u32 v8, s46, v7")
        a("v_sub_u32 v9, 4080, v7"); a("v_add_u32 v9, s45, v9")
        a("v_lshlrev_b32 v10, 2, v1"); a(f"v_add_u32 v10, {L_G}, v10")
        a("ds_read_b128 v[20:23], v8"); a(f"ds_read_b128 v[24:27], v8 offset:{KARR}")
        a("ds_read_b128 v[28:31], v9"); a(f"ds_read_b128 v[32:35], v9 offset:{XARR}")
        a("ds_read_b128 v[36:39], v10"); a("ds_read_b128 v[40:43], v10 offset:16")
        a("ds_read_b128 v[44:47], v10 offset:8192"); a("ds_read_b128 v[48:51], v10 offset:8208")
        a("s_add_u32 s47, s16, s42"); a(f"s_mul_i32 s47, s47, {XROW}"); a("v_add_u32 v7, s47, v7")
        a("s_cmp_eq_u32 s42, 0"); a("s_cselect_b32 s44, s8, s9"); a("s_cselect_b32 s45, s11, s12")
        a("v_mov_b32 v12, s44"); a("v_mov_b32 v13, s44"); a("v_mov_b32 v14, s45"); a("v_mov_b32 v15, s45")
        a("s_waitcnt lgkmcnt(0)")
        for i in range(4):
            t = 52 + 8*(i & 1)
            a(f"v_lshlrev_b32 v{t}, 16, v{20+i}"); a(f"v_and_b32 v{t+1}, 0xffff0000, v{20+i}")
            a(f"v_lshlrev_b32 v{t+2}, 16, v{24+i}"); a(f"v_and_b32 v{t+3}, 0xffff0000, v{24+i}")
            a(f"v_and_b32 v{t+4}, 0xffff0000, v{28+3-i}"); a(f"v_lshlrev_b32 v{t+5}, 16, v{28+3-i}")
            a(f"v_and_b32 v{t+6}, 0xffff0000, v{32+3-i}"); a(f"v_lshlrev_b32 v{t+7}, 16, v{32+3-i}")
            if cfg.epi_scalar:
                for h in range(2):
                    a(f"v_fmac_f32 v{t+h}, s44, v{t+4+h}"); a(f"v_fmac_f32 v{t+2+h}, s45, v{t+6+h}")
                for h in range(2):
                    a(f"v_mul_f32 v{t+h}, v{t+h}, v{t+6+h}"); a(f"v_mul_f32 v{t+h}, v{t+h}, v{36+2*i+h}")
                    a(f"v_fmac_f32 v{t+h}, v{t+2+h}, v{44+2*i+h}")
            else:
                a(f"v_pk_fma_f32 v[{t}:{t+1}], v[{t+4}:{t+5}], v[12:13], v[{t}:{t+1}]")
                a(f"v_pk_fma_f32 v[{t+2}:{t+3}], v[{t+6}:{t+7}], v[14:15], v[{t+2}:{t+3}]")
                a(f"v_pk_mul_f32 v[{t}:{t+1}], v[{t}:{t+1}], v[{t+6}:{t+7}]")
                a(f"v_pk_mul_f32 v[{t}:{t+1}], v[{t}:{t+1}], v[{36+2*i}:{37+2*i}]")
                a(f"v_pk_fma_f32 v[{t}:{t+1}], v[{t+2}:{t+3}], v[{44+2*i}:{45+2*i}], v[{t}:{t+1}]")
            a(f"v_cvt_pk_bf16_f32 v{68+i}, v{t}, v{t+1}")
        if cfg.sentinel:
            for i in range(4): a(f"v_min_u32 v{68+i}, 0xfffffffe, v{68+i}")
        a(f"buffer_store_dwordx4 v[68:71], v7, s[28:31], 0 offen {cfg.st_ot}")
    a("L_HELP:")
    if cfg.x1:
        a("s_sub_u32 s14, s3, 4"); a("s_lshr_b32 s22, s14, 1"); a("s_add_u32 s22, s16, s22"); a("s_lshl_b32 s22, s22, 1")
        a("s_and_b32 s23, s14, 1"); a("s_add_u32 s22, s22, s23"); a(f"s_mul_i32 s22, s22, {XROW}")
        srd_off(a, 28, 64, 65, "s22", 4096)
        a(f"s_mul_i32 s33, s14, {XARR}")
        x_even(28, "s33")
        a("s_waitcnt vmcnt(0)")
    a("s_barrier")
    a("s_cmp_ge_u32 s3, 6"); a("s_cbranch_scc1 L_H67")
    xload()
    a(f"v_mov_b32 v4, {L_CNT - 4}"); a("v_mov_b32 v5, 1")
    a("s_mov_b64 exec, 1"); a("ds_add_u32 v4, v5"); a("s_mov_b64 exec, -1")
    a("s_branch L_HELP2")
    a("L_H67:")
    if cfg.sentinel and cfg.sent_mode in ("w6", "w6b"):
        a("s_cmp_eq_u32 s3, 6"); a("s_cbranch_scc0 L_H7")
        if cfg.sent_mode == "w6b": sentinel_stores()
        a(f"v_mov_b32 v4, {L_CNT}"); a("ds_read_b64 v[6:7], v4 offset:8")
        a("s_waitcnt vmcnt(0) lgkmcnt(0)")
        a("v_readfirstlane_b32 s66, v6"); a("v_readfirstlane_b32 s67, v7")
        mb_send(a, cfg, WS_MB3, 32, "grp")
        mb_poll(a, cfg, "S", WS_MB3, 32, 8)
        a("s_branch L_HELP2")
        a("L_H7:")
    onew = cfg.sentinel and cfg.sent_mode in ("w6", "w6b")
    nq = 16 if onew else 8
    a(f"v_mov_b32 v4, {L_CNT}"); a("ds_read_b32 v5, v4 offset:8")
    srd_off(a, 24, 64, 65, WS_G, 16384)
    if onew: a("s_mov_b32 s36, 0")
    else: a("s_sub_u32 s36, s3, 6"); a("s_lshl_b32 s36, s36, 13")
    a("v_lshlrev_b32 v3, 4, v2"); a("v_add_u32 v6, s36, v3")
    for k_ in range(1, nq // 4): a(f"v_add_u32 v{9+k_}, {4096*k_}, v6")
    a(f"s_mov_b32 s21, {cfg.spin_max}")
    a("L_G_POLL:")
    for q in range(nq):
        a(f"buffer_load_dwordx4 v[{20+4*q}:{23+4*q}], v{6 if q < 4 else 9 + (q >> 2)}, s[24:27], 0 offen offset:{1024*(q & 3)} {cfg.ld_g}")
    a("s_waitcnt vmcnt(0) lgkmcnt(0)")
    a("v_xor_b32 v7, v21, v5")
    for q in range(nq):
        for h in (1, 3):
            if q == 0 and h == 1: continue
            a(f"v_xor_b32 v8, v{20+4*q+h}, v5"); a("v_or_b32 v7, v7, v8")
    a("v_cmp_ne_u32 vcc, 0, v7")
    a("s_cbranch_vccz L_G_OK")
    a("s_sub_u32 s21, s21, 1"); a("s_cmp_eq_u32 s21, 0"); a("s_cbranch_scc0 L_G_POLL")
    a("L_G_OK:")
    a("s_lshr_b32 s36, s36, 1")
    a("v_lshlrev_b32 v9, 3, v2"); a("v_add_u32 v9, s36, v9"); a(f"v_add_u32 v9, {L_G}, v9")
    for q in range(nq):
        r = 20 + 4*q
        a(f"v_lshlrev_b32 v{r+1}, 16, v{r+2}"); a(f"v_and_b32 v{r+3}, 0xffff0000, v{r+2}")
        a(f"v_and_b32 v{r+2}, 0xffff0000, v{r}"); a(f"v_lshlrev_b32 v{r}, 16, v{r}")
    for q in range(nq):
        r = 20 + 4*q
        a(f"ds_write_b64 v9, v[{r}:{r+1}] offset:{512*q}")
        a(f"ds_write_b64 v9, v[{r+2}:{r+3}] offset:{8192 + 512*q}")
    if cfg.epi2:
        a("L_GDONE:")
        a(f"v_mov_b32 v8, {L_CNT - 16}"); a("v_mov_b32 v9, 1")
        a("s_waitcnt lgkmcnt(0)"); a("s_mov_b64 exec, 1"); a("ds_add_u32 v8, v9"); a("s_mov_b64 exec, -1")
        a("L_HELP2:")
        dscal_fix()
        srd_off(a, 28, 64, 65, WS_OT, D*XROW)
        a("v_and_b32 v1, 255, v0"); a("v_lshlrev_b32 v1, 4, v1")
        a(f"v_add_u32 v8, {L_K}, v1")
        a("v_sub_u32 v9, 4080, v1")
        a("v_lshlrev_b32 v10, 1, v1"); a(f"v_add_u32 v10, {L_G}, v10")
        for c in range(4): a(f"ds_read_b128 v[{20+4*c}:{23+4*c}], v9 offset:{XARR*c}")
        ngw = 1 if (cfg.sentinel and cfg.sent_mode in ("w6", "w6b")) else 2
        a(f"v_mov_b32 v11, {L_CNT - 16}")
        a("L_GWAIT:")
        a("ds_read_b32 v12, v11"); a("s_waitcnt lgkmcnt(0)")
        a(f"v_cmp_gt_u32 vcc, {ngw}, v12"); a("s_cbranch_vccnz L_GWAIT")
        a("ds_read_b128 v[36:39], v10"); a("ds_read_b128 v[40:43], v10 offset:16")
        a("ds_read_b128 v[44:47], v10 offset:8192"); a("ds_read_b128 v[48:51], v10 offset:8208")
        a("s_add_u32 s14, s16, 1"); a(f"s_mul_i32 s47, s16, {XROW}"); a(f"s_mul_i32 s46, s14, {XROW}")
        a("v_add_u32 v6, s47, v1"); a("v_add_u32 v7, s46, v1")
        AL, GA = (132, 148), (140, 156)
        for c in range(2):
            kvr, ur = 20 + 8*c, 24 + 8*c
            for j in range(8):
                src = 3 - (j >> 1)
                if j & 1:
                    a(f"v_lshlrev_b32 v{52+j}, 16, v{kvr+src}"); a(f"v_lshlrev_b32 v{60+j}, 16, v{ur+src}")
                else:
                    a(f"v_and_b32 v{52+j}, 0xffff0000, v{kvr+src}"); a(f"v_and_b32 v{60+j}, 0xffff0000, v{ur+src}")
            if c == 0: a("s_waitcnt lgkmcnt(0)")
            sDA, sDS = ("s8", "s11") if c == 0 else ("s9", "s12")
            for j in range(8):
                a(f"v_mul_f32 v{AL[c]+j}, v{36+j}, v{60+j}")
                a(f"v_mul_f32 v{52+j}, {sDA}, v{52+j}")
                a(f"v_mul_f32 v{60+j}, {sDS}, v{60+j}")
                a(f"v_mul_f32 v{GA[c]+j}, v{44+j}, v{60+j}")
                a(f"v_fmac_f32 v{GA[c]+j}, v{AL[c]+j}, v{52+j}")
        if cfg.eprio: a(f"s_setprio {cfg.eprio}")
        a("s_barrier")
        for c in range(2):
            a(f"ds_read_b128 v[{20+8*c}:{23+8*c}], v8 offset:{2*c*KARR}"); a(f"ds_read_b128 v[{24+8*c}:{27+8*c}], v8 offset:{(2*c+1)*KARR}")
        for c in range(2):
            a(f"s_waitcnt lgkmcnt({2 - 2*c})")
            ya, yb = 20 + 8*c, 24 + 8*c
            for j in range(8):
                src = j >> 1
                if j & 1:
                    a(f"v_and_b32 v{52+j}, 0xffff0000, v{ya+src}"); a(f"v_and_b32 v{60+j}, 0xffff0000, v{yb+src}")
                else:
                    a(f"v_lshlrev_b32 v{52+j}, 16, v{ya+src}"); a(f"v_lshlrev_b32 v{60+j}, 16, v{yb+src}")
            for j in range(8):
                a(f"v_fmac_f32 v{GA[c]+j}, v{AL[c]+j}, v{52+j}"); a(f"v_fmac_f32 v{GA[c]+j}, v{44+j}, v{60+j}")
            for i in range(4): a(f"v_cvt_pk_bf16_f32 v{68+4*c+i}, v{GA[c]+2*i}, v{GA[c]+2*i+1}")
            if cfg.sentinel:
                for i in range(4): a(f"v_min_u32 v{68+4*c+i}, 0xfffffffe, v{68+4*c+i}")
            a(f"buffer_store_dwordx4 v[{68+4*c}:{71+4*c}], v{6+c}, s[28:31], 0 offen {cfg.st_ot}")
        if cfg.eprio: a("s_setprio 0")
        stamp(a, cfg, 10)
    else:
        a("L_HELP2:")
        dscal_fix()
        srd_off(a, 28, 64, 65, WS_OT, D*XROW)
        a("s_barrier")
        a("v_and_b32 v1, 255, v0"); a("v_lshlrev_b32 v1, 3, v1")
        a("s_mov_b32 s42, 0")
        a("L_EPI_LOOP:")
        epi_oct("h")
        a("s_add_u32 s42, s42, 1"); a("s_cmp_lt_u32 s42, 2"); a("s_cbranch_scc1 L_EPI_LOOP")
        stamp(a, cfg, 10)
    a("L_FINAL:")
    a("v_and_b32 v2, 63, v0")
    a("v_lshrrev_b32 v3, 3, v2"); a(f"v_mul_u32_u24 v3, {XROW}, v3"); a("v_and_b32 v4, 7, v2"); a("v_lshl_add_u32 v3, v4, 4, v3")
    a(f"s_mul_i32 s22, s19, {80*XROW}"); a("s_lshl_b32 s23, s20, 7"); a("s_add_u32 s22, s22, s23"); a("v_add_u32 v3, s22, v3")
    srd(a, 12, 54, 55, S*D*2)
    a("v_mul_u32_u24 v5, 205, v0"); a("v_lshrrev_b32 v5, 11, v5"); a("v_mul_u32_u24 v6, 10, v5"); a("v_sub_u32 v6, v0, v6")
    a("v_mul_u32_u24 v7, 1056, v6"); a("v_lshl_add_u32 v7, v5, 3, v7")
    a("s_lshl_b32 s22, s20, 6"); a("v_lshl_add_u32 v8, v5, 2, s22"); a("v_mul_u32_u24 v8, 1280, v8")
    a("s_mul_i32 s23, s19, 160"); a("v_lshl_add_u32 v9, v6, 4, s23"); a("v_add_u32 v8, v8, v9")
    if not cfg.sentinel:
        a("s_waitcnt vmcnt(0)")
        a("s_barrier")
        a("s_cmp_eq_u32 s3, 7"); a("s_cbranch_scc0 L_D2")
        mb_send(a, cfg, WS_MB2, 32, "grp")
        mb_poll(a, cfg, "B", WS_MB2, 32, 8)
        a("L_D2:")
        a("s_barrier")
        stamp(a, cfg, 14)
        for r in range(2):
            if r == 1: a("s_cmp_ge_u32 s3, 2"); a("s_cbranch_scc1 L_P3_LD")
            a(f"s_add_u32 s22, s3, {8*r}"); a(f"s_mul_i32 s23, s22, {8*XROW}"); a("s_mul_i32 s22, s22, 1056"); a("s_mov_b32 m0, s22"); a("s_nop 0")
            a(f"buffer_load_dwordx4 v3, s[28:31], s23 offen {cfg.ld_ot} lds")
        a("L_P3_LD:")
        a("s_waitcnt vmcnt(0)")
    else:
        a("s_barrier")
        a("v_lshrrev_b32 v10, 3, v2"); a("v_and_b32 v11, 7, v2")
        a(f"s_mul_i32 s22, s19, {80*XROW}"); a("s_lshl_b32 s23, s20, 7"); a("s_add_u32 s22, s22, s23")
        a("s_cmp_lt_u32 s3, 2"); a("s_cbranch_scc0 L_OT_B")
        a("s_lshl_b32 s23, s3, 3"); a("v_add_u32 v10, s23, v10"); a("v_mul_u32_u24 v10, 5, v10"); a("v_add_u32 v10, 2, v10")
        a("v_mov_b32 v12, v10")
        a("s_branch L_OT_C")
        a("L_OT_B:")
        a("s_sub_u32 s23, s3, 2"); a("s_lshl_b32 s23, s23, 3"); a("v_add_u32 v10, s23, v10")
        a("s_cmp_lt_u32 s3, 4"); a("s_cselect_b32 s23, 48, 0"); a("v_add_u32 v12, s23, v10")
        for r in (10, 12):
            a(f"v_lshrrev_b32 v13, 2, v{r}"); a(f"v_and_b32 v14, 3, v{r}"); a("v_lshrrev_b32 v15, 1, v14")
            a("v_add_u32 v14, v14, v15"); a(f"v_mad_u32_u24 v{r}, v13, 5, v14")
        a("L_OT_C:")
        a(f"s_movk_i32 s23, {XROW}")
        for r, d_ in ((10, 4), (12, 5)):
            a(f"v_mul_lo_u32 v{d_}, v{r}, s23"); a(f"v_lshl_add_u32 v{d_}, v11, 4, v{d_}"); a(f"v_add_u32 v{d_}, s22, v{d_}")
            a(f"v_lshrrev_b32 v13, 3, v{r}"); a(f"v_and_b32 v14, 7, v{r}"); a("v_mul_u32_u24 v13, 1056, v13")
            a("v_lshl_add_u32 v13, v14, 7, v13"); a(f"v_lshl_add_u32 v{r}, v11, 4, v13")
        a(f"s_mov_b32 s21, {cfg.spin_max}")
        ld = lambda r, ad: a(f"buffer_load_dwordx4 v[{r}:{r+3}], v{ad}, s[28:31], 0 offen {cfg.ld_ot}")
        a("s_cmp_lt_u32 s3, 2"); a("s_cbranch_scc0 L_OT_POLL2")
        ld(48, 4); a(f"s_sleep {cfg.psleep}"); ld(52, 4); a(f"s_sleep {cfg.psleep}"); ld(56, 4)
        a("L_OT_POLL1:")
        for r in (48, 52, 56):
            a("s_waitcnt vmcnt(2)")
            a(f"v_max_u32 v28, v{r}, v{r+1}"); a(f"v_max3_u32 v28, v28, v{r+2}, v{r+3}")
            a("v_cmp_eq_u32 vcc, -1, v28")
            a(f"s_cbranch_vccz L_OT_OK{r}")
            ld(r, 4)
        a("s_sub_u32 s21, s21, 1"); a("s_cmp_eq_u32 s21, 0"); a("s_cbranch_scc0 L_OT_POLL1")
        for r in (48, 52, 56):
            a(f"L_OT_OK{r}:")
            a(f"ds_write_b128 v10, v[{r}:{r+3}]")
            a("s_branch L_OT_W")
        a("L_OT_POLL2:")
        ld(16, 4); ld(20, 5)
        a("s_waitcnt vmcnt(0)")
        a("v_max_u32 v28, v16, v17"); a("v_max3_u32 v28, v28, v18, v19")
        a("v_max3_u32 v28, v28, v20, v21"); a("v_max3_u32 v28, v28, v22, v23")
        a("v_cmp_eq_u32 vcc, -1, v28")
        a("s_cbranch_vccz L_OT_OK2")
        a("s_sub_u32 s21, s21, 1"); a("s_cmp_eq_u32 s21, 0"); a("s_cbranch_scc0 L_OT_POLL2")
        a("L_OT_OK2:")
        a("ds_write_b128 v10, v[16:19]"); a("ds_write_b128 v12, v[20:23]")
        a("L_OT_W:")
        stamp(a, cfg, 14)
        a("s_waitcnt lgkmcnt(0)")
    a("s_barrier")
    a("v_cmp_gt_u32 vcc, 160, v0")
    a("s_and_saveexec_b64 s[22:23], vcc")
    a("s_cbranch_execz L_FINISH")
    for i in range(8): a(f"ds_read_b64 v[{16+2*i}:{17+2*i}], v7 offset:{128*i}")
    a("s_mov_b32 s24, 0x05040100"); a("s_mov_b32 s25, 0x07060302")
    a("s_waitcnt lgkmcnt(0)")
    for r in range(4):
        for c in range(4):
            a(f"v_perm_b32 v{32+4*r+c}, v{16+2*(2*c+1)+(r>>1)}, v{16+2*(2*c)+(r>>1)}, s{24+(r&1)}")
        a(f"buffer_store_dwordx4 v[{32+4*r}:{35+4*r}], v8, s[12:15], 0 offen offset:{1280*r} {cfg.st_out}")
    a("L_FINISH:")
    if cfg.stamps:
        stamp(a, cfg, 15)
        stamp_flush(a, cfg)
    a("L_END:")
    a("s_endpgm")
    body = a.finish()
    kd = f""".section .rodata,"a"
.p2align 6
.amdhsa_kernel {KNAME}
  .amdhsa_next_free_vgpr 200
  .amdhsa_next_free_sgpr 102
  .amdhsa_accum_offset 200
  .amdhsa_group_segment_fixed_size 0
  .amdhsa_kernarg_size 136
  .amdhsa_user_sgpr_count 2
  .amdhsa_user_sgpr_kernarg_segment_ptr 1
  .amdhsa_system_sgpr_workgroup_id_x 1
  .amdhsa_float_denorm_mode_32 3
.end_amdhsa_kernel
"""
    header = open(__file__.replace("gen8.py", "header.txt")).read()
    return header + f"; @launch grid=(256,1,1) block=(512,1,1) lds={LDS_TOTAL}\n" + '.amdgcn_target "amdgcn-amd-amdhsa--gfx950"\n' + body + kd

if __name__ == "__main__":
    cfg = Cfg()
    for kv in sys.argv[2:]:
        k, v = kv.split("=", 1)
        setattr(cfg, k, (v == "True") if v in ("True", "False") else (int(v) if v.lstrip("-").isdigit() else (float(v) if k == "frac" else v)))
    open(sys.argv[1], "w").write(gen(cfg))
```
